```python
import torch

def _softmax(x, axis=-1):
    return torch.softmax(x, dim=axis)
def _gelu(x):
    return torch.nn.functional.gelu(x, approximate="tanh")
def _silu(x):
    return torch.nn.functional.silu(x)
def _sigmoid(x):
    return torch.sigmoid(x)
def _layernorm(x, axis=-1, eps=1e-5):
    m = x.mean(dim=axis, keepdim=True)
    v = x.var(dim=axis, keepdim=True, unbiased=False)
    return (x - m) / torch.sqrt(v + eps)
def _scatter_add(tgt, idx, src, axis=0):
    return tgt.clone().index_add_(axis, idx, src)
def _segment_sum(src, seg, n):
    out = torch.zeros((n,) + src.shape[1:], dtype=src.dtype)
    return out.index_add_(0, seg, src)
def _pad(x, pw):
    flat = tuple(v for pair in reversed(pw) for v in pair)
    return torch.nn.functional.pad(x, flat)

kernel_name = 'sequential_preLN__grouped_kv_mqa__moe_arch_mod__prompt'

def setup_inputs():

    _w = (lambda a: (lambda t: t.to(torch.bfloat16) if t.is_floating_point() else t)(torch.as_tensor(a)))
    def _A_setup():
        B, S, D, H = 1, 2048, 640, 32
        Dh = D // H
        return {
            "x": _w((lambda *s: torch.randn(*s, dtype=torch.bfloat16) * 0.05)(B, S, D)),
            "wq": _w((lambda *s: torch.randn(*s, dtype=torch.bfloat16) * 0.05)(D, H * Dh)),
            "wk": _w((lambda *s: torch.randn(*s, dtype=torch.bfloat16) * 0.05)(D, Dh)),
            "wv": _w((lambda *s: torch.randn(*s, dtype=torch.bfloat16) * 0.05)(D, Dh)),
            "wo": _w((lambda *s: torch.randn(*s, dtype=torch.bfloat16) * 0.05)(H * Dh, D)),
        }
    _A_in = _A_setup()

    def _B_setup():
        B, S, D, F, C = 1, 2048, 640, 1728, 1
        return {
            "x": _w((lambda *s: torch.randn(*s, dtype=torch.bfloat16) * 0.05)(B, S, D)),
            "w_r": _w((lambda *s: torch.randn(*s, dtype=torch.bfloat16) * 0.05)(D)),
            "w_gate": _w((lambda *s: torch.randn(*s, dtype=torch.bfloat16) * 0.05)(D, F)),
            "w_up": _w((lambda *s: torch.randn(*s, dtype=torch.bfloat16) * 0.05)(D, F)),
            "w_down": _w((lambda *s: torch.randn(*s, dtype=torch.bfloat16) * 0.05)(F, D)),
        }
    _B_in = _B_setup()

    return {
        "A_x": _A_in["x"],
        "A_wq": _A_in["wq"],
        "A_wk": _A_in["wk"],
        "A_wv": _A_in["wv"],
        "A_wo": _A_in["wo"],
        "B_x": _B_in["x"],
        "B_w_r": _B_in["w_r"],
        "B_w_gate": _B_in["w_gate"],
        "B_w_up": _B_in["w_up"],
        "B_w_down": _B_in["w_down"],
    }

def reference(A_x, A_wq, A_wk, A_wv, A_wo, B_x, B_w_r, B_w_gate, B_w_up, B_w_down):
    def _A_ref(x, wq, wk, wv, wo):
        B, S, D = x.shape
        H = 32
        Dh = D // H
        q = (lambda x, *d: x.permute(*d))((x @ wq).reshape(B, S, H, Dh), 0, 2, 1, 3)
        k = x @ wk
        v = x @ wv
        scores = torch.einsum("bhqd,bkd->bhqk", q, k) * (Dh ** -0.5)
        p = _softmax(scores, axis=-1)
        o = torch.einsum("bhqk,bkd->bhqd", p, v)
        return (lambda x, *d: x.permute(*d))(o, 0, 2, 1, 3).reshape(B, S, H * Dh) @ wo

    def _B_ref(x, w_r, w_gate, w_up, w_down):
        B, S, D = x.shape
        C = 1
        r = x @ w_r
        idx = torch.argsort(-r, axis=-1)[:, :C]
        idx_e = (lambda x, n, axis: torch.repeat_interleave(x, n, dim=axis))(idx.reshape(B, C, 1), D, axis=2)
        x_sel = (lambda x, i, axis: torch.take_along_dim(x, i, dim=axis))(x, idx_e, axis=1)
        g = _silu(x_sel @ w_gate)
        u = x_sel @ w_up
        y = (g * u) @ w_down
        r_sel = _sigmoid((lambda x, i, axis: torch.take_along_dim(x, i, dim=axis))(r, idx, axis=1))
        y = y * r_sel.reshape(B, C, 1)
        b_off = (torch.arange(B) * S).reshape(B, 1)
        flat_idx = (idx + b_off).reshape(B * C)
        zero = (x * 0.0).reshape(B * S, D)
        upd = _scatter_add(zero, flat_idx, y.reshape(B * C, D), axis=0)
        return x + upd.reshape(B, S, D)

    x = A_x
    h = x + _A_ref(_layernorm(x, axis=-1), A_wq, A_wk, A_wv, A_wo)
    h2 = h + _B_ref(_layernorm(h, axis=-1), B_w_r, B_w_gate, B_w_up, B_w_down)
    return h2
```

```python
import sys, struct

NAME = "sequential_preLN__grouped_kv_mqa__moe_arch_mod__prompt"
WS_Q, WS_KV, WS_O, WS_H, WS_ST, WS_KM, WS_YP, WS_SEL = 0, 0x400000, 0x800000, 0xC00000, 0x1000000, 0x1100000, 0x1200000, 0x1300000
ROWB = 1280
MATB = 2048 * 1280
QSCALE = (20 ** -0.5) * 1.4426950408889634

def f32hex(x):
    return "0x%08x" % struct.unpack("<I", struct.pack("<f", x))[0]

class K:
    def __init__(self, name, vgpr, sgpr=96, lds=0):
        self.name, self.vgpr, self.sgpr = name, vgpr, sgpr
        self.lines = []
    def __call__(self, s):
        for l in s.strip().split("\n"):
            self.lines.append("    " + l.strip())
    def label(self, s):
        self.lines.append(f"{self.name}_{s}:")
    def L(self, s):
        return f"{self.name}_{s}"
    def srd(self, d, b, size):
        self(f"s_mov_b32 s{d}, s{b}\ns_mov_b32 s{d+1}, s{b+1}\ns_mov_b32 s{d+2}, {size}\ns_mov_b32 s{d+3}, 0x00020000")
    def srd_off(self, d, b, off, size):
        self(f"s_add_u32 s{d}, s{b}, {off}\ns_addc_u32 s{d+1}, s{b+1}, 0\ns_mov_b32 s{d+2}, {size}\ns_mov_b32 s{d+3}, 0x00020000")
    def text(self):
        acc = (self.vgpr + 3) // 4 * 4
        return (f".globl {self.name}\n.p2align 8\n.type {self.name},@function\n{self.name}:\n" + "\n".join(self.lines) + "\n")
    def desc(self):
        acc = (self.vgpr + 3) // 4 * 4
        return (f".amdhsa_kernel {self.name}\n  .amdhsa_next_free_vgpr {self.vgpr}\n  .amdhsa_next_free_sgpr {self.sgpr}\n"
                f"  .amdhsa_accum_offset {acc}\n  .amdhsa_group_segment_fixed_size 0\n  .amdhsa_kernarg_size 104\n"
                f"  .amdhsa_user_sgpr_count 2\n  .amdhsa_user_sgpr_kernarg_segment_ptr 1\n  .amdhsa_system_sgpr_workgroup_id_x 1\n"
                f".end_amdhsa_kernel\n")

def v4(b): return f"v[{b}:{b+3}]"
def v2(b): return f"v[{b}:{b+1}]"
def v16(b): return f"v[{b}:{b+15}]"

def xor16_32_add(k, v, t0, t1):
    k(f"ds_swizzle_b32 v{t0}, v{v} offset:0x401F\ns_waitcnt lgkmcnt(0)\nv_add_f32 v{v}, v{v}, v{t0}")
    k(f"v_mov_b32 v{t0}, v{v}\nv_mov_b32 v{t1}, v{v}\ns_nop 1\nv_permlane32_swap_b32 v{t0}, v{t1}\ns_nop 1\nv_add_f32 v{v}, v{t0}, v{t1}")

WT_BYTES = 108 * 960
KVW = WT_BYTES
XF = 16
ACC = 96
CS = 124
WF = 152

def gemm_prologue(k, a_ptr_sgpr, a_is_ws_off=None):
    k("""
    s_mul_i32 s44, s16, 160
    s_add_u32 s24, s6, s44
    s_addc_u32 s25, s7, 0
    s_sub_u32 s26, 819200, s44
    s_mov_b32 s27, 0x00020000
    v_and_b32 v3, 15, v1
    v_lshrrev_b32 v4, 4, v1
    s_lshl_b32 s45, s17, 6
    s_lshl_b32 s46, s18, 4
    s_add_u32 s45, s45, s46
    v_add_u32 v5, s45, v3
    v_mul_u32_u24 v6, 1280, v5
    v_lshl_add_u32 v6, v4, 4, v6
    """)
    for ks in range(20):
        k(f"buffer_load_dwordx4 {v4(XF+4*ks)}, v6, s[20:23], 0 offen offset:{ks*64}")
    k("""
    v_mul_u32_u24 v7, 205, v1
    v_lshrrev_b32 v7, 11, v7
    v_mul_u32_u24 v8, 10, v7
    v_sub_u32 v8, v1, v8
    v_mul_u32_u24 v7, 1280, v7
    v_lshl_add_u32 v7, v8, 4, v7
    s_mul_i32 s47, s18, 7680
    s_mul_i32 s48, s18, 960
    s_mov_b32 exec_hi, 0x0fffffff
    """)
    for i in range(27):
        k(f"s_mov_b32 m0, s48\ns_add_u32 s48, s48, 3840\nbuffer_load_dwordx4 v7, s[24:27], s47 offen lds\ns_add_u32 s47, s47, 30720")
    k("s_mov_b32 exec_hi, -1")

def gemm_lds_addr(k):
    k("""
    v_lshrrev_b32 v12, 2, v1
    v_and_b32 v12, 3, v12
    v_lshl_add_u32 v12, v4, 3, v12
    v_and_b32 v13, 3, v1
    v_mul_u32_u24 v9, 160, v12
    v_lshl_add_u32 v9, v13, 3, v9
    v_add_u32 v10, 51200, v9
    v_mul_u32_u24 v11, 40, v12
    v_lshl_add_u32 v11, v13, 3, v11
    """)
    k(f"v_add_u32 v11, {KVW}, v11")

def gemm_loop(k, ntiles_main, nkv, colsum, ones_reg=None):
    tiles = list(range(ntiles_main)) + [5 + i for i in range(nkv)]
    def reads(ks, buf):
        for t in tiles:
            dst = WF + buf * 28 + t * 4
            for h in range(2):
                if t < 5:
                    base, kk = (9, ks) if ks < 10 else (10, ks - 10)
                    off = kk * 5120 + t * 32 + h * 640
                else:
                    base = 11
                    off = ks * 1280 + (t - 5) * 32 + h * 160
                k(f"ds_read_b64_tr_b16 {v2(dst+2*h)}, v{base} offset:{off}")
    nr = 2 * len(tiles)
    reads(0, 0)
    for ks in range(20):
        if ks < 19:
            reads(ks + 1, (ks + 1) & 1)
            k(f"s_waitcnt lgkmcnt({nr})")
        else:
            k("s_waitcnt lgkmcnt(0)")
        for t in tiles:
            wf = WF + (ks & 1) * 28 + t * 4
            c = "0" if ks == 0 else v4(ACC + 4 * t)
            k(f"v_mfma_f32_16x16x32_bf16 {v4(ACC+4*t)}, {v4(wf)}, {v4(XF+4*ks)}, {c}")
            if colsum:
                c = "0" if ks == 0 else v4(CS + 4 * t)
                k(f"v_mfma_f32_16x16x32_bf16 {v4(CS+4*t)}, {v4(wf)}, {v4(ones_reg)}, {c}")
    k("s_nop 7\ns_nop 3")

def gen_k1():
    k = K("qkv_kernel", 216)
    k("""
    s_cmp_ge_u32 s2, 256
    s_cbranch_scc1 qkv_kernel_end
    s_load_dwordx4 s[4:7], s[0:1], 0
    s_load_dwordx4 s[8:11], s[0:1], 16
    s_load_dwordx2 s[12:13], s[0:1], 96
    s_load_dwordx2 s[14:15], s[0:1], 48
    v_and_b32 v1, 63, v0
    v_lshrrev_b32 v2, 6, v0
    s_and_b32 s16, s2, 7
    s_lshr_b32 s17, s2, 3
    v_readfirstlane_b32 s18, v2
    s_waitcnt lgkmcnt(0)
    """)
    k.srd(20, 4, MATB)
    gemm_prologue(k, 4)
    k("""
    s_cmp_ge_u32 s16, 2
    s_cbranch_scc1 qkv_kernel_nokvdma
    s_cmp_eq_u32 s16, 0
    s_cselect_b32 s28, s8, s10
    s_cselect_b32 s29, s9, s11
    s_mov_b32 s30, 25600
    s_mov_b32 s31, 0x00020000
    v_lshlrev_b32 v8, 4, v1
    s_lshl_b32 s47, s18, 10
    """)
    k(f"s_add_u32 s48, s47, {KVW}")
    for i in range(7):
        k("s_mov_b32 m0, s48\ns_add_u32 s48, s48, 4096\nbuffer_load_dwordx4 v8, s[28:31], s47 offen lds\ns_add_u32 s47, s47, 4096")
    k.label("nokvdma")
    gemm_lds_addr(k)
    k("""
    v_mov_b32 v208, 0x3f803f80
    v_mov_b32 v209, 0x3f803f80
    v_mov_b32 v210, 0x3f803f80
    v_mov_b32 v211, 0x3f803f80
    """)
    k("s_waitcnt vmcnt(27)")
    k("s_waitcnt vmcnt(0)")
    S = [WF + i for i in range(8)]
    for i in range(8):
        k(f"v_mov_b32 v{S[i]}, 0")
    for d in range(80):
        k(f"v_dot2_f32_bf16 v{S[d&3]}, v{XF+d}, v208, v{S[d&3]}")
        k(f"v_dot2_f32_bf16 v{S[4+(d&3)]}, v{XF+d}, v{XF+d}, v{S[4+(d&3)]}")
    k("s_nop 3")
    k(f"v_add_f32 v212, v{S[0]}, v{S[1]}\nv_add_f32 v213, v{S[2]}, v{S[3]}\nv_add_f32 v212, v212, v213")
    k(f"v_add_f32 v213, v{S[4]}, v{S[5]}\nv_add_f32 v214, v{S[6]}, v{S[7]}\nv_add_f32 v213, v213, v214")
    xor16_32_add(k, 212, 214, 215)
    xor16_32_add(k, 213, 214, 215)
    k(f"""
    v_mul_f32 v212, {f32hex(1/640)}, v212
    v_mul_f32 v213, {f32hex(1/640)}, v213
    v_fma_f32 v213, -v212, v212, v213
    v_max_f32 v213, 0, v213
    v_add_f32 v213, {f32hex(1e-5)}, v213
    v_rsq_f32 v213, v213
    s_nop 0
    v_mul_f32 v212, v212, v213
    """)
    k("s_barrier")
    k("s_cmp_ge_u32 s16, 2\ns_cbranch_scc1 qkv_kernel_loop_nokv")
    gemm_loop(k, 5, 2, True, 208)
    k("s_branch qkv_kernel_epi")
    k.label("loop_nokv")
    gemm_loop(k, 5, 0, True, 208)
    k.label("epi")
    k.srd_off(32, 12, WS_Q, MATB)
    k(f"""
    v_mul_f32 v12, {f32hex(QSCALE)}, v213
    v_mul_f32 v13, {f32hex(QSCALE)}, v212
    v_mul_u32_u24 v14, 1280, v5
    v_lshl_add_u32 v14, v4, 3, v14
    s_mul_i32 s44, s16, 160
    """)
    for t in range(5):
        for r in range(4):
            k(f"v_mul_f32 v{ACC+4*t+r}, v{ACC+4*t+r}, v12\nv_fma_f32 v{ACC+4*t+r}, -v{CS+4*t+r}, v13, v{ACC+4*t+r}")
        k(f"v_cvt_pk_bf16_f32 v{ACC+4*t}, v{ACC+4*t}, v{ACC+4*t+1}\nv_cvt_pk_bf16_f32 v{ACC+4*t+1}, v{ACC+4*t+2}, v{ACC+4*t+3}")
        k(f"buffer_store_dwordx2 {v2(ACC+4*t)}, v14, s[32:35], s44 offen offset:{t*32}")
    k.srd_off(36, 12, WS_KV, 163840)
    k("s_cmp_ge_u32 s16, 2\ns_cbranch_scc1 qkv_kernel_nokv_epi")
    for t in (5, 6):
        for r in range(4):
            k(f"v_mul_f32 v{ACC+4*t+r}, v{ACC+4*t+r}, v213\nv_fma_f32 v{ACC+4*t+r}, -v{CS+4*t+r}, v212, v{ACC+4*t+r}")
        k(f"v_cvt_pk_bf16_f32 v{ACC+4*t}, v{ACC+4*t}, v{ACC+4*t+1}\nv_cvt_pk_bf16_f32 v{ACC+4*t+1}, v{ACC+4*t+2}, v{ACC+4*t+3}")
    k("""
    v_lshrrev_b32 v12, 5, v5
    v_mul_u32_u24 v12, 2560, v12
    v_and_b32 v13, 31, v5
    s_cmp_eq_u32 s16, 0
    s_cbranch_scc0 qkv_kernel_vepi
    """)
    A5, A6 = ACC + 20, ACC + 24
    k(f"""
    v_lshrrev_b32 v14, 1, v4
    v_lshl_add_u32 v14, v14, 9, v12
    v_lshl_add_u32 v14, v13, 4, v14
    v_and_b32 v15, 1, v4
    v_lshl_add_u32 v14, v15, 3, v14
    buffer_store_dwordx2 {v2(A5)}, v14, s[36:39], 0 offen
    v_lshl_add_u32 v14, v13, 3, v12
    v_mov_b32 v15, 0
    v_dot2_f32_bf16 v15, v{A5}, v{A5}, v15
    v_dot2_f32_bf16 v15, v{A5+1}, v{A5+1}, v15
    s_mov_b64 exec, 0xffff
    buffer_store_dwordx2 {v2(A6)}, v14, s[36:39], 0 offen offset:1024
    v_dot2_f32_bf16 v15, v{A6}, v{A6}, v15
    v_dot2_f32_bf16 v15, v{A6+1}, v{A6+1}, v15
    s_mov_b64 exec, -1
    s_nop 3
    """)
    xor16_32_add(k, 15, 214, 215)
    for off in ("0x041F", "0x081F", "0x101F", "0x201F"):
        k(f"ds_swizzle_b32 v214, v15 offset:{off}\ns_waitcnt lgkmcnt(0)\nv_max_f32 v15, v15, v214")
    k.srd_off(40, 12, WS_KM, 512)
    k("""
    s_lshl_b32 s44, s17, 2
    s_add_u32 s44, s44, s18
    s_lshl_b32 s44, s44, 2
    v_mov_b32 v14, 0
    s_mov_b64 exec, 1
    buffer_store_dword v15, v14, s[40:43], s44 offen
    s_mov_b64 exec, -1
    s_branch qkv_kernel_end
    """)
    k.label("vepi")
    k("""
    v_bfe_u32 v14, v5, 4, 1
    v_mul_u32_u24 v14, 640, v14
    v_add_u32 v12, v12, v14
    v_bfe_u32 v14, v5, 2, 1
    v_mul_u32_u24 v14, 320, v14
    v_add_u32 v12, v12, v14
    v_bfe_u32 v14, v5, 3, 1
    v_lshl_add_u32 v12, v14, 3, v12
    v_and_b32 v14, 3, v5
    v_lshl_add_u32 v12, v14, 1, v12
    v_lshl_add_u32 v14, v4, 6, v12
    """)
    k(f"""
    buffer_store_short v{A5}, v14, s[36:39], 0 offen offset:1280
    buffer_store_short_d16_hi v{A5}, v14, s[36:39], 0 offen offset:1296
    buffer_store_short v{A5+1}, v14, s[36:39], 0 offen offset:1312
    buffer_store_short_d16_hi v{A5+1}, v14, s[36:39], 0 offen offset:1328
    s_mov_b64 exec, 0xffff
    buffer_store_short v{A6}, v12, s[36:39], 0 offen offset:{1280+256}
    buffer_store_short_d16_hi v{A6}, v12, s[36:39], 0 offen offset:{1280+272}
    buffer_store_short v{A6+1}, v12, s[36:39], 0 offen offset:{1280+288}
    buffer_store_short_d16_hi v{A6+1}, v12, s[36:39], 0 offen offset:{1280+304}
    s_mov_b64 exec, -1
    s_branch qkv_kernel_end
    """)
    k.label("nokv_epi")
    k("""
    s_cmp_eq_u32 s16, 7
    s_cbranch_scc0 qkv_kernel_end
    s_cmp_eq_u32 s18, 0
    s_cbranch_scc0 qkv_kernel_wsum
    """)
    k.srd_off(40, 12, WS_ST, 32768)
    k("""
    v_mov_b32 v12, 0
    v_mov_b32 v13, 0
    v_mov_b32 v14, 0
    v_mov_b32 v15, 0
    s_lshl_b32 s44, s17, 10
    v_lshlrev_b32 v8, 4, v1
    buffer_store_dwordx4 v[12:15], v8, s[40:43], s44 offen
    s_branch qkv_kernel_end
    """)
    k.label("wsum")
    k("""
    s_cmp_eq_u32 s18, 1
    s_cbranch_scc0 qkv_kernel_end
    s_cmp_eq_u32 s17, 0
    s_cbranch_scc0 qkv_kernel_end
    """)
    k.srd(40, 14, 1280)
    k("""
    v_mul_u32_u24 v8, 20, v1
    buffer_load_dwordx4 v[12:15], v8, s[40:43], 0 offen
    buffer_load_dword v16, v8, s[40:43], 0 offen offset:16
    v_mov_b32 v17, 0
    s_waitcnt vmcnt(0)
    v_dot2_f32_bf16 v17, v12, v208, v17
    v_dot2_f32_bf16 v17, v13, v208, v17
    v_dot2_f32_bf16 v17, v14, v208, v17
    v_dot2_f32_bf16 v17, v15, v208, v17
    v_dot2_f32_bf16 v17, v16, v208, v17
    s_nop 3
    """)
    for off in ("0x041F", "0x081F", "0x101F", "0x201F"):
        k(f"ds_swizzle_b32 v214, v17 offset:{off}\ns_waitcnt lgkmcnt(0)\nv_add_f32 v17, v17, v214")
    xor16_32_add(k, 17, 214, 215)
    k.srd_off(40, 12, WS_SEL, 64)
    k("""
    v_mov_b32 v14, 0
    s_mov_b64 exec, 1
    buffer_store_dword v17, v14, s[40:43], 0 offen offset:32
    s_mov_b64 exec, -1
    """)
    k.label("end")
    k("s_endpgm")
    return k, "grid=(256,1,1) block=(256,1,1) lds=%d" % (KVW + 28 * 1024)

def gen_k2():
    k = K("attn_kernel", 128)
    QF1, QF2 = 8, 12
    SA, SB = 16, 32
    O = 48
    P = 64
    KF = [72, 80]
    VF = [88, 96]
    AK, AK2, AV = 104, 105, 106
    T = 108
    THRESH = 50.0
    k("""
    s_cmp_ge_u32 s2, 256
    s_cbranch_scc1 attn_kernel_end
    s_load_dwordx2 s[12:13], s[0:1], 96
    v_and_b32 v1, 63, v0
    v_lshrrev_b32 v2, 6, v0
    s_nop 0
    v_readfirstlane_b32 s18, v2
    v_and_b32 v3, 31, v1
    v_lshrrev_b32 v4, 5, v1
    s_waitcnt lgkmcnt(0)
    """)
    k.srd_off(20, 12, WS_Q, MATB)
    k.srd_off(24, 12, WS_KV, 163840)
    k.srd_off(28, 12, WS_KM, 512)
    k.srd_off(32, 12, WS_O, MATB)
    k(f"""
    s_lshl_b32 s19, s2, 3
    s_add_u32 s19, s19, s18
    s_mul_i32 s19, s19, 1280
    v_mul_u32_u24 v5, 40, v3
    v_lshl_add_u32 v6, v4, 4, v5
    buffer_load_dwordx4 {v4(QF1)}, v6, s[20:23], s19 offen
    buffer_load_dwordx2 {v2(QF2)}, v5, s[20:23], s19 offen offset:32
    v_lshlrev_b32 v7, 2, v1
    buffer_load_dword v{T}, v7, s[28:31], 0 offen
    buffer_load_dword v{T+1}, v7, s[28:31], 0 offen offset:256
    v_lshlrev_b32 v7, 4, v1
    s_lshl_b32 s44, s18, 10
    """)
    for i in range(20):
        k("s_mov_b32 m0, s44\ns_nop 0\nbuffer_load_dwordx4 v7, s[24:27], s44 offen lds\ns_add_u32 s44, s44, 8192")
    k(f"""
    v_lshlrev_b32 v{AK}, 4, v1
    v_lshlrev_b32 v{AK2}, 3, v3
    v_mul_u32_u24 v{AV}, 320, v4
    v_lshl_add_u32 v{AV}, v3, 4, v{AV}
    s_mov_b32 s40, 0x000fffff
    s_mov_b32 s41, 0x000fffff
    """)
    for b in range(2):
        k(f"v_mov_b32 v{KF[b]+6}, 0x3f803f80\nv_mov_b32 v{KF[b]+7}, 0x00003f80")
    k(f"v_cmp_eq_u32 vcc, 20, v3\nv_mov_b32 v{T+2}, 0x3f803f80\ns_nop 1\nv_cndmask_b32 v{T+2}, 0, v{T+2}, vcc")
    for b in range(2):
        for r in range(8):
            k(f"v_mov_b32 v{VF[b]+r}, v{T+2}")
    for r in range(16):
        k(f"v_mov_b32 v{O+r}, 0")
    k("s_waitcnt vmcnt(20)")
    k(f"""
    v_cmp_eq_u32 vcc, 0, v4
    s_nop 1
    v_cndmask_b32 v{QF2}, 0, v{QF2}, vcc
    v_cndmask_b32 v{QF2+1}, 0, v{QF2+1}, vcc
    v_mov_b32 v{QF2+2}, 0
    v_mov_b32 v{QF2+3}, 0
    v_max_f32 v{T}, v{T}, v{T+1}
    v_mov_b32 v{T+3}, 0
    """)
    for r in range(4):
        k(f"v_dot2_f32_bf16 v{T+3}, v{QF1+r}, v{QF1+r}, v{T+3}")
    for r in range(2):
        k(f"v_dot2_f32_bf16 v{T+3}, v{QF2+r}, v{QF2+r}, v{T+3}")
    for off in ("0x041F", "0x081F", "0x101F", "0x201F", "0x401F"):
        k(f"ds_swizzle_b32 v{T+1}, v{T} offset:{off}\ns_waitcnt lgkmcnt(0)\nv_max_f32 v{T}, v{T}, v{T+1}")
    k(f"""
    v_mov_b32 v{T+1}, v{T}
    v_mov_b32 v{T+2}, v{T}
    v_mov_b32 v{T+4}, v{T+3}
    v_mov_b32 v{T+5}, v{T+3}
    s_nop 1
    v_permlane32_swap_b32 v{T+1}, v{T+2}
    v_permlane32_swap_b32 v{T+4}, v{T+5}
    s_nop 1
    v_max_f32 v{T}, v{T+1}, v{T+2}
    v_add_f32 v{T+3}, v{T+4}, v{T+5}
    v_mul_f32 v{T+3}, v{T+3}, v{T}
    v_sqrt_f32 v{T+3}, v{T+3}
    s_nop 0
    v_mul_f32 v{T+3}, {f32hex(1.01)}, v{T+3}
    v_cmp_nle_f32 vcc, v{T+3}, v{T+6}
    """.replace(f"v_cmp_nle_f32 vcc, v{T+3}, v{T+6}", f"v_mov_b32 v{T+6}, {f32hex(THRESH)}\nv_cmp_nle_f32 vcc, v{T+3}, v{T+6}"))
    k("s_cbranch_vccnz attn_kernel_slow")

    def set_m():
        k(f"""
        v_xor_b32 v{T+3}, 0x80000000, v{T+3}
        v_and_b32 v{T+4}, 0xffff0000, v{T+3}
        v_sub_f32 v{T+5}, v{T+3}, v{T+4}
        v_and_b32 v{T+6}, 0xffff0000, v{T+5}
        v_sub_f32 v{T+5}, v{T+5}, v{T+6}
        v_lshrrev_b32 v{T+4}, 16, v{T+4}
        v_or_b32 v{T+4}, v{T+4}, v{T+6}
        v_lshrrev_b32 v{T+5}, 16, v{T+5}
        v_cmp_eq_u32 vcc, 0, v4
        s_nop 1
        v_cndmask_b32 v{QF2+2}, 0, v{T+4}, vcc
        v_cndmask_b32 v{QF2+3}, 0, v{T+5}, vcc
        """)

    def kreads(b):
        k(f"ds_read_b128 {v4(KF[b])}, v{AK}\nds_read_b64 {v2(KF[b]+4)}, v{AK2} offset:1024")
    def vreads(b, off):
        k(f"s_mov_b64 exec, s[40:41]\nds_read_b128 {v4(VF[b])}, v{AV} offset:{off+1280}\nds_read_b128 {v4(VF[b]+4)}, v{AV} offset:{off+1920}\ns_mov_b64 exec, -1")

    def pipe_start():
        kreads(0)
        k(f"v_add_u32 v{AK}, 2560, v{AK}\nv_add_u32 v{AK2}, 2560, v{AK2}")
        kreads(1)
        k(f"v_add_u32 v{AK}, 2560, v{AK}\nv_add_u32 v{AK2}, 2560, v{AK2}")
        vreads(0, 0)
        k(f"v_add_u32 v{AV}, 2560, v{AV}")
        k("s_waitcnt lgkmcnt(4)")
        k(f"v_mfma_f32_32x32x16_bf16 {v16(SA)}, {v4(KF[0])}, {v4(QF1)}, 0")
        k(f"v_mfma_f32_32x32x16_bf16 {v16(SA)}, {v4(KF[0]+4)}, {v4(QF2)}, {v16(SA)}")

    def iteration(par, last=False):
        Sc, Sn = (SA, SB) if par == 0 else (SB, SA)
        k("s_waitcnt lgkmcnt(0)")
        kreads(par)
        vreads(1 - par, 0)
        k(f"v_mfma_f32_32x32x16_bf16 {v16(Sn)}, {v4(KF[1-par])}, {v4(QF1)}, 0")
        for r in range(0, 4):
            k(f"v_exp_f32 v{Sc+r}, v{Sc+r}")
        k(f"v_mfma_f32_32x32x16_bf16 {v16(Sn)}, {v4(KF[1-par]+4)}, {v4(QF2)}, {v16(Sn)}")
        for r in range(4, 8):
            k(f"v_exp_f32 v{Sc+r}, v{Sc+r}")
        k(f"v_add_u32 v{AK}, 2560, v{AK}")
        for p in range(4):
            k(f"v_cvt_pk_bf16_f32 v{P+p}, v{Sc+2*p}, v{Sc+2*p+1}")
        for r in range(8, 10):
            k(f"v_exp_f32 v{Sc+r}, v{Sc+r}")
        k(f"v_mfma_f32_32x32x16_bf16 {v16(O)}, {v4(VF[par])}, {v4(P)}, {v16(O)}")
        for r in range(10, 16):
            k(f"v_exp_f32 v{Sc+r}, v{Sc+r}")
        k(f"v_add_u32 v{AK2}, 2560, v{AK2}")
        for p in range(4, 8):
            k(f"v_cvt_pk_bf16_f32 v{P+p}, v{Sc+2*p}, v{Sc+2*p+1}")
        k(f"v_add_u32 v{AV}, 2560, v{AV}\ns_nop 0")
        k(f"v_mfma_f32_32x32x16_bf16 {v16(O)}, {v4(VF[par]+4)}, {v4(P+4)}, {v16(O)}")

    def loop(label, npairs):
        k(f"s_mov_b32 s42, {npairs}")
        k.label(label)
        iteration(0)
        iteration(1)
        k(f"s_sub_u32 s42, s42, 1\ns_cmp_lg_u32 s42, 0\ns_cbranch_scc1 attn_kernel_{label}")

    set_m()
    k("s_waitcnt vmcnt(16)\ns_barrier")
    pipe_start()
    loop("l1", 4)
    k("s_waitcnt vmcnt(0)\ns_barrier")
    k("s_branch attn_kernel_rest")
    k.label("slow")
    k("s_waitcnt vmcnt(16)\ns_barrier\ns_waitcnt vmcnt(0)\ns_barrier")
    k(f"v_mov_b32 v{T+3}, 0xff800000\ns_mov_b32 s42, 64")
    k.label("maxloop")
    kreads(0)
    k(f"v_add_u32 v{AK}, 2560, v{AK}\nv_add_u32 v{AK2}, 2560, v{AK2}\ns_waitcnt lgkmcnt(0)")
    k(f"v_mfma_f32_32x32x16_bf16 {v16(SA)}, {v4(KF[0])}, {v4(QF1)}, 0")
    k(f"v_mfma_f32_32x32x16_bf16 {v16(SA)}, {v4(KF[0]+4)}, {v4(QF2)}, {v16(SA)}")
    k("s_nop 15\ns_nop 3")
    for r in range(0, 16, 2):
        k(f"v_max3_f32 v{T+3}, v{SA+r}, v{SA+r+1}, v{T+3}")
    k("s_sub_u32 s42, s42, 1\ns_cmp_lg_u32 s42, 0\ns_cbranch_scc1 attn_kernel_maxloop")
    k(f"""
    v_mov_b32 v{T+4}, v{T+3}
    v_mov_b32 v{T+5}, v{T+3}
    s_nop 1
    v_permlane32_swap_b32 v{T+4}, v{T+5}
    s_nop 1
    v_max_f32 v{T+3}, v{T+4}, v{T+5}
    v_lshlrev_b32 v{AK}, 4, v1
    v_lshlrev_b32 v{AK2}, 3, v3
    """)
    set_m()
    pipe_start()
    loop("l1s", 4)
    k.label("rest")
    loop("l2", 28)
    k("s_nop 15\ns_nop 3")
    k(f"""
    v_mov_b32 v{T}, v{O+8}
    v_mov_b32 v{T+1}, v{O+8}
    s_nop 1
    v_permlane32_swap_b32 v{T}, v{T+1}
    s_nop 1
    v_rcp_f32 v{T+1}, v{T+1}
    s_nop 0
    """)
    for r in range(12):
        k(f"v_mul_f32 v{O+r}, v{O+r}, v{T+1}")
    for p in range(6):
        k(f"v_cvt_pk_bf16_f32 v{P+p}, v{O+2*p}, v{O+2*p+1}")
    k(f"""
    v_lshl_add_u32 v6, v4, 3, v5
    buffer_store_dwordx2 {v2(P)}, v6, s[32:35], s19 offen
    buffer_store_dwordx2 {v2(P+2)}, v6, s[32:35], s19 offen offset:16
    s_mov_b32 exec_hi, 0
    buffer_store_dwordx2 {v2(P+4)}, v6, s[32:35], s19 offen offset:32
    """)
    k.label("end")
    k("s_endpgm")
    return k, "grid=(256,1,1) block=(512,1,1) lds=163840"

def gen_k3():
    k = K("oproj_kernel", 216)
    XR = 124
    WR = 136
    k("""
    s_cmp_ge_u32 s2, 256
    s_cbranch_scc1 oproj_kernel_end
    s_load_dwordx2 s[4:5], s[0:1], 0
    s_load_dwordx2 s[6:7], s[0:1], 32
    s_load_dwordx2 s[12:13], s[0:1], 96
    s_load_dwordx2 s[14:15], s[0:1], 48
    v_and_b32 v1, 63, v0
    v_lshrrev_b32 v2, 6, v0
    s_and_b32 s16, s2, 7
    s_lshr_b32 s17, s2, 3
    v_readfirstlane_b32 s18, v2
    s_waitcnt lgkmcnt(0)
    """)
    k.srd_off(20, 12, WS_O, MATB)
    gemm_prologue(k, 4)
    gemm_lds_addr(k)
    k.srd(28, 4, MATB)
    k.srd(32, 14, 1280)
    k.srd_off(36, 12, WS_H, MATB)
    k.srd_off(40, 12, WS_ST, 32768)
    k("""
    v_mul_u32_u24 v14, 1280, v5
    v_lshl_add_u32 v14, v4, 3, v14
    s_mul_i32 s44, s16, 160
    v_lshlrev_b32 v15, 3, v4
    """)
    for t in range(5):
        k(f"buffer_load_dwordx2 {v2(XR+2*t)}, v14, s[28:31], s44 offen offset:{t*32}")
        k(f"buffer_load_dwordx2 {v2(WR+2*t)}, v15, s[32:35], s44 offen offset:{t*32}")
    k("s_waitcnt vmcnt(0)\ns_barrier")
    gemm_loop(k, 5, 0, False)
    k("v_mov_b32 v208, 0\nv_mov_b32 v209, 0\nv_mov_b32 v210, 0\nv_mov_b32 v211, 0x3f803f80")
    for t in range(5):
        a = ACC + 4 * t
        k(f"v_cvt_pk_bf16_f32 v{a}, v{a}, v{a+1}\nv_cvt_pk_bf16_f32 v{a+1}, v{a+2}, v{a+3}")
        for h in range(2):
            k(f"""
            v_lshlrev_b32 v12, 16, v{a+h}
            v_and_b32 v13, 0xffff0000, v{a+h}
            v_lshlrev_b32 v212, 16, v{XR+2*t+h}
            v_and_b32 v213, 0xffff0000, v{XR+2*t+h}
            v_add_f32 v12, v12, v212
            v_add_f32 v13, v13, v213
            v_cvt_pk_bf16_f32 v{a+h}, v12, v13
            """)
            k(f"v_dot2_f32_bf16 v208, v{a+h}, v211, v208\nv_dot2_f32_bf16 v209, v{a+h}, v{a+h}, v209\nv_dot2_f32_bf16 v210, v{a+h}, v{WR+2*t+h}, v210")
        k(f"buffer_store_dwordx2 {v2(a)}, v14, s[36:39], s44 offen offset:{t*32}")
    k("s_nop 3")
    for r in (208, 209, 210):
        xor16_32_add(k, r, 214, 215)
    k("""
    v_lshlrev_b32 v14, 4, v5
    s_mov_b64 exec, 0xffff
    buffer_atomic_add_f32 v208, v14, s[40:43], 0 offen
    buffer_atomic_add_f32 v209, v14, s[40:43], 0 offen offset:4
    buffer_atomic_add_f32 v210, v14, s[40:43], 0 offen offset:8
    """)
    k.label("end")
    k("s_endpgm")
    return k, "grid=(256,1,1) block=(256,1,1) lds=%d" % WT_BYTES

NFF = 54
def row_stats(k, s0, s1, s2, mean, rstd, r=None, wsum=None):
    k(f"""
    v_mul_f32 v{mean}, {f32hex(1/640)}, v{s0}
    v_mul_f32 v{rstd}, {f32hex(1/640)}, v{s1}
    v_fma_f32 v{rstd}, -v{mean}, v{mean}, v{rstd}
    v_max_f32 v{rstd}, 0, v{rstd}
    v_add_f32 v{rstd}, {f32hex(1e-5)}, v{rstd}
    v_rsq_f32 v{rstd}, v{rstd}
    """)
    if r is not None:
        k(f"v_fma_f32 v{r}, -v{mean}, v{wsum}, v{s2}\nv_mul_f32 v{r}, v{r}, v{rstd}")

def gen_k4():
    k = K("ffna_kernel", 200)
    k(f"""
    s_cmp_ge_u32 s2, {NFF+128}
    s_cbranch_scc1 ffna_kernel_end
    s_load_dwordx4 s[4:7], s[0:1], 56
    s_load_dwordx4 s[8:11], s[0:1], 72
    s_load_dwordx2 s[12:13], s[0:1], 96
    s_waitcnt lgkmcnt(0)
    """)
    k.srd_off(20, 12, WS_H, MATB)
    k.srd_off(24, 12, WS_ST, 32768)
    k(f"s_cmp_lt_u32 s2, {NFF}\ns_cbranch_scc1 ffna_kernel_ffn")
    k.srd(28, 10, MATB)
    k(f"""
    s_sub_u32 s16, s2, {NFF}
    s_mul_i32 s17, s16, 20480
    s_lshl_b32 s18, s16, 8
    v_lshlrev_b32 v1, 4, v0
    """)
    for i in range(5):
        k(f"buffer_load_dwordx4 {v4(16+4*i)}, v1, s[20:23], s17 offen offset:0" if i == 0 else
          f"v_add_u32 v{2+i}, {4096*i}, v1\nbuffer_load_dwordx4 {v4(16+4*i)}, v{2+i}, s[20:23], s17 offen")
    for i in range(5):
        k(f"""
        v_add_u32 v8, {256*i}, v0
        v_mul_u32_u24 v8, 3277, v8
        v_lshrrev_b32 v8, 18, v8
        v_lshlrev_b32 v8, 4, v8
        buffer_load_dwordx2 {v2(40+2*i)}, v8, s[24:27], s18 offen
        """)
    k("s_waitcnt vmcnt(0)")
    for i in range(5):
        row_stats(k, 40 + 2 * i, 41 + 2 * i, None, 52, 53)
        k("s_nop 0\nv_mul_f32 v52, v52, v53")
        for d in range(4):
            r = 16 + 4 * i + d
            k(f"""
            v_lshlrev_b32 v54, 16, v{r}
            v_and_b32 v55, 0xffff0000, v{r}
            v_fma_f32 v56, v54, v53, -v52
            v_fma_f32 v57, v55, v53, -v52
            v_cvt_pk_bf16_f32 v56, v56, v57
            v_lshlrev_b32 v57, 16, v56
            v_and_b32 v56, 0xffff0000, v56
            v_add_f32 v54, v54, v57
            v_add_f32 v55, v55, v56
            v_cvt_pk_bf16_f32 v{r}, v54, v55
            """)
        k(f"buffer_store_dwordx4 {v4(16+4*i)}, v{1 if i == 0 else 2+i}, s[28:31], s17 offen")
    k("s_branch ffna_kernel_end")
    k.label("ffn")
    G, U, D = 16, 56, 96
    k.srd(28, 4, 640 * 3456)
    k.srd(32, 6, 640 * 3456)
    k.srd(36, 8, 1728 * 1280)
    k.srd_off(40, 12, WS_SEL, 64)
    k.srd_off(44, 12, WS_YP, NFF * 2560)
    k("v_lshlrev_b32 v1, 4, v0")
    for i in range(8):
        k(f"v_add_u32 v2, {4096*i}, v1\nbuffer_load_dwordx3 v[{160+4*i}:{162+4*i}], v2, s[24:27], 0 offen")
    k("v_mov_b32 v2, 0\nbuffer_load_dword v192, v2, s[40:43], 0 offen offset:32")
    k("""
    v_and_b32 v3, 3, v0
    v_lshrrev_b32 v4, 2, v0
    v_mul_u32_u24 v5, 3456, v4
    v_lshl_add_u32 v5, v3, 4, v5
    s_lshl_b32 s16, s2, 6
    """)
    for i in range(10):
        k(f"s_add_u32 s17, s16, {i*64*3456}\nbuffer_load_dwordx4 {v4(G+4*i)}, v5, s[28:31], s17 offen\nbuffer_load_dwordx4 {v4(U+4*i)}, v5, s[32:35], s17 offen")
    k("v_lshlrev_b32 v6, 3, v0\ns_mul_i32 s16, s2, 40960\nv_cmp_gt_u32 vcc, 160, v0\nv_mov_b32 v2, 0x40000000\ns_nop 1\nv_cndmask_b32 v6, v2, v6, vcc")
    for j in range(32):
        k(f"s_add_u32 s17, s16, {j*1280}\nbuffer_load_dwordx2 {v2(D+2*j)}, v6, s[36:39], s17 offen")
    k("s_waitcnt vmcnt(52)")
    k("v_mov_b32 v7, 0")
    for i in range(8):
        b = 160 + 4 * i
        row_stats(k, b, b + 1, b + 2, 8, 9, 10, 192)
        k(f"""
        v_ashrrev_i32 v11, 31, v10
        v_or_b32 v11, 0x80000000, v11
        v_xor_b32 v11, v11, v10
        v_and_b32 v11, 0xfffff800, v11
        v_sub_u32 v12, {2047 - 256*i}, v0
        v_or_b32 v11, v11, v12
        v_max_u32 v7, v7, v11
        """)
    for off in ("0x041F", "0x081F", "0x101F", "0x201F", "0x401F"):
        k(f"ds_swizzle_b32 v8, v7 offset:{off}\ns_waitcnt lgkmcnt(0)\nv_max_u32 v7, v7, v8")
    k("""
    v_mov_b32 v8, v7
    v_mov_b32 v9, v7
    s_nop 1
    v_permlane32_swap_b32 v8, v9
    s_nop 1
    v_max_u32 v7, v8, v9
    v_lshrrev_b32 v8, 6, v0
    v_lshlrev_b32 v8, 2, v8
    ds_write_b32 v8, v7
    s_waitcnt lgkmcnt(0)
    s_barrier
    v_mov_b32 v8, 0
    ds_read_b128 v[8:11], v8
    s_waitcnt lgkmcnt(0)
    v_max_u32 v7, v8, v9
    v_max3_u32 v7, v10, v11, v7
    v_and_b32 v7, 0x7ff, v7
    v_sub_u32 v7, 2047, v7
    s_nop 0
    v_readfirstlane_b32 s18, v7
    s_nop 3
    s_lshl_b32 s19, s18, 4
    s_mul_i32 s20, s18, 1280
    """.replace("s_mul_i32 s20, s18, 1280", "s_mul_i32 s50, s18, 1280"))
    k("v_mov_b32 v2, 0\nbuffer_load_dwordx3 v[160:162], v2, s[24:27], s19 offen\nv_lshlrev_b32 v8, 1, v4")
    for i in range(10):
        k(f"buffer_load_ushort v{164+i}, v8, s[20:23], s50 offen offset:{128*i}")
    k("s_waitcnt vmcnt(10)")
    row_stats(k, 160, 161, 162, 8, 9, 10, 192)
    k("s_nop 0\nv_mul_f32 v11, v8, v9\ns_waitcnt vmcnt(0)")
    for i in range(10):
        k(f"v_lshlrev_b32 v{164+i}, 16, v{164+i}\nv_fma_f32 v{164+i}, v{164+i}, v9, -v11\nv_cvt_pk_bf16_f32 v{164+i}, v{164+i}, v{164+i}\nv_lshlrev_b32 v{164+i}, 16, v{164+i}")
    for r in range(16):
        k(f"v_mov_b32 v{176+r}, 0")
    for i in range(10):
        for (src, acc) in ((G, 176), (U, 184)):
            for d in range(4):
                s = src + 4 * i + d
                k(f"v_lshlrev_b32 v12, 16, v{s}\nv_and_b32 v13, 0xffff0000, v{s}\nv_fmac_f32 v{acc+2*d}, v12, v{164+i}\nv_fmac_f32 v{acc+2*d+1}, v13, v{164+i}")
    for off in ("0x101F", "0x201F", "0x401F"):
        for r in range(16):
            k(f"ds_swizzle_b32 v{16+r}, v{176+r} offset:{off}")
        k("s_waitcnt lgkmcnt(0)")
        for r in range(16):
            k(f"v_add_f32 v{176+r}, v{176+r}, v{16+r}")
    for r in range(16):
        k(f"v_mov_b32 v{16+r}, v{176+r}")
    k("s_nop 1")
    for r in range(16):
        k(f"v_permlane32_swap_b32 v{16+r}, v{176+r}")
    k("s_nop 1")
    for r in range(16):
        k(f"v_add_f32 v{176+r}, v{176+r}, v{16+r}")
    k("""
    v_lshrrev_b32 v12, 6, v0
    v_lshlrev_b32 v12, 8, v12
    v_lshl_add_u32 v12, v3, 6, v12
    s_mov_b64 exec, 0xf
    ds_write_b128 v12, v[176:179] offset:64
    ds_write_b128 v12, v[180:183] offset:80
    ds_write_b128 v12, v[184:187] offset:96
    ds_write_b128 v12, v[188:191] offset:112
    s_mov_b64 exec, -1
    s_waitcnt lgkmcnt(0)
    s_barrier
    """)
    k("""
    v_lshrrev_b32 v12, 3, v0
    v_and_b32 v12, 3, v12
    v_and_b32 v13, 7, v0
    v_lshlrev_b32 v12, 6, v12
    v_lshl_add_u32 v12, v13, 2, v12
    """)
    for w in range(4):
        k(f"ds_read_b32 v{16+w}, v12 offset:{64+256*w}\nds_read_b32 v{20+w}, v12 offset:{96+256*w}")
    k(f"""
    s_waitcnt lgkmcnt(0)
    v_add_f32 v16, v16, v17
    v_add_f32 v18, v18, v19
    v_add_f32 v16, v16, v18
    v_add_f32 v20, v20, v21
    v_add_f32 v22, v22, v23
    v_add_f32 v20, v20, v22
    v_cvt_pk_bf16_f32 v16, v16, v20
    v_and_b32 v20, 0xffff0000, v16
    v_lshlrev_b32 v16, 16, v16
    v_mul_f32 v17, {f32hex(-1.4426950408889634)}, v16
    v_exp_f32 v17, v17
    s_nop 0
    v_add_f32 v17, 1.0, v17
    v_rcp_f32 v17, v17
    s_nop 0
    v_mul_f32 v16, v16, v17
    v_cvt_pk_bf16_f32 v16, v16, v16
    v_lshlrev_b32 v16, 16, v16
    v_mul_f32 v16, v16, v20
    v_cvt_pk_bf16_f32 v16, v16, v16
    v_lshlrev_b32 v16, 16, v16
    v_lshlrev_b32 v12, 2, v0
    v_cmp_gt_u32 vcc, 32, v0
    s_and_saveexec_b64 s[48:49], vcc
    ds_write_b32 v12, v16 offset:1152
    s_mov_b64 exec, s[48:49]
    s_waitcnt lgkmcnt(0)
    s_barrier
    v_mov_b32 v12, 0
    """)
    for q in range(8):
        k(f"ds_read_b128 {v4(16+4*q)}, v12 offset:{1152+16*q}")
    k("v_mov_b32 v48, 0\nv_mov_b32 v49, 0\nv_mov_b32 v50, 0\nv_mov_b32 v51, 0\ns_waitcnt lgkmcnt(0)")
    for j in range(32):
        k(f"""
        v_lshlrev_b32 v12, 16, v{D+2*j}
        v_and_b32 v13, 0xffff0000, v{D+2*j}
        v_lshlrev_b32 v14, 16, v{D+2*j+1}
        v_and_b32 v15, 0xffff0000, v{D+2*j+1}
        v_fmac_f32 v48, v12, v{16+j}
        v_fmac_f32 v49, v13, v{16+j}
        v_fmac_f32 v50, v14, v{16+j}
        v_fmac_f32 v51, v15, v{16+j}
        """)
    k("""
    s_mul_i32 s16, s2, 2560
    v_cmp_gt_u32 vcc, 160, v0
    s_and_saveexec_b64 s[48:49], vcc
    buffer_store_dwordx4 v[48:51], v1, s[44:47], s16 offen
    s_mov_b64 exec, s[48:49]
    s_cmp_eq_u32 s2, 0
    s_cbranch_scc0 ffna_kernel_end
    """)
    k("""
    v_mov_b32 v12, v7
    v_mov_b32 v13, v10
    v_mov_b32 v14, v8
    v_mov_b32 v15, v9
    v_mov_b32 v2, 0
    v_cmp_eq_u32 vcc, 0, v0
    s_and_saveexec_b64 s[48:49], vcc
    buffer_store_dwordx4 v[12:15], v2, s[40:43], 0 offen
    """)
    k.label("end")
    k("s_endpgm")
    return k, f"grid=({NFF+128},1,1) block=(256,1,1) lds=2048"

def gen_k5():
    k = K("ffnb_kernel", 96)
    k(f"""
    s_cmp_ge_u32 s2, 10
    s_cbranch_scc1 ffnb_kernel_end
    s_load_dwordx2 s[10:11], s[0:1], 80
    s_load_dwordx2 s[12:13], s[0:1], 96
    s_waitcnt lgkmcnt(0)
    """)
    k.srd_off(20, 12, WS_H, MATB)
    k.srd(28, 10, MATB)
    k.srd_off(40, 12, WS_SEL, 64)
    k.srd_off(44, 12, WS_YP, NFF * 2560)
    k("""
    v_mov_b32 v2, 0
    buffer_load_dwordx4 v[4:7], v2, s[40:43], 0 offen
    s_lshl_b32 s16, s2, 8
    v_lshlrev_b32 v1, 2, v0
    """)
    for f in range(NFF):
        k(f"s_add_u32 s17, s16, {f*2560}\nbuffer_load_dword v{16+f}, v1, s[44:47], s17 offen")
    k(f"""
    s_waitcnt vmcnt({NFF})
    v_readfirstlane_b32 s18, v4
    s_nop 3
    s_mul_i32 s18, s18, 1280
    s_lshl_b32 s16, s2, 7
    s_add_u32 s18, s18, s16
    v_lshlrev_b32 v3, 1, v0
    buffer_load_ushort v8, v3, s[20:23], s18 offen
    v_cvt_pk_bf16_f32 v5, v5, v5
    v_lshlrev_b32 v5, 16, v5
    v_mul_f32 v9, {f32hex(-1.4426950408889634)}, v5
    v_exp_f32 v9, v9
    s_nop 0
    v_add_f32 v9, 1.0, v9
    v_rcp_f32 v9, v9
    s_nop 0
    v_cvt_pk_bf16_f32 v9, v9, v9
    v_lshlrev_b32 v9, 16, v9
    s_waitcnt vmcnt(0)
    """)
    for f in range(1, NFF):
        k(f"v_add_f32 v16, v16, v{16+f}")
    k("""
    v_cvt_pk_bf16_f32 v16, v16, v16
    v_lshlrev_b32 v16, 16, v16
    v_mul_f32 v16, v16, v9
    v_cvt_pk_bf16_f32 v16, v16, v16
    v_lshlrev_b32 v16, 16, v16
    v_lshlrev_b32 v8, 16, v8
    v_sub_f32 v10, v8, v6
    v_mul_f32 v10, v10, v7
    v_cvt_pk_bf16_f32 v10, v10, v10
    v_lshlrev_b32 v10, 16, v10
    v_add_f32 v10, v10, v16
    v_cvt_pk_bf16_f32 v10, v10, v10
    v_lshlrev_b32 v10, 16, v10
    v_add_f32 v10, v10, v8
    v_cvt_pk_bf16_f32 v10, v10, v10
    buffer_store_short v10, v3, s[28:31], s18 offen
    """)
    k.label("end")
    k("s_endpgm")
    return k, "grid=(10,1,1) block=(64,1,1) lds=0"

def main():
    ks = [gen_k1(), gen_k2(), gen_k3(), gen_k4(), gen_k5()]
    out = "; generated by dev/gen.py (hand-written generator)\n"
    for k, l in ks:
        out += f"; @launch kernel={k.name} {l}\n"
    out += '.amdgcn_target "amdgcn-amd-amdhsa--gfx950"\n.text\n'
    for k, l in ks:
        out += k.text()
    out += '.section .rodata,"a"\n'
    for k, l in ks:
        out += ".p2align 6\n" + k.desc()
    path = sys.argv[1] if len(sys.argv) > 1 else f"cdna_kernels/{NAME}.s"
    open(path, "w").write(out)
    print("wrote", path, len(out))

main()
```

```python
import sys, struct, os
STAMP = os.environ.get("STAMP", "0") == "1"
NAME = "sequential_preLN__grouped_kv_mqa__moe_arch_mod__prompt"
WS_Q, WS_KV, WS_O, WS_H, WS_ST, WS_KM, WS_YP, WS_SEL = 0, 0x400000, 0x800000, 0xC00000, 0x1000000, 0x1100000, 0x1200000, 0x1300000
WS_FW, WS_WO = 0x1400000, 0x1900000
MATB = 2048 * 1280
QSCALE = (20 ** -0.5) * 1.4426950408889634
NFF = 108

def f32hex(x):
    return "0x%08x" % struct.unpack("<I", struct.pack("<f", x))[0]

class K:
    def __init__(self, name, vgpr, sgpr=96):
        self.name, self.vgpr, self.sgpr = name, vgpr, sgpr
        self.lines = []
        self.nst = 0
    def __call__(self, s):
        for l in s.strip().split("\n"):
            if l.strip():
                self.lines.append("    " + l.strip())
    def label(self, s):
        self.lines.append(f"{self.name}_{s}:")
    def srd(self, d, b, size):
        self(f"s_mov_b32 s{d}, s{b}\ns_mov_b32 s{d+1}, s{b+1}\ns_mov_b32 s{d+2}, {size}\ns_mov_b32 s{d+3}, 0x00020000")
    def srd_off(self, d, b, off, size):
        self(f"s_add_u32 s{d}, s{b}, {off}\ns_addc_u32 s{d+1}, s{b+1}, 0\ns_mov_b32 s{d+2}, {size}\ns_mov_b32 s{d+3}, 0x00020000")
    def stamp(self):
        if not STAMP: return
        i = self.nst; self.nst += 1
        self(f"s_memtime s[{60+2*i}:{61+2*i}]")
    def finish(self, kid, wsreg=12):
        self.label("end")
        self.stamp()
        if STAMP:
            self(f"s_waitcnt lgkmcnt(0)\ns_mov_b64 exec, 1")
            self.srd_off(92, wsreg, 0x2000000 + kid * 0x100000, 0x100000)
            self("v_lshrrev_b32 v1, 6, v0\ns_lshl_b32 s90, s2, 4\nv_add_u32 v1, s90, v1\nv_lshlrev_b32 v1, 6, v1")
            for i in range(self.nst):
                self(f"v_mov_b32 v2, s{60+2*i}\nbuffer_store_dword v2, v1, s[92:95], 0 offen offset:{4*i}")
        self.label("exit")
        self("s_endpgm")
    def text(self):
        return (f".globl {self.name}\n.p2align 8\n.type {self.name},@function\n{self.name}:\n" + "\n".join(self.lines) + "\n")
    def desc(self):
        acc = (self.vgpr + 3) // 4 * 4
        return (f".amdhsa_kernel {self.name}\n  .amdhsa_next_free_vgpr {self.vgpr}\n  .amdhsa_next_free_sgpr {self.sgpr}\n"
                f"  .amdhsa_accum_offset {acc}\n  .amdhsa_group_segment_fixed_size 0\n  .amdhsa_kernarg_size 104\n"
                f"  .amdhsa_user_sgpr_count 2\n  .amdhsa_user_sgpr_kernarg_segment_ptr 1\n  .amdhsa_system_sgpr_workgroup_id_x 1\n"
                f".end_amdhsa_kernel\n")

def v4(b): return f"v[{b}:{b+3}]"
def v2(b): return f"v[{b}:{b+1}]"
def v16(b): return f"v[{b}:{b+15}]"

def xor16_32_add(k, v, t0, t1):
    k(f"ds_swizzle_b32 v{t0}, v{v} offset:0x401F\ns_waitcnt lgkmcnt(0)\nv_add_f32 v{v}, v{v}, v{t0}")
    k(f"v_mov_b32 v{t0}, v{v}\nv_mov_b32 v{t1}, v{v}\ns_nop 1\nv_permlane32_swap_b32 v{t0}, v{t1}\ns_nop 1\nv_add_f32 v{v}, v{t0}, v{t1}")

SLOT = 41984
A_OFF, W_OFF, KV_OFF = 0, 16384, 36864
GEMM_LDS = 3 * SLOT
XFB, VA_SRC, VW_SRC, VKV_SRC, VA_RD, VW_RD, VKV_RD, ST, ONES, ACC, CS, WF, TMP = 16, 24, 26, 29, 30, 34, 35, 36, 44, 48, 64, 80, 112

def gemm_ids(k):
    k("""
    v_and_b32 v1, 63, v0
    v_lshrrev_b32 v2, 6, v0
    s_lshr_b32 s16, s2, 5
    s_and_b32 s17, s2, 7
    s_lshl_b32 s17, s17, 2
    s_bfe_u32 s44, s2, 0x20003
    s_add_u32 s17, s17, s44
    v_readfirstlane_b32 s18, v2
    s_nop 3
    s_and_b32 s19, s18, 3
    s_lshr_b32 s53, s18, 2
    """)

def gemm_setup(k, w_linear):
    k("""
    v_and_b32 v3, 15, v1
    v_lshrrev_b32 v4, 4, v1
    s_lshl_b32 s45, s17, 6
    s_lshl_b32 s46, s19, 4
    s_add_u32 s46, s45, s46
    v_add_u32 v5, s46, v3
    s_lshl_b32 s46, s18, 3
    """)
    for a in range(2):
        k(f"""
        v_add_u32 v6, {4*a}, v4
        v_add_u32 v6, s46, v6
        v_and_b32 v7, 15, v6
        v_xor_b32 v7, v7, v3
        v_add_u32 v6, s45, v6
        v_mul_u32_u24 v6, 1280, v6
        v_lshl_add_u32 v{VA_SRC+a}, v7, 4, v6
        """)
    k("""
    s_mul_i32 s46, s19, 3
    s_lshl_b32 s47, s19, 1
    s_add_u32 s47, s47, 12
    s_cmp_eq_u32 s53, 0
    s_cselect_b32 s54, s46, s47
    s_lshl_b32 s46, s54, 6
    """)
    for j in range(3):
        if w_linear:
            k(f"v_add_u32 v6, s46, v1\nv_add_u32 v6, {64*j}, v6\nv_lshlrev_b32 v{VW_SRC+j}, 4, v6")
        else:
            k(f"""
            v_add_u32 v6, s46, v1
            v_add_u32 v6, {64*j}, v6
            v_mul_u32_u24 v7, 6554, v6
            v_lshrrev_b32 v7, 16, v7
            v_mul_u32_u24 v8, 10, v7
            v_sub_u32 v8, v6, v8
            v_mul_u32_u24 v7, 1280, v7
            v_lshl_add_u32 v{VW_SRC+j}, v8, 4, v7
            """)
    k(f"""
    s_mul_i32 s46, s19, 1280
    v_lshlrev_b32 v6, 4, v1
    v_add_u32 v{VKV_SRC}, s46, v6
    s_lshl_b32 s46, s19, 12
    v_lshlrev_b32 v6, 8, v3
    v_add_u32 v6, s46, v6
    v_and_b32 v7, 3, v3
    v_xor_b32 v7, v7, v4
    v_lshl_add_u32 v6, v7, 4, v6
    v_and_b32 v7, 12, v3
    """)
    for ks in range(4):
        k(f"v_xor_b32 v8, {4*ks}, v7\nv_lshl_add_u32 v{VA_RD+ks}, v8, 4, v6")
    k(f"""
    v_lshrrev_b32 v12, 2, v1
    v_and_b32 v12, 3, v12
    v_lshl_add_u32 v12, v4, 3, v12
    v_and_b32 v13, 3, v1
    v_mul_u32_u24 v{VW_RD}, 160, v12
    v_lshl_add_u32 v{VW_RD}, v13, 3, v{VW_RD}
    v_add_u32 v{VW_RD}, {W_OFF}, v{VW_RD}
    v_mul_u32_u24 v{VKV_RD}, 40, v12
    v_lshl_add_u32 v{VKV_RD}, v13, 3, v{VKV_RD}
    v_add_u32 v{VKV_RD}, {KV_OFF}, v{VKV_RD}
    s_lshl_b32 s50, s18, 11
    s_lshl_b32 s51, s54, 10
    s_add_u32 s51, s51, {W_OFF}
    s_mul_i32 s52, s19, 1280
    s_add_u32 s52, s52, {KV_OFF}
    """)

def gemm_issue(k, c, nw, nkv, wchunk):
    slot = (c % 3) * SLOT
    k(f"s_mov_b32 s47, {c*256}")
    for a in range(2):
        k(f"s_add_u32 s48, s50, {slot + a*1024}\ns_mov_b32 m0, s48\ns_nop 0\nbuffer_load_dwordx4 v{VA_SRC+a}, s[20:23], s47 offen lds")
    k(f"s_mov_b32 s47, {c*wchunk}")
    for j in range(nw):
        k(f"s_add_u32 s48, s51, {slot + j*1024}\ns_mov_b32 m0, s48\ns_nop 0\nbuffer_load_dwordx4 v{VW_SRC+j}, s[24:27], s47 offen lds")
    if nkv:
        k(f"s_mov_b32 s47, {c*5120}")
        k(f"s_add_u32 s48, s52, {slot}\ns_mov_b32 m0, s48\ns_nop 0\nbuffer_load_dwordx4 v{VKV_SRC}, s[28:31], s47 offen lds")
        k(f"s_mov_b64 exec, 0xffff\nbuffer_load_dwordx4 v{VKV_SRC}, s[28:31], s47 offen offset:1024 lds\ns_mov_b64 exec, -1")

def gemm_main(k, tiles, nw, nkv, colsum, stats, wchunk):
    n = 2 + nw + (2 if nkv else 0)
    nr = 2 * len(tiles) + 1
    def reads(ks, buf):
        k(f"ds_read_b128 {v4(XFB+4*buf)}, v{VA_RD+ks}")
        for u, t in enumerate(tiles):
            dst = WF + buf * 16 + u * 4
            for h in range(2):
                if t < 5:
                    k(f"ds_read_b64_tr_b16 {v2(dst+2*h)}, v{VW_RD} offset:{ks*5120 + t*32 + h*640}")
                else:
                    k(f"ds_read_b64_tr_b16 {v2(dst+2*h)}, v{VKV_RD} offset:{ks*1280 + (t-5)*32 + h*160}")
    for c in range(3):
        gemm_issue(k, c, nw, nkv, wchunk)
    if stats:
        for i in range(8):
            k(f"v_mov_b32 v{ST+i}, 0")
    k.stamp()
    for c in range(5):
        k(f"s_waitcnt vmcnt({[2*n, n, n, n, 0][c]})\ns_barrier")
        k.stamp()
        if 1 <= c <= 2:
            gemm_issue(k, c + 2, nw, nkv, wchunk)
        reads(0, 0)
        for ks in range(4):
            if ks < 3:
                reads(ks + 1, (ks + 1) & 1)
                k(f"s_waitcnt lgkmcnt({nr})")
            else:
                k("s_waitcnt lgkmcnt(0)")
                if c < 4:
                    d = SLOT if (c % 3) != 2 else -2 * SLOT
                    for r in (VA_RD, VA_RD + 1, VA_RD + 2, VA_RD + 3, VW_RD, VKV_RD):
                        k(f"v_add_u32 v{r}, {d & 0xffffffff}, v{r}")
            first = (c == 0 and ks == 0)
            xf = XFB + 4 * (ks & 1)
            nd = 0
            for u, t in enumerate(tiles):
                wf = WF + (ks & 1) * 16 + u * 4
                cc = "0" if first else v4(ACC + 4 * u)
                k(f"v_mfma_f32_16x16x32_bf16 {v4(ACC+4*u)}, {v4(wf)}, {v4(xf)}, {cc}")
                if colsum:
                    cc = "0" if first else v4(CS + 4 * u)
                    k(f"v_mfma_f32_16x16x32_bf16 {v4(CS+4*u)}, {v4(wf)}, {v4(ONES)}, {cc}")
                if stats:
                    todo = 2 if u < len(tiles) - 1 else 4 - nd
                    for _ in range(todo):
                        if nd < 4:
                            k(f"v_dot2_f32_bf16 v{ST+nd}, v{xf+nd}, v{ONES}, v{ST+nd}")
                            k(f"v_dot2_f32_bf16 v{ST+4+nd}, v{xf+nd}, v{xf+nd}, v{ST+4+nd}")
                            nd += 1
    k("s_nop 7\ns_nop 3")

def gen_k1():
    k = K("qkv_kernel", 128)
    R0, R1 = TMP, TMP + 1
    k("""
    s_cmp_ge_u32 s2, 256
    s_cbranch_scc1 qkv_kernel_exit
    s_load_dwordx4 s[4:7], s[0:1], 0
    s_load_dwordx4 s[8:11], s[0:1], 16
    s_load_dwordx2 s[12:13], s[0:1], 96
    s_load_dwordx2 s[14:15], s[0:1], 48
    """)
    gemm_ids(k)
    k("s_waitcnt lgkmcnt(0)")
    k.stamp()
    k.srd(20, 4, MATB)
    k("""
    s_mul_i32 s44, s16, 160
    s_add_u32 s24, s6, s44
    s_addc_u32 s25, s7, 0
    s_sub_u32 s26, 819200, s44
    s_mov_b32 s27, 0x00020000
    s_cmp_eq_u32 s16, 0
    s_cselect_b32 s28, s8, s10
    s_cselect_b32 s29, s9, s11
    s_mov_b32 s30, 25600
    s_mov_b32 s31, 0x00020000
    """)
    gemm_setup(k, False)
    for i in range(4):
        k(f"v_mov_b32 v{ONES+i}, 0x3f803f80")
    k.srd_off(32, 12, WS_Q, MATB)
    k.srd_off(36, 12, WS_KV, 163840)
    def stats_fin():
        k(f"v_add_f32 v{R0}, v{ST}, v{ST+1}\nv_add_f32 v{R1}, v{ST+2}, v{ST+3}\nv_add_f32 v{R0}, v{R0}, v{R1}")
        k(f"v_add_f32 v{R1}, v{ST+4}, v{ST+5}\nv_add_f32 v{TMP+2}, v{ST+6}, v{ST+7}\nv_add_f32 v{R1}, v{R1}, v{TMP+2}")
        xor16_32_add(k, R0, TMP + 2, TMP + 3)
        xor16_32_add(k, R1, TMP + 2, TMP + 3)
        k(f"""
        v_mul_f32 v{R0}, {f32hex(1/640)}, v{R0}
        v_mul_f32 v{R1}, {f32hex(1/640)}, v{R1}
        v_fma_f32 v{R1}, -v{R0}, v{R0}, v{R1}
        v_max_f32 v{R1}, 0, v{R1}
        v_add_f32 v{R1}, {f32hex(1e-5)}, v{R1}
        v_rsq_f32 v{R1}, v{R1}
        s_nop 0
        v_mul_f32 v{R0}, v{R0}, v{R1}
        v_mul_f32 v12, {f32hex(QSCALE)}, v{R1}
        v_mul_f32 v13, {f32hex(QSCALE)}, v{R0}
        v_mul_u32_u24 v14, 1280, v5
        v_lshl_add_u32 v14, v4, 3, v14
        s_mul_i32 s44, s16, 160
        """)
    def q_epi(tiles):
        for u, t in enumerate(tiles):
            a = ACC + 4 * u
            for r in range(4):
                k(f"v_mul_f32 v{a+r}, v{a+r}, v12\nv_fma_f32 v{a+r}, -v{CS+4*u+r}, v13, v{a+r}")
            k(f"v_cvt_pk_bf16_f32 v{a}, v{a}, v{a+1}\nv_cvt_pk_bf16_f32 v{a+1}, v{a+2}, v{a+3}")
            k(f"buffer_store_dwordx2 {v2(a)}, v14, s[32:35], s44 offen offset:{t*32}")
    k("s_cmp_eq_u32 s53, 0\ns_cbranch_scc0 qkv_kernel_cw1")
    n0 = k.nst
    gemm_main(k, [0, 1, 2], 3, 0, True, True, 128 * 1280)
    k.stamp()
    stats_fin(); q_epi([0, 1, 2])
    k("""
    s_cmp_eq_u32 s16, 7
    s_cbranch_scc0 qkv_kernel_end
    s_cmp_eq_u32 s18, 0
    s_cbranch_scc0 qkv_kernel_wsum
    """)
    k.srd_off(40, 12, WS_ST, 32768)
    k("""
    v_mov_b32 v12, 0
    v_mov_b32 v13, 0
    v_mov_b32 v14, 0
    v_mov_b32 v15, 0
    s_lshl_b32 s44, s17, 10
    v_lshlrev_b32 v8, 4, v1
    buffer_store_dwordx4 v[12:15], v8, s[40:43], s44 offen
    s_branch qkv_kernel_end
    """)
    k.label("wsum")
    k("""
    s_cmp_eq_u32 s18, 1
    s_cbranch_scc0 qkv_kernel_end
    s_cmp_eq_u32 s17, 0
    s_cbranch_scc0 qkv_kernel_end
    """)
    k.srd(40, 14, 1280)
    k(f"""
    v_mul_u32_u24 v8, 20, v1
    buffer_load_dwordx4 v[12:15], v8, s[40:43], 0 offen
    buffer_load_dword v16, v8, s[40:43], 0 offen offset:16
    v_mov_b32 v17, 0
    s_waitcnt vmcnt(0)
    v_dot2_f32_bf16 v17, v12, v{ONES}, v17
    v_dot2_f32_bf16 v17, v13, v{ONES}, v17
    v_dot2_f32_bf16 v17, v14, v{ONES}, v17
    v_dot2_f32_bf16 v17, v15, v{ONES}, v17
    v_dot2_f32_bf16 v17, v16, v{ONES}, v17
    s_nop 3
    """)
    for off in ("0x041F", "0x081F", "0x101F", "0x201F"):
        k(f"ds_swizzle_b32 v18, v17 offset:{off}\ns_waitcnt lgkmcnt(0)\nv_add_f32 v17, v17, v18")
    xor16_32_add(k, 17, 18, 19)
    k.srd_off(40, 12, WS_SEL, 64)
    k("""
    v_mov_b32 v14, 0
    s_mov_b64 exec, 1
    buffer_store_dword v17, v14, s[40:43], 0 offen offset:32
    s_mov_b64 exec, -1
    s_branch qkv_kernel_end
    """)
    k.label("cw1")
    k("s_cmp_ge_u32 s16, 2\ns_cbranch_scc0 qkv_kernel_cw1kv")
    k.nst = n0
    gemm_main(k, [3, 4], 2, 0, True, True, 128 * 1280)
    k.stamp()
    stats_fin(); q_epi([3, 4])
    k("s_branch qkv_kernel_end")
    k.label("cw1kv")
    k.nst = n0
    gemm_main(k, [3, 4, 5, 6], 2, 2, True, True, 128 * 1280)
    k.stamp()
    stats_fin(); q_epi([3, 4])
    A5, A6 = ACC + 8, ACC + 12
    for u in (2, 3):
        a = ACC + 4 * u
        for r in range(4):
            k(f"v_mul_f32 v{a+r}, v{a+r}, v{R1}\nv_fma_f32 v{a+r}, -v{CS+4*u+r}, v{R0}, v{a+r}")
        k(f"v_cvt_pk_bf16_f32 v{a}, v{a}, v{a+1}\nv_cvt_pk_bf16_f32 v{a+1}, v{a+2}, v{a+3}")
    k("""
    v_lshrrev_b32 v12, 5, v5
    v_mul_u32_u24 v12, 2560, v12
    v_and_b32 v13, 31, v5
    s_cmp_eq_u32 s16, 0
    s_cbranch_scc0 qkv_kernel_vepi
    """)
    k(f"""
    v_lshrrev_b32 v14, 1, v4
    v_lshl_add_u32 v14, v14, 9, v12
    v_lshl_add_u32 v14, v13, 4, v14
    v_and_b32 v15, 1, v4
    v_lshl_add_u32 v14, v15, 3, v14
    buffer_store_dwordx2 {v2(A5)}, v14, s[36:39], 0 offen
    v_lshl_add_u32 v14, v13, 3, v12
    v_mov_b32 v15, 0
    v_dot2_f32_bf16 v15, v{A5}, v{A5}, v15
    v_dot2_f32_bf16 v15, v{A5+1}, v{A5+1}, v15
    s_mov_b64 exec, 0xffff
    buffer_store_dwordx2 {v2(A6)}, v14, s[36:39], 0 offen offset:1024
    v_dot2_f32_bf16 v15, v{A6}, v{A6}, v15
    v_dot2_f32_bf16 v15, v{A6+1}, v{A6+1}, v15
    s_mov_b64 exec, -1
    s_nop 3
    """)
    xor16_32_add(k, 15, TMP + 2, TMP + 3)
    for off in ("0x041F", "0x081F", "0x101F", "0x201F"):
        k(f"ds_swizzle_b32 v{TMP+2}, v15 offset:{off}\ns_waitcnt lgkmcnt(0)\nv_max_f32 v15, v15, v{TMP+2}")
    k.srd_off(40, 12, WS_KM, 512)
    k("""
    s_lshl_b32 s44, s17, 2
    s_add_u32 s44, s44, s19
    s_lshl_b32 s44, s44, 2
    v_mov_b32 v14, 0
    s_mov_b64 exec, 1
    buffer_store_dword v15, v14, s[40:43], s44 offen
    s_mov_b64 exec, -1
    s_branch qkv_kernel_end
    """)
    k.label("vepi")
    k("""
    v_bfe_u32 v14, v5, 4, 1
    v_mul_u32_u24 v14, 640, v14
    v_add_u32 v12, v12, v14
    v_bfe_u32 v14, v5, 2, 1
    v_mul_u32_u24 v14, 320, v14
    v_add_u32 v12, v12, v14
    v_bfe_u32 v14, v5, 3, 1
    v_lshl_add_u32 v12, v14, 3, v12
    v_and_b32 v14, 3, v5
    v_lshl_add_u32 v12, v14, 1, v12
    v_lshl_add_u32 v14, v4, 6, v12
    """)
    k(f"""
    buffer_store_short v{A5}, v14, s[36:39], 0 offen offset:1280
    buffer_store_short_d16_hi v{A5}, v14, s[36:39], 0 offen offset:1296
    buffer_store_short v{A5+1}, v14, s[36:39], 0 offen offset:1312
    buffer_store_short_d16_hi v{A5+1}, v14, s[36:39], 0 offen offset:1328
    s_mov_b64 exec, 0xffff
    buffer_store_short v{A6}, v12, s[36:39], 0 offen offset:{1280+256}
    buffer_store_short_d16_hi v{A6}, v12, s[36:39], 0 offen offset:{1280+272}
    buffer_store_short v{A6+1}, v12, s[36:39], 0 offen offset:{1280+288}
    buffer_store_short_d16_hi v{A6+1}, v12, s[36:39], 0 offen offset:{1280+304}
    s_mov_b64 exec, -1
    """)
    k.finish(0)
    return k, "grid=(256,1,1) block=(512,1,1) lds=%d" % GEMM_LDS

def gen_k2():
    k = K("attn_kernel", 160)
    QF1, QF2, SA, SB, O, P = 8, 12, 16, 32, 48, 64
    KF = [72, 80]; VF = [88, 96]
    AK, AK2, AV = 104, 105, 106
    T = 108
    CP, CPD = 128, 148
    THRESH = 50.0
    k("""
    s_cmp_ge_u32 s2, 256
    s_cbranch_scc1 attn_kernel_exit
    s_load_dwordx2 s[12:13], s[0:1], 96
    s_load_dwordx2 s[4:5], s[0:1], 32
    s_load_dwordx4 s[8:11], s[0:1], 56
    v_and_b32 v1, 63, v0
    v_lshrrev_b32 v2, 6, v0
    s_nop 0
    v_readfirstlane_b32 s18, v2
    v_and_b32 v3, 31, v1
    v_lshrrev_b32 v4, 5, v1
    s_waitcnt lgkmcnt(0)
    """)
    k.stamp()
    k.srd_off(20, 12, WS_Q, MATB)
    k.srd_off(24, 12, WS_KV, 163840)
    k.srd_off(28, 12, WS_KM, 512)
    k.srd_off(32, 12, WS_O, MATB)
    k(f"""
    s_and_b32 s19, s2, 7
    s_lshl_b32 s19, s19, 8
    s_lshr_b32 s44, s2, 3
    s_lshl_b32 s44, s44, 3
    s_add_u32 s19, s19, s44
    s_add_u32 s19, s19, s18
    s_mul_i32 s19, s19, 1280
    v_mul_u32_u24 v5, 40, v3
    v_lshl_add_u32 v6, v4, 4, v5
    buffer_load_dwordx4 {v4(QF1)}, v6, s[20:23], s19 offen
    buffer_load_dwordx2 {v2(QF2)}, v5, s[20:23], s19 offen offset:32
    v_lshlrev_b32 v7, 2, v1
    buffer_load_dword v{T}, v7, s[28:31], 0 offen
    buffer_load_dword v{T+1}, v7, s[28:31], 0 offen offset:256
    v_lshlrev_b32 v7, 4, v1
    s_lshl_b32 s44, s18, 10
    """)
    def dma():
        k("s_mov_b32 m0, s44\ns_nop 0\nbuffer_load_dwordx4 v7, s[24:27], s44 offen lds\ns_add_u32 s44, s44, 8192")
    for i in range(4):
        dma()
    k(f"""
    v_lshlrev_b32 v{AK}, 4, v1
    v_lshlrev_b32 v{AK2}, 3, v3
    v_mul_u32_u24 v{AV}, 320, v4
    v_lshl_add_u32 v{AV}, v3, 4, v{AV}
    s_mov_b32 s40, 0x000fffff
    s_mov_b32 s41, 0x000fffff
    """)
    for b in range(2):
        k(f"v_mov_b32 v{KF[b]+6}, 0x3f803f80\nv_mov_b32 v{KF[b]+7}, 0x00003f80")
    k(f"v_cmp_eq_u32 vcc, 20, v3\nv_mov_b32 v{T+2}, 0x3f803f80\ns_nop 1\nv_cndmask_b32 v{T+2}, 0, v{T+2}, vcc")
    for b in range(2):
        for r in range(8):
            k(f"v_mov_b32 v{VF[b]+r}, v{T+2}")
    for r in range(16):
        k(f"v_mov_b32 v{O+r}, 0")
    for r in range(4, 8):
        k(f"v_mov_b32 v{P+r}, 0")
    k(f"""
    s_lshl_b32 s45, s2, 3
    s_add_u32 s45, s45, s18
    s_lshl_b32 s45, s45, 6
    v_add_u32 v{T+8}, s45, v1
    s_mov_b32 s46, 0x12F684C
    s_mov_b32 s47, 0x3333334
    s_mov_b32 s48, 0x1999999A
    v_mov_b32 v{T+9}, 0x7fffffff
    """)
    for rnd in range(2):
        k(f"""
        v_add_u32 v{T+10}, {131072*rnd}, v{T+8}
        v_mul_hi_u32 v{T+11}, v{T+10}, s46
        v_mul_u32_u24 v{T+12}, 216, v{T+11}
        v_sub_u32 v{T+12}, v{T+10}, v{T+12}
        v_lshrrev_b32 v{T+13}, 1, v{T+12}
        v_mul_u32_u24 v{T+13}, 40960, v{T+13}
        v_lshl_add_u32 v{T+13}, v{T+11}, 5, v{T+13}
        v_and_b32 v{T+12}, 1, v{T+12}
        v_lshl_add_u32 v{T+13}, v{T+12}, 4, v{T+13}
        v_cmp_gt_u32 vcc, 138240, v{T+10}
        s_nop 1
        v_cndmask_b32 v{CPD+rnd}, v{T+9}, v{T+13}, vcc
        """)
    k(f"""
    v_mul_hi_u32 v{T+11}, v{T+8}, s47
    v_mul_u32_u24 v{T+12}, 80, v{T+11}
    v_sub_u32 v{T+12}, v{T+8}, v{T+12}
    v_mul_hi_u32 v{T+13}, v{T+12}, s48
    v_mul_u32_u24 v{T+14}, 10, v{T+13}
    v_sub_u32 v{T+14}, v{T+12}, v{T+14}
    v_mul_u32_u24 v{T+13}, 102400, v{T+13}
    v_mul_u32_u24 v{T+11}, 160, v{T+11}
    v_add_u32 v{T+13}, v{T+13}, v{T+11}
    v_lshl_add_u32 v{T+13}, v{T+14}, 4, v{T+13}
    v_cmp_gt_u32 vcc, 51200, v{T+8}
    s_nop 1
    v_cndmask_b32 v{CPD+2}, v{T+9}, v{T+13}, vcc
    v_lshlrev_b32 v{CPD+3}, 4, v{T+8}
    """)
    k.stamp()
    k("s_waitcnt vmcnt(4)")
    k.stamp()
    k(f"""
    v_cmp_eq_u32 vcc, 0, v4
    s_nop 1
    v_cndmask_b32 v{QF2}, 0, v{QF2}, vcc
    v_cndmask_b32 v{QF2+1}, 0, v{QF2+1}, vcc
    v_mov_b32 v{QF2+2}, 0
    v_mov_b32 v{QF2+3}, 0
    v_max_f32 v{T}, v{T}, v{T+1}
    v_mov_b32 v{T+3}, 0
    """)
    for r in range(4):
        k(f"v_dot2_f32_bf16 v{T+3}, v{QF1+r}, v{QF1+r}, v{T+3}")
    for r in range(2):
        k(f"v_dot2_f32_bf16 v{T+3}, v{QF2+r}, v{QF2+r}, v{T+3}")
    for off in ("0x041F", "0x081F", "0x101F", "0x201F", "0x401F"):
        k(f"ds_swizzle_b32 v{T+1}, v{T} offset:{off}\ns_waitcnt lgkmcnt(0)\nv_max_f32 v{T}, v{T}, v{T+1}")
    k(f"""
    v_mov_b32 v{T+1}, v{T}
    v_mov_b32 v{T+2}, v{T}
    v_mov_b32 v{T+4}, v{T+3}
    v_mov_b32 v{T+5}, v{T+3}
    s_nop 1
    v_permlane32_swap_b32 v{T+1}, v{T+2}
    v_permlane32_swap_b32 v{T+4}, v{T+5}
    s_nop 1
    v_max_f32 v{T}, v{T+1}, v{T+2}
    v_add_f32 v{T+3}, v{T+4}, v{T+5}
    v_mul_f32 v{T+3}, v{T+3}, v{T}
    v_sqrt_f32 v{T+3}, v{T+3}
    s_nop 0
    v_mul_f32 v{T+3}, {f32hex(1.01)}, v{T+3}
    v_mov_b32 v{T+6}, {f32hex(THRESH)}
    v_cmp_nle_f32 vcc, v{T+3}, v{T+6}
    s_cbranch_vccnz attn_kernel_slow
    """)

    def set_m():
        k(f"""
        v_xor_b32 v{T+3}, 0x80000000, v{T+3}
        v_and_b32 v{T+4}, 0xffff0000, v{T+3}
        v_sub_f32 v{T+5}, v{T+3}, v{T+4}
        v_and_b32 v{T+6}, 0xffff0000, v{T+5}
        v_sub_f32 v{T+5}, v{T+5}, v{T+6}
        v_lshrrev_b32 v{T+4}, 16, v{T+4}
        v_or_b32 v{T+4}, v{T+4}, v{T+6}
        v_lshrrev_b32 v{T+5}, 16, v{T+5}
        v_cmp_eq_u32 vcc, 0, v4
        s_nop 1
        v_cndmask_b32 v{QF2+2}, 0, v{T+4}, vcc
        v_cndmask_b32 v{QF2+3}, 0, v{T+5}, vcc
        """)
    def kreads(b, blk):
        k(f"ds_read_b128 {v4(KF[b])}, v{AK} offset:{blk*2560}\nds_read_b64 {v2(KF[b]+4)}, v{AK2} offset:{blk*2560+1024}")
    def vreads(b, blk):
        k(f"s_mov_b64 exec, s[40:41]\nds_read_b128 {v4(VF[b])}, v{AV} offset:{blk*2560+1280}\nds_read_b128 {v4(VF[b]+4)}, v{AV} offset:{blk*2560+1920}\ns_mov_b64 exec, -1")
    def pipe_start():
        kreads(0, 0); kreads(1, 1); vreads(0, 0)
        k("s_waitcnt lgkmcnt(4)")
        k(f"v_mfma_f32_32x32x16_bf16 {v16(SA)}, {v4(KF[0])}, {v4(QF1)}, 0")
        k(f"v_mfma_f32_32x32x16_bf16 {v16(SA)}, {v4(KF[0]+4)}, {v4(QF2)}, {v16(SA)}")
        k("s_nop 7\ns_nop 3")
    def E(Sc, a, b):
        for r in range(a, b):
            k(f"v_exp_f32 v{Sc+r}, v{Sc+r}")
    def C(Sc, a, b):
        for p in range(a, b):
            k(f"v_cvt_pk_bf16_f32 v{P+p}, v{Sc+2*p}, v{Sc+2*p+1}")
    def iteration(j, with_dma):
        par = j & 1
        Sc, Sn = (SA, SB) if par == 0 else (SB, SA)
        k("s_waitcnt lgkmcnt(0)")
        E(Sc, 0, 2)
        k(f"v_mfma_f32_32x32x16_bf16 {v16(O)}, {v4(VF[1-par]+4)}, {v4(P+4)}, {v16(O)}")
        kreads(par, j + 2)
        vreads(1 - par, j + 1)
        E(Sc, 2, 5)
        k(f"v_mfma_f32_32x32x16_bf16 {v16(Sn)}, {v4(KF[1-par])}, {v4(QF1)}, 0")
        E(Sc, 5, 8); C(Sc, 0, 4); E(Sc, 8, 9)
        k(f"v_mfma_f32_32x32x16_bf16 {v16(Sn)}, {v4(KF[1-par]+4)}, {v4(QF2)}, {v16(Sn)}")
        if with_dma: dma()
        E(Sc, 9, 12)
        k(f"v_mfma_f32_32x32x16_bf16 {v16(O)}, {v4(VF[par])}, {v4(P)}, {v16(O)}")
        if with_dma: dma()
        E(Sc, 12, 16); C(Sc, 4, 8)
    def group(with_dma):
        for j in range(8):
            iteration(j, with_dma)
        k(f"v_add_u32 v{AK}, 20480, v{AK}\nv_add_u32 v{AK2}, 20480, v{AK2}\nv_add_u32 v{AV}, 20480, v{AV}")
    def copy_loads():
        k.srd(36, 8, 640 * 3456)
        k(f"buffer_load_dwordx4 {v4(CP)}, v{CPD+3}, s[36:39], 0 offen\ns_mov_b32 s45, {131072*16}\nbuffer_load_dwordx4 {v4(CP+4)}, v{CPD+3}, s[36:39], s45 offen")
        k.srd(36, 10, 640 * 3456)
        k(f"buffer_load_dwordx4 {v4(CP+8)}, v{CPD+3}, s[36:39], 0 offen\nbuffer_load_dwordx4 {v4(CP+12)}, v{CPD+3}, s[36:39], s45 offen")
        k.srd(36, 4, 819200)
        k(f"buffer_load_dwordx4 {v4(CP+16)}, v{CPD+3}, s[36:39], 0 offen")

    set_m()
    k("s_waitcnt vmcnt(0)\ns_barrier")
    k.stamp()
    pipe_start()
    group(True)
    k.stamp()
    k("s_waitcnt vmcnt(0)\ns_barrier")
    k.stamp()
    copy_loads()
    k("s_mov_b32 s42, 7\ns_branch attn_kernel_loop")
    k.label("slow")
    for i in range(16):
        dma()
    k("s_waitcnt vmcnt(16)\ns_barrier\ns_waitcnt vmcnt(0)\ns_barrier")
    copy_loads()
    k(f"v_mov_b32 v{T+3}, 0xff800000\ns_mov_b32 s42, 64")
    k.label("maxloop")
    kreads(0, 0)
    k(f"v_add_u32 v{AK}, 2560, v{AK}\nv_add_u32 v{AK2}, 2560, v{AK2}\ns_waitcnt lgkmcnt(0)")
    k(f"v_mfma_f32_32x32x16_bf16 {v16(SA)}, {v4(KF[0])}, {v4(QF1)}, 0")
    k(f"v_mfma_f32_32x32x16_bf16 {v16(SA)}, {v4(KF[0]+4)}, {v4(QF2)}, {v16(SA)}")
    k("s_nop 15\ns_nop 3")
    for r in range(0, 16, 2):
        k(f"v_max3_f32 v{T+3}, v{SA+r}, v{SA+r+1}, v{T+3}")
    k("s_sub_u32 s42, s42, 1\ns_cmp_lg_u32 s42, 0\ns_cbranch_scc1 attn_kernel_maxloop")
    k(f"""
    v_mov_b32 v{T+4}, v{T+3}
    v_mov_b32 v{T+5}, v{T+3}
    s_nop 1
    v_permlane32_swap_b32 v{T+4}, v{T+5}
    s_nop 1
    v_max_f32 v{T+3}, v{T+4}, v{T+5}
    v_lshlrev_b32 v{AK}, 4, v1
    v_lshlrev_b32 v{AK2}, 3, v3
    """)
    set_m()
    pipe_start()
    k("s_mov_b32 s42, 8")
    k.label("loop")
    group(False)
    k("s_sub_u32 s42, s42, 1\ns_cmp_lg_u32 s42, 0\ns_cbranch_scc1 attn_kernel_loop")
    k.stamp()
    k("s_nop 1")
    k(f"v_mfma_f32_32x32x16_bf16 {v16(O)}, {v4(VF[1]+4)}, {v4(P+4)}, {v16(O)}")
    k("s_waitcnt vmcnt(0)")
    k.srd_off(36, 12, WS_FW, NFF * 40960)
    k(f"""
    s_mov_b32 s45, 20480
    buffer_store_dwordx4 {v4(CP)}, v{CPD}, s[36:39], 0 offen
    buffer_store_dwordx4 {v4(CP+4)}, v{CPD+1}, s[36:39], 0 offen
    buffer_store_dwordx4 {v4(CP+8)}, v{CPD}, s[36:39], s45 offen
    buffer_store_dwordx4 {v4(CP+12)}, v{CPD+1}, s[36:39], s45 offen
    """)
    k.srd_off(36, 12, WS_WO, 819200)
    k(f"buffer_store_dwordx4 {v4(CP+16)}, v{CPD+2}, s[36:39], 0 offen")
    k("s_nop 7")
    k(f"""
    v_mov_b32 v{T}, v{O+8}
    v_mov_b32 v{T+1}, v{O+8}
    s_nop 1
    v_permlane32_swap_b32 v{T}, v{T+1}
    s_nop 1
    v_rcp_f32 v{T+1}, v{T+1}
    s_nop 0
    """)
    for r in range(12):
        k(f"v_mul_f32 v{O+r}, v{O+r}, v{T+1}")
    for p in range(6):
        k(f"v_cvt_pk_bf16_f32 v{P+p}, v{O+2*p}, v{O+2*p+1}")
    k(f"""
    v_lshl_add_u32 v6, v4, 3, v5
    buffer_store_dwordx2 {v2(P)}, v6, s[32:35], s19 offen
    buffer_store_dwordx2 {v2(P+2)}, v6, s[32:35], s19 offen offset:16
    s_mov_b32 exec_hi, 0
    buffer_store_dwordx2 {v2(P+4)}, v6, s[32:35], s19 offen offset:32
    """)
    k.finish(1)
    return k, "grid=(256,1,1) block=(512,1,1) lds=163840"

def gen_k3():
    k = K("oproj_kernel", 128)
    XR, WR = CS, CS + 8
    S0 = TMP
    k("""
    s_cmp_ge_u32 s2, 256
    s_cbranch_scc1 oproj_kernel_exit
    s_load_dwordx2 s[4:5], s[0:1], 0
    s_load_dwordx2 s[12:13], s[0:1], 96
    s_load_dwordx2 s[14:15], s[0:1], 48
    """)
    gemm_ids(k)
    k("s_waitcnt lgkmcnt(0)")
    k.stamp()
    k.srd_off(20, 12, WS_O, MATB)
    k(f"""
    s_mul_i32 s44, s16, 102400
    s_add_u32 s44, s44, {WS_WO}
    s_add_u32 s24, s12, s44
    s_addc_u32 s25, s13, 0
    s_mov_b32 s26, 102400
    s_mov_b32 s27, 0x00020000
    """)
    gemm_setup(k, True)
    k.srd(28, 4, MATB)
    k.srd(32, 14, 1280)
    k.srd_off(36, 12, WS_H, MATB)
    k.srd_off(40, 12, WS_ST, 32768)
    k("""
    v_mul_u32_u24 v14, 1280, v5
    v_lshl_add_u32 v14, v4, 3, v14
    s_mul_i32 s55, s16, 160
    v_lshlrev_b32 v15, 3, v4
    """)
    def body(tiles, nw):
        for u, t in enumerate(tiles):
            k(f"buffer_load_dwordx2 {v2(XR+2*u)}, v14, s[28:31], s55 offen offset:{t*32}")
            k(f"buffer_load_dwordx2 {v2(WR+2*u)}, v15, s[32:35], s55 offen offset:{t*32}")
        gemm_main(k, tiles, nw, 0, False, False, 20480)
        k.stamp()
        k(f"v_mov_b32 v{S0}, 0\nv_mov_b32 v{S0+1}, 0\nv_mov_b32 v{S0+2}, 0\nv_mov_b32 v{S0+3}, 0x3f803f80")
        for u, t in enumerate(tiles):
            a = ACC + 4 * u
            k(f"v_cvt_pk_bf16_f32 v{a}, v{a}, v{a+1}\nv_cvt_pk_bf16_f32 v{a+1}, v{a+2}, v{a+3}")
            for h in range(2):
                k(f"""
                v_lshlrev_b32 v12, 16, v{a+h}
                v_and_b32 v13, 0xffff0000, v{a+h}
                v_lshlrev_b32 v{S0+4}, 16, v{XR+2*u+h}
                v_and_b32 v{S0+5}, 0xffff0000, v{XR+2*u+h}
                v_add_f32 v12, v12, v{S0+4}
                v_add_f32 v13, v13, v{S0+5}
                v_cvt_pk_bf16_f32 v{a+h}, v12, v13
                """)
                k(f"v_dot2_f32_bf16 v{S0}, v{a+h}, v{S0+3}, v{S0}\nv_dot2_f32_bf16 v{S0+1}, v{a+h}, v{a+h}, v{S0+1}\nv_dot2_f32_bf16 v{S0+2}, v{a+h}, v{WR+2*u+h}, v{S0+2}")
            k(f"buffer_store_dwordx2 {v2(a)}, v14, s[36:39], s55 offen offset:{t*32}")
        k("s_nop 3")
        for r in (S0, S0 + 1, S0 + 2):
            xor16_32_add(k, r, S0 + 4, S0 + 5)
        k(f"""
        v_lshlrev_b32 v14, 4, v5
        s_mov_b64 exec, 0xffff
        buffer_atomic_add_f32 v{S0}, v14, s[40:43], 0 offen
        buffer_atomic_add_f32 v{S0+1}, v14, s[40:43], 0 offen offset:4
        buffer_atomic_add_f32 v{S0+2}, v14, s[40:43], 0 offen offset:8
        """)
    k("s_cmp_eq_u32 s53, 0\ns_cbranch_scc0 oproj_kernel_cw1")
    n0 = k.nst
    body([0, 1, 2], 3)
    k("s_branch oproj_kernel_end")
    k.label("cw1")
    k.nst = n0
    body([3, 4], 2)
    k.finish(2)
    return k, "grid=(256,1,1) block=(512,1,1) lds=%d" % GEMM_LDS

def row_stats(k, s0, s1, s2, mean, rstd, r=None, wsum=None):
    k(f"""
    v_mul_f32 v{mean}, {f32hex(1/640)}, v{s0}
    v_mul_f32 v{rstd}, {f32hex(1/640)}, v{s1}
    v_fma_f32 v{rstd}, -v{mean}, v{mean}, v{rstd}
    v_max_f32 v{rstd}, 0, v{rstd}
    v_add_f32 v{rstd}, {f32hex(1e-5)}, v{rstd}
    v_rsq_f32 v{rstd}, v{rstd}
    """)
    if r is not None:
        k(f"v_fma_f32 v{r}, -v{mean}, v{wsum}, v{s2}\nv_mul_f32 v{r}, v{r}, v{rstd}")

def gen_k4():
    k = K("ffna_kernel", 128)
    k(f"""
    s_cmp_ge_u32 s2, {NFF+128}
    s_cbranch_scc1 ffna_kernel_exit
    s_load_dwordx4 s[8:11], s[0:1], 72
    s_load_dwordx2 s[12:13], s[0:1], 96
    s_waitcnt lgkmcnt(0)
    """)
    k.stamp()
    k.srd_off(20, 12, WS_H, MATB)
    k.srd_off(24, 12, WS_ST, 32768)
    k(f"s_cmp_lt_u32 s2, {NFF}\ns_cbranch_scc1 ffna_kernel_ffn")
    k.srd(28, 10, MATB)
    k(f"""
    s_sub_u32 s16, s2, {NFF}
    s_add_u32 s17, s16, {NFF % 8}
    s_and_b32 s17, s17, 7
    s_lshl_b32 s17, s17, 4
    s_lshr_b32 s16, s16, 3
    s_add_u32 s16, s16, s17
    s_mul_i32 s17, s16, 20480
    s_lshl_b32 s18, s16, 8
    v_lshlrev_b32 v1, 4, v0
    """)
    for i in range(5):
        k(f"buffer_load_dwordx4 {v4(16+4*i)}, v1, s[20:23], s17 offen offset:0" if i == 0 else
          f"v_add_u32 v{2+i}, {4096*i}, v1\nbuffer_load_dwordx4 {v4(16+4*i)}, v{2+i}, s[20:23], s17 offen")
    for i in range(5):
        k(f"""
        v_add_u32 v8, {256*i}, v0
        v_mul_u32_u24 v8, 3277, v8
        v_lshrrev_b32 v8, 18, v8
        v_lshlrev_b32 v8, 4, v8
        buffer_load_dwordx2 {v2(40+2*i)}, v8, s[24:27], s18 offen
        """)
    k("s_waitcnt vmcnt(0)")
    for i in range(5):
        row_stats(k, 40 + 2 * i, 41 + 2 * i, None, 52, 53)
        k("s_nop 0\nv_mul_f32 v52, v52, v53")
        for d in range(4):
            r = 16 + 4 * i + d
            k(f"""
            v_lshlrev_b32 v54, 16, v{r}
            v_and_b32 v55, 0xffff0000, v{r}
            v_fma_f32 v56, v54, v53, -v52
            v_fma_f32 v57, v55, v53, -v52
            v_cvt_pk_bf16_f32 v56, v56, v57
            v_lshlrev_b32 v57, 16, v56
            v_and_b32 v56, 0xffff0000, v56
            v_add_f32 v54, v54, v57
            v_add_f32 v55, v55, v56
            v_cvt_pk_bf16_f32 v{r}, v54, v55
            """)
        k(f"buffer_store_dwordx4 {v4(16+4*i)}, v{1 if i == 0 else 2+i}, s[28:31], s17 offen")
    k("s_branch ffna_kernel_end")
    k.label("ffn")
    G, U, D, SS, HX, AC = 16, 36, 56, 88, 120, 96
    k.srd_off(28, 12, WS_FW, NFF * 40960)
    k.srd(36, 8, 1728 * 1280)
    k.srd_off(40, 12, WS_SEL, 64)
    k.srd_off(44, 12, WS_YP, NFF * 2560)
    k("v_lshlrev_b32 v1, 4, v0")
    for i in range(8):
        k(f"v_add_u32 v2, {4096*i}, v1\nbuffer_load_dwordx3 v[{SS+4*i}:{SS+2+4*i}], v2, s[24:27], 0 offen")
    k("v_mov_b32 v2, 0\nbuffer_load_dword v125, v2, s[40:43], 0 offen offset:32")
    k("s_mul_i32 s16, s2, 40960")
    for i in range(5):
        k(f"s_add_u32 s17, s16, {i*4096}\nbuffer_load_dwordx4 {v4(G+4*i)}, v1, s[28:31], s17 offen\ns_add_u32 s17, s16, {20480+i*4096}\nbuffer_load_dwordx4 {v4(U+4*i)}, v1, s[28:31], s17 offen")
    k.stamp()
    k("s_waitcnt vmcnt(10)")
    k.stamp()
    k("v_mov_b32 v7, 0")
    for i in range(8):
        b = SS + 4 * i
        row_stats(k, b, b + 1, b + 2, 8, 9, 10, 125)
        k(f"""
        v_ashrrev_i32 v11, 31, v10
        v_or_b32 v11, 0x80000000, v11
        v_xor_b32 v11, v11, v10
        v_and_b32 v11, 0xfffff800, v11
        v_sub_u32 v12, {2047 - 256*i}, v0
        v_or_b32 v11, v11, v12
        v_max_u32 v7, v7, v11
        """)
    for off in ("0x041F", "0x081F", "0x101F", "0x201F", "0x401F"):
        k(f"ds_swizzle_b32 v8, v7 offset:{off}\ns_waitcnt lgkmcnt(0)\nv_max_u32 v7, v7, v8")
    k("""
    v_mov_b32 v8, v7
    v_mov_b32 v9, v7
    s_nop 1
    v_permlane32_swap_b32 v8, v9
    s_nop 1
    v_max_u32 v7, v8, v9
    v_lshrrev_b32 v8, 6, v0
    v_lshlrev_b32 v8, 2, v8
    ds_write_b32 v8, v7
    s_waitcnt lgkmcnt(0)
    s_barrier
    v_mov_b32 v8, 0
    ds_read_b128 v[8:11], v8
    s_waitcnt lgkmcnt(0)
    v_max_u32 v7, v8, v9
    v_max3_u32 v7, v10, v11, v7
    v_and_b32 v7, 0x7ff, v7
    v_sub_u32 v7, 2047, v7
    s_nop 0
    v_readfirstlane_b32 s18, v7
    s_nop 3
    s_lshl_b32 s19, s18, 4
    s_mul_i32 s50, s18, 1280
    """)
    k(f"v_mov_b32 v2, 0\nbuffer_load_dwordx3 v[{SS}:{SS+2}], v2, s[24:27], s19 offen\nv_and_b32 v8, 0xfe, v0")
    for i in range(5):
        k(f"buffer_load_ushort v{HX+i}, v8, s[20:23], s50 offen offset:{256*i}")
    k("v_lshlrev_b32 v6, 3, v0\ns_mul_i32 s16, s2, 20480\nv_cmp_gt_u32 vcc, 160, v0\nv_mov_b32 v2, 0x40000000\ns_nop 1\nv_cndmask_b32 v6, v2, v6, vcc")
    for j in range(16):
        k(f"s_add_u32 s17, s16, {j*1280}\nbuffer_load_dwordx2 {v2(D+2*j)}, v6, s[36:39], s17 offen")
    k.stamp()
    k("s_waitcnt vmcnt(21)")
    row_stats(k, SS, SS + 1, SS + 2, 8, 9, 10, 125)
    k("s_nop 0\nv_mul_f32 v11, v8, v9\ns_waitcnt vmcnt(16)")
    for i in range(5):
        k(f"v_lshlrev_b32 v{HX+i}, 16, v{HX+i}\nv_fma_f32 v{HX+i}, v{HX+i}, v9, -v11\nv_cvt_pk_bf16_f32 v{HX+i}, v{HX+i}, v{HX+i}\nv_lshlrev_b32 v{HX+i}, 16, v{HX+i}")
    k.stamp()
    for r in range(16):
        k(f"v_mov_b32 v{AC+r}, 0")
    for i in range(5):
        for (src, acc) in ((G, AC), (U, AC + 8)):
            for d in range(4):
                s = src + 4 * i + d
                k(f"v_lshlrev_b32 v12, 16, v{s}\nv_and_b32 v13, 0xffff0000, v{s}\nv_fmac_f32 v{acc+2*d}, v12, v{HX+i}\nv_fmac_f32 v{acc+2*d+1}, v13, v{HX+i}")
    k.stamp()
    for ror in (8, 4, 2):
        k("s_nop 1")
        for r in range(16):
            k(f"v_add_f32_dpp v{16+r}, v{AC+r}, v{AC+r} row_ror:{ror} row_mask:0xf bank_mask:0xf")
        for r in range(16):
            k(f"v_mov_b32 v{AC+r}, v{16+r}")
    k(f"""
    v_lshrrev_b32 v12, 4, v0
    v_lshlrev_b32 v12, 7, v12
    v_and_b32 v13, 1, v0
    v_lshl_add_u32 v12, v13, 6, v12
    s_mov_b32 s48, 0x00030003
    s_mov_b32 s49, 0x00030003
    s_mov_b64 exec, s[48:49]
    ds_write_b128 v12, v[{AC}:{AC+3}] offset:64
    ds_write_b128 v12, v[{AC+4}:{AC+7}] offset:80
    ds_write_b128 v12, v[{AC+8}:{AC+11}] offset:96
    ds_write_b128 v12, v[{AC+12}:{AC+15}] offset:112
    s_mov_b64 exec, -1
    s_waitcnt lgkmcnt(0)
    s_barrier
    """)
    k("""
    v_and_b32 v13, 7, v0
    v_bfe_u32 v12, v0, 3, 1
    v_lshlrev_b32 v12, 6, v12
    v_lshl_add_u32 v12, v13, 2, v12
    """)
    for rr in range(16):
        k(f"ds_read_b32 v{16+rr}, v12 offset:{64+128*rr}\nds_read_b32 v{32+rr}, v12 offset:{96+128*rr}")
    k("s_waitcnt lgkmcnt(0)")
    for st in (8, 4, 2, 1):
        for rr in range(st):
            k(f"v_add_f32 v{16+rr}, v{16+rr}, v{16+rr+st}\nv_add_f32 v{32+rr}, v{32+rr}, v{32+rr+st}")
    k(f"""
    v_cvt_pk_bf16_f32 v16, v16, v32
    v_and_b32 v20, 0xffff0000, v16
    v_lshlrev_b32 v16, 16, v16
    v_mul_f32 v17, {f32hex(-1.4426950408889634)}, v16
    v_exp_f32 v17, v17
    s_nop 0
    v_add_f32 v17, 1.0, v17
    v_rcp_f32 v17, v17
    s_nop 0
    v_mul_f32 v16, v16, v17
    v_cvt_pk_bf16_f32 v16, v16, v16
    v_lshlrev_b32 v16, 16, v16
    v_mul_f32 v16, v16, v20
    v_cvt_pk_bf16_f32 v16, v16, v16
    v_lshlrev_b32 v16, 16, v16
    s_nop 1
    """)
    k.stamp()
    for j in range(16):
        k(f"v_readlane_b32 s{76+j}, v16, {j}")
    k("v_mov_b32 v48, 0\nv_mov_b32 v49, 0\nv_mov_b32 v50, 0\nv_mov_b32 v51, 0\ns_waitcnt vmcnt(0)")
    for j in range(16):
        k(f"""
        v_lshlrev_b32 v12, 16, v{D+2*j}
        v_and_b32 v13, 0xffff0000, v{D+2*j}
        v_lshlrev_b32 v14, 16, v{D+2*j+1}
        v_and_b32 v15, 0xffff0000, v{D+2*j+1}
        v_fmac_f32 v48, s{76+j}, v12
        v_fmac_f32 v49, s{76+j}, v13
        v_fmac_f32 v50, s{76+j}, v14
        v_fmac_f32 v51, s{76+j}, v15
        """)
    k("""
    s_mul_i32 s16, s2, 2560
    v_cmp_gt_u32 vcc, 160, v0
    v_mov_b32 v2, 0x40000000
    s_nop 1
    v_cndmask_b32 v6, v2, v1, vcc
    buffer_store_dwordx4 v[48:51], v6, s[44:47], s16 offen
    s_cmp_eq_u32 s2, 0
    s_cbranch_scc0 ffna_kernel_end
    v_mov_b32 v12, v7
    v_mov_b32 v13, v10
    v_mov_b32 v14, v8
    v_mov_b32 v15, v9
    v_mov_b32 v6, 0
    v_cmp_eq_u32 vcc, 0, v0
    s_nop 1
    v_cndmask_b32 v6, v2, v6, vcc
    buffer_store_dwordx4 v[12:15], v6, s[40:43], 0 offen
    """)
    k.finish(3)
    return k, f"grid=({NFF+128},1,1) block=(256,1,1) lds=4096"

def gen_k5():
    k = K("ffnb_kernel", 64)
    NP = NFF // 4
    k(f"""
    s_cmp_ge_u32 s2, 10
    s_cbranch_scc1 ffnb_kernel_exit
    s_load_dwordx2 s[10:11], s[0:1], 80
    s_load_dwordx2 s[12:13], s[0:1], 96
    v_and_b32 v1, 63, v0
    v_lshrrev_b32 v2, 6, v0
    s_nop 0
    v_readfirstlane_b32 s18, v2
    s_waitcnt lgkmcnt(0)
    """)
    k.stamp()
    k.srd_off(20, 12, WS_H, MATB)
    k.srd(28, 10, MATB)
    k.srd_off(40, 12, WS_SEL, 64)
    k.srd_off(44, 12, WS_YP, NFF * 2560)
    k(f"""
    v_mov_b32 v2, 0
    buffer_load_dwordx4 v[4:7], v2, s[40:43], 0 offen
    s_lshl_b32 s16, s2, 8
    s_mul_i32 s17, s18, {NP*2560}
    s_add_u32 s16, s16, s17
    v_lshlrev_b32 v3, 2, v1
    """)
    for f in range(NP):
        k(f"s_add_u32 s17, s16, {f*2560}\nbuffer_load_dword v{16+f}, v3, s[44:47], s17 offen")
    k(f"""
    s_waitcnt vmcnt({NP})
    v_readfirstlane_b32 s19, v4
    s_nop 3
    s_mul_i32 s19, s19, 1280
    s_lshl_b32 s16, s2, 7
    s_add_u32 s19, s19, s16
    v_lshlrev_b32 v3, 1, v1
    buffer_load_ushort v8, v3, s[20:23], s19 offen
    v_cvt_pk_bf16_f32 v5, v5, v5
    v_lshlrev_b32 v5, 16, v5
    v_mul_f32 v9, {f32hex(-1.4426950408889634)}, v5
    v_exp_f32 v9, v9
    s_nop 0
    v_add_f32 v9, 1.0, v9
    v_rcp_f32 v9, v9
    s_nop 0
    v_cvt_pk_bf16_f32 v9, v9, v9
    v_lshlrev_b32 v9, 16, v9
    s_waitcnt vmcnt(1)
    """)
    for f in range(1, NP):
        k(f"v_add_f32 v16, v16, v{16+f}")
    k("""
    v_lshlrev_b32 v10, 2, v0
    ds_write_b32 v10, v16
    s_waitcnt lgkmcnt(0)
    s_barrier
    s_cmp_eq_u32 s18, 0
    s_cbranch_scc0 ffnb_kernel_end
    ds_read_b32 v17, v10 offset:256
    ds_read_b32 v18, v10 offset:512
    ds_read_b32 v19, v10 offset:768
    s_waitcnt vmcnt(0) lgkmcnt(0)
    v_add_f32 v16, v16, v17
    v_add_f32 v18, v18, v19
    v_add_f32 v16, v16, v18
    v_cvt_pk_bf16_f32 v16, v16, v16
    v_lshlrev_b32 v16, 16, v16
    v_mul_f32 v16, v16, v9
    v_cvt_pk_bf16_f32 v16, v16, v16
    v_lshlrev_b32 v16, 16, v16
    v_lshlrev_b32 v8, 16, v8
    v_sub_f32 v10, v8, v6
    v_mul_f32 v10, v10, v7
    v_cvt_pk_bf16_f32 v10, v10, v10
    v_lshlrev_b32 v10, 16, v10
    v_add_f32 v10, v10, v16
    v_cvt_pk_bf16_f32 v10, v10, v10
    v_lshlrev_b32 v10, 16, v10
    v_add_f32 v10, v10, v8
    v_cvt_pk_bf16_f32 v10, v10, v10
    buffer_store_short v10, v3, s[28:31], s19 offen
    """)
    k.finish(4)
    return k, "grid=(10,1,1) block=(256,1,1) lds=1024"

def main():
    ks = [gen_k1(), gen_k2(), gen_k3(), gen_k4(), gen_k5()]
    out = "; generated by dev/gen3.py (hand-written generator)\n"
    for k, l in ks:
        out += f"; @launch kernel={k.name} {l}\n"
    out += '.amdgcn_target "amdgcn-amd-amdhsa--gfx950"\n.text\n'
    for k, l in ks:
        out += k.text()
    out += '.section .rodata,"a"\n'
    for k, l in ks:
        out += ".p2align 6\n" + k.desc()
    path = sys.argv[1] if len(sys.argv) > 1 else f"cdna_kernels/{NAME}.s"
    open(path, "w").write(out)
    print("wrote", path, len(out))

main()
```

```python
import sys, struct, os
STAMP = os.environ.get("STAMP", "0") == "1"
NAME = "sequential_preLN__grouped_kv_mqa__moe_arch_mod__prompt"
WS_Q, WS_KV, WS_O, WS_H, WS_ST, WS_KM, WS_YP, WS_SEL = 0, 0x400000, 0x800000, 0xC00000, 0x1000000, 0x1100000, 0x1200000, 0x1300000
WS_FW, WS_WO = 0x1400000, 0x1900000
MATB = 2048 * 1280
QSCALE = (20 ** -0.5) * 1.4426950408889634
NFF = 108

def f32hex(x):
    return "0x%08x" % struct.unpack("<I", struct.pack("<f", x))[0]

class K:
    def __init__(self, name, vgpr, sgpr=96):
        self.name, self.vgpr, self.sgpr = name, vgpr, sgpr
        self.lines = []
        self.nst = 0
    def __call__(self, s):
        for l in s.strip().split("\n"):
            if l.strip():
                self.lines.append("    " + l.strip())
    def label(self, s):
        self.lines.append(f"{self.name}_{s}:")
    def srd(self, d, b, size):
        self(f"s_mov_b32 s{d}, s{b}\ns_mov_b32 s{d+1}, s{b+1}\ns_mov_b32 s{d+2}, {size}\ns_mov_b32 s{d+3}, 0x00020000")
    def srd_off(self, d, b, off, size):
        self(f"s_add_u32 s{d}, s{b}, {off}\ns_addc_u32 s{d+1}, s{b+1}, 0\ns_mov_b32 s{d+2}, {size}\ns_mov_b32 s{d+3}, 0x00020000")
    def stamp(self, real=False):
        if not STAMP: return
        i = self.nst; self.nst += 1
        self(f"{'s_memrealtime' if real else 's_memtime'} s[{60+2*i}:{61+2*i}]")
    def finish(self, kid, wsreg=12):
        self.label("end")
        self.stamp()
        if STAMP:
            self(f"s_waitcnt lgkmcnt(0)\ns_mov_b64 exec, 1")
            self.srd_off(92, wsreg, 0x2000000 + kid * 0x100000, 0x100000)
            self("v_lshrrev_b32 v1, 6, v0\ns_lshl_b32 s90, s2, 4\nv_add_u32 v1, s90, v1\nv_lshlrev_b32 v1, 6, v1")
            for i in range(self.nst):
                self(f"v_mov_b32 v2, s{60+2*i}\nbuffer_store_dword v2, v1, s[92:95], 0 offen offset:{4*i}")
        self.label("exit")
        self("s_endpgm")
    def text(self):
        return (f".globl {self.name}\n.p2align 8\n.type {self.name},@function\n{self.name}:\n" + "\n".join(self.lines) + "\n")
    def desc(self):
        acc = (self.vgpr + 3) // 4 * 4
        return (f".amdhsa_kernel {self.name}\n  .amdhsa_next_free_vgpr {self.vgpr}\n  .amdhsa_next_free_sgpr {self.sgpr}\n"
                f"  .amdhsa_accum_offset {acc}\n  .amdhsa_group_segment_fixed_size 0\n  .amdhsa_kernarg_size 104\n"
                f"  .amdhsa_user_sgpr_count 2\n  .amdhsa_user_sgpr_kernarg_segment_ptr 1\n  .amdhsa_system_sgpr_workgroup_id_x 1\n"
                f".end_amdhsa_kernel\n")

def v4(b): return f"v[{b}:{b+3}]"
def v2(b): return f"v[{b}:{b+1}]"
def v16(b): return f"v[{b}:{b+15}]"

def red_g(k, regs, tmp, op="add"):
    ins = "v_add_f32" if op == "add" else "v_max_f32"
    for i, r in enumerate(regs):
        k(f"ds_swizzle_b32 v{tmp+i}, v{r} offset:0x401F")
    k("s_waitcnt lgkmcnt(0)")
    for i, r in enumerate(regs):
        k(f"{ins} v{r}, v{r}, v{tmp+i}\nv_mov_b32 v{tmp+i}, v{r}")
    k("s_nop 1")
    for i, r in enumerate(regs):
        k(f"v_permlane32_swap_b32 v{tmp+i}, v{r}")
    k("s_nop 1")
    for i, r in enumerate(regs):
        k(f"{ins} v{r}, v{r}, v{tmp+i}")

def ln_fin(k, m, r):
    k(f"""
    v_mul_f32 v{m}, {f32hex(1/640)}, v{m}
    v_mul_f32 v{r}, {f32hex(1/640)}, v{r}
    v_fma_f32 v{r}, -v{m}, v{m}, v{r}
    v_max_f32 v{r}, 0, v{r}
    v_add_f32 v{r}, {f32hex(1e-5)}, v{r}
    v_rsq_f32 v{r}, v{r}
    s_nop 0
    v_mul_f32 v{m}, v{m}, v{r}
    """)

def gen_k1():
    k = K("kv_kernel", 96)
    WK_OFF, WV_OFF = 20480, 20480 + 28672
    XF, WF, ACC, CS, ONES, ST, TMP = 16, 24, 32, 36, 40, 44, 52
    k("""
    s_cmp_ge_u32 s2, 128
    s_cbranch_scc1 kv_kernel_exit
    s_load_dwordx2 s[4:5], s[0:1], 0
    s_load_dwordx4 s[8:11], s[0:1], 16
    s_load_dwordx2 s[12:13], s[0:1], 96
    s_load_dwordx2 s[14:15], s[0:1], 48
    v_and_b32 v1, 63, v0
    v_lshrrev_b32 v2, 6, v0
    s_and_b32 s17, s2, 7
    s_lshl_b32 s17, s17, 4
    s_lshr_b32 s44, s2, 3
    s_add_u32 s17, s17, s44
    v_readfirstlane_b32 s18, v2
    v_and_b32 v3, 15, v1
    v_lshrrev_b32 v4, 4, v1
    s_waitcnt lgkmcnt(0)
    """)
    k.stamp()
    k.srd(20, 4, MATB)
    k.srd(24, 8, 25600)
    k.srd(28, 10, 25600)
    k("s_mul_i32 s45, s17, 20480\ns_mul_i32 s46, s18, 320\ns_mul_i32 s48, s18, 5120")
    for j in range(5):
        k(f"""
        v_add_u32 v6, s46, v1
        v_add_u32 v6, {64*j}, v6
        v_mul_u32_u24 v7, 3277, v6
        v_lshrrev_b32 v7, 18, v7
        v_mul_u32_u24 v8, 80, v7
        v_sub_u32 v8, v6, v8
        v_xor_b32 v8, v8, v7
        v_mul_u32_u24 v7, 1280, v7
        v_lshl_add_u32 v7, v8, 4, v7
        s_mov_b32 m0, s48
        s_add_u32 s48, s48, 1024
        buffer_load_dwordx4 v7, s[20:23], s45 offen lds
        """)
    k(f"v_lshlrev_b32 v7, 4, v1\ns_lshl_b32 s47, s18, 10\ns_add_u32 s48, s47, {WK_OFF}")
    for j in range(7):
        k(f"s_mov_b32 m0, s48\ns_add_u32 s49, s48, 28672\nbuffer_load_dwordx4 v7, s[24:27], s47 offen lds\ns_mov_b32 m0, s49\ns_add_u32 s48, s48, 4096\nbuffer_load_dwordx4 v7, s[28:31], s47 offen lds\ns_add_u32 s47, s47, 4096")
    k(f"""
    v_mul_u32_u24 v9, 1280, v3
    v_and_b32 v6, 3, v3
    v_xor_b32 v6, v6, v4
    v_lshl_add_u32 v9, v6, 4, v9
    v_and_b32 v10, 12, v3
    v_lshrrev_b32 v12, 2, v1
    v_and_b32 v12, 3, v12
    v_lshl_add_u32 v12, v4, 3, v12
    v_and_b32 v13, 3, v1
    v_mul_u32_u24 v11, 40, v12
    v_lshl_add_u32 v11, v13, 3, v11
    s_lshr_b32 s46, s18, 1
    s_mul_i32 s46, s46, 28672
    s_and_b32 s47, s18, 1
    s_lshl_b32 s47, s47, 5
    s_add_u32 s46, s46, s47
    s_add_u32 s46, s46, {WK_OFF}
    v_add_u32 v11, s46, v11
    """)
    for q in range(4):
        k(f"v_xor_b32 v6, {4*q}, v10\nv_lshl_add_u32 v{TMP+8+q}, v6, 4, v9")
    for i in range(4):
        k(f"v_mov_b32 v{ONES+i}, 0x3f803f80\nv_mov_b32 v{ST+i}, 0")
    k.srd_off(36, 12, WS_KV, 163840)
    k.stamp()
    k("s_waitcnt vmcnt(0)\ns_barrier")
    k.stamp()
    def reads(ks, b):
        k(f"ds_read_b128 {v4(XF+4*b)}, v{TMP+8+(ks&3)} offset:{(ks>>2)*256}")
        for h in range(2):
            k(f"ds_read_b64_tr_b16 {v2(WF+4*b+2*h)}, v11 offset:{ks*1280+h*160}")
    reads(0, 0)
    for ks in range(20):
        if ks < 19:
            reads(ks + 1, (ks + 1) & 1)
            k("s_waitcnt lgkmcnt(3)")
        else:
            k("s_waitcnt lgkmcnt(0)")
        b = ks & 1
        k(f"v_mfma_f32_16x16x32_bf16 {v4(ACC)}, {v4(WF+4*b)}, {v4(XF+4*b)}, {'0' if ks == 0 else v4(ACC)}")
        k(f"v_mfma_f32_16x16x32_bf16 {v4(CS)}, {v4(WF+4*b)}, {v4(ONES)}, {'0' if ks == 0 else v4(CS)}")
        for d in range(4):
            k(f"v_dot2_f32_bf16 v{ST+(d&1)}, v{XF+4*b+d}, v{ONES}, v{ST+(d&1)}\nv_dot2_f32_bf16 v{ST+2+(d&1)}, v{XF+4*b+d}, v{XF+4*b+d}, v{ST+2+(d&1)}")
    k.stamp()
    k(f"s_nop 7\nv_add_f32 v{ST}, v{ST}, v{ST+1}\nv_add_f32 v{ST+1}, v{ST+2}, v{ST+3}")
    red_g(k, [ST, ST + 1], TMP)
    ln_fin(k, ST, ST + 1)
    k.srd_off(40, 12, WS_Q, 16384)
    k(f"""
    s_cmp_eq_u32 s18, 3
    s_cbranch_scc0 kv_kernel_nost
    s_lshl_b32 s46, s17, 7
    v_lshlrev_b32 v14, 3, v3
    s_mov_b64 exec, 0xffff
    buffer_store_dwordx2 {v2(ST)}, v14, s[40:43], s46 offen
    s_mov_b64 exec, -1
    """)
    k.label("nost")
    for r in range(4):
        k(f"v_mul_f32 v{ACC+r}, v{ACC+r}, v{ST+1}\nv_fma_f32 v{ACC+r}, -v{CS+r}, v{ST}, v{ACC+r}")
    k(f"v_cvt_pk_bf16_f32 v{ACC}, v{ACC}, v{ACC+1}\nv_cvt_pk_bf16_f32 v{ACC+1}, v{ACC+2}, v{ACC+3}")
    k("""
    s_lshr_b32 s44, s17, 1
    s_mul_i32 s44, s44, 2560
    s_and_b32 s45, s17, 1
    s_cmp_ge_u32 s18, 2
    s_cbranch_scc1 kv_kernel_vepi
    v_mov_b32 v15, 0
    s_cmp_eq_u32 s18, 0
    s_cbranch_scc0 kv_kernel_k1
    """)
    k(f"""
    s_lshl_b32 s46, s45, 8
    s_add_u32 s44, s44, s46
    v_lshrrev_b32 v14, 1, v4
    v_lshlrev_b32 v14, 9, v14
    v_lshl_add_u32 v14, v3, 4, v14
    v_and_b32 v13, 1, v4
    v_lshl_add_u32 v14, v13, 3, v14
    buffer_store_dwordx2 {v2(ACC)}, v14, s[36:39], s44 offen
    v_dot2_f32_bf16 v15, v{ACC}, v{ACC}, v15
    v_dot2_f32_bf16 v15, v{ACC+1}, v{ACC+1}, v15
    s_nop 3
    """)
    red_g(k, [15], TMP)
    k("s_branch kv_kernel_kmax")
    k.label("k1")
    k(f"""
    s_lshl_b32 s46, s45, 7
    s_add_u32 s44, s44, s46
    v_lshlrev_b32 v14, 3, v3
    s_mov_b64 exec, 0xffff
    buffer_store_dwordx2 {v2(ACC)}, v14, s[36:39], s44 offen offset:1024
    v_dot2_f32_bf16 v15, v{ACC}, v{ACC}, v15
    v_dot2_f32_bf16 v15, v{ACC+1}, v{ACC+1}, v15
    """)
    k.srd_off(40, 12, WS_ST, 32768)
    k("""
    v_mov_b32 v20, 0
    v_mov_b32 v21, 0
    v_mov_b32 v22, 0
    v_mov_b32 v23, 0
    s_lshl_b32 s46, s17, 8
    v_lshlrev_b32 v14, 4, v3
    buffer_store_dwordx4 v[20:23], v14, s[40:43], s46 offen
    s_mov_b64 exec, -1
    """)
    k.label("kmax")
    for off in ("0x041F", "0x081F", "0x101F", "0x201F"):
        k(f"ds_swizzle_b32 v{TMP}, v15 offset:{off}\ns_waitcnt lgkmcnt(0)\nv_max_f32 v15, v15, v{TMP}")
    k.srd_off(40, 12, WS_KM, 1024)
    k("""
    s_lshl_b32 s44, s18, 7
    s_add_u32 s44, s44, s17
    s_lshl_b32 s44, s44, 2
    v_mov_b32 v14, 0
    s_mov_b64 exec, 1
    buffer_store_dword v15, v14, s[40:43], s44 offen
    s_mov_b64 exec, -1
    s_branch kv_kernel_end
    """)
    k.label("vepi")
    k("""
    s_mul_i32 s46, s45, 640
    s_add_u32 s44, s44, s46
    v_bfe_u32 v14, v3, 2, 1
    v_mul_u32_u24 v12, 320, v14
    v_bfe_u32 v14, v3, 3, 1
    v_lshl_add_u32 v12, v14, 3, v12
    v_and_b32 v14, 3, v3
    v_lshl_add_u32 v12, v14, 1, v12
    v_lshl_add_u32 v14, v4, 6, v12
    s_cmp_eq_u32 s18, 2
    s_cbranch_scc1 kv_kernel_v0
    v_add_u32 v14, 256, v12
    s_mov_b64 exec, 0xffff
    """)
    k.label("v0")
    k(f"""
    buffer_store_short v{ACC}, v14, s[36:39], s44 offen offset:1280
    buffer_store_short_d16_hi v{ACC}, v14, s[36:39], s44 offen offset:1296
    buffer_store_short v{ACC+1}, v14, s[36:39], s44 offen offset:1312
    buffer_store_short_d16_hi v{ACC+1}, v14, s[36:39], s44 offen offset:1328
    s_mov_b64 exec, -1
    s_cmp_eq_u32 s18, 3
    s_cbranch_scc0 kv_kernel_end
    s_cmp_eq_u32 s2, 0
    s_cbranch_scc0 kv_kernel_end
    """)
    k.srd(40, 14, 1280)
    k(f"""
    v_mul_u32_u24 v8, 20, v1
    buffer_load_dwordx4 v[20:23], v8, s[40:43], 0 offen
    buffer_load_dword v24, v8, s[40:43], 0 offen offset:16
    v_mov_b32 v17, 0
    s_waitcnt vmcnt(0)
    v_dot2_f32_bf16 v17, v20, v{ONES}, v17
    v_dot2_f32_bf16 v17, v21, v{ONES}, v17
    v_dot2_f32_bf16 v17, v22, v{ONES}, v17
    v_dot2_f32_bf16 v17, v23, v{ONES}, v17
    v_dot2_f32_bf16 v17, v24, v{ONES}, v17
    s_nop 3
    """)
    for off in ("0x041F", "0x081F", "0x101F", "0x201F"):
        k(f"ds_swizzle_b32 v18, v17 offset:{off}\ns_waitcnt lgkmcnt(0)\nv_add_f32 v17, v17, v18")
    red_g(k, [17], 18)
    k.srd_off(40, 12, WS_SEL, 64)
    k("""
    v_mov_b32 v14, 0
    s_mov_b64 exec, 1
    buffer_store_dword v17, v14, s[40:43], 0 offen offset:32
    s_mov_b64 exec, -1
    """)
    k.finish(0)
    return k, "grid=(128,1,1) block=(256,1,1) lds=%d" % (20480 + 2 * 28672)

SLOT = 36864
W_OFF = 16384
XF, SRC, VA_RD, VW_RD, ST, ONES, ACC, CS, WF, TMP = 16, 16, 48, 52, 56, 76, 80, 96, 100, 108

def gemm_ids(k):
    k("""
    v_and_b32 v1, 63, v0
    v_lshrrev_b32 v2, 6, v0
    s_lshr_b32 s16, s2, 5
    s_and_b32 s17, s2, 7
    s_lshl_b32 s17, s17, 2
    s_bfe_u32 s44, s2, 0x20003
    s_add_u32 s17, s17, s44
    v_readfirstlane_b32 s18, v2
    v_and_b32 v3, 15, v1
    v_lshrrev_b32 v4, 4, v1
    """)

def loader_list(lw):
    return [("A", e) for e in range(16)][12*lw:12*lw+12] + [("W", e) for e in range(20)][max(0, 12*lw-16):max(0, 12*lw+12-16)]

def gemm_loader(k, lw, w_linear, gb, wchunk, mid=None, nmid=0):
    lst = loader_list(lw)
    k("s_lshl_b32 s45, s17, 6")
    for i, (kind, e) in enumerate(lst):
        if kind == "A":
            k(f"""
            v_add_u32 v6, {4*e}, v4
            v_and_b32 v7, 15, v6
            v_xor_b32 v7, v7, v3
            v_add_u32 v6, s45, v6
            v_mul_u32_u24 v6, 1280, v6
            v_lshl_add_u32 v{SRC+i}, v7, 4, v6
            """)
        elif w_linear:
            k(f"v_add_u32 v6, {64*e}, v1\nv_lshlrev_b32 v{SRC+i}, 4, v6")
        else:
            k(f"""
            v_add_u32 v6, {64*e}, v1
            v_mul_u32_u24 v7, 6554, v6
            v_lshrrev_b32 v7, 16, v7
            v_mul_u32_u24 v8, 10, v7
            v_sub_u32 v8, v6, v8
            v_mul_u32_u24 v7, 1280, v7
            v_lshl_add_u32 v{SRC+i}, v8, 4, v7
            """)
    def issue(c):
        slot = gb + (c % 3) * SLOT
        k(f"s_mov_b32 s46, {c*256}\ns_mov_b32 s47, {c*wchunk}")
        for i, (kind, e) in enumerate(lst):
            if kind == "A":
                k(f"s_mov_b32 m0, {slot + e*1024}\ns_nop 0\nbuffer_load_dwordx4 v{SRC+i}, s[20:23], s46 offen lds")
            else:
                k(f"s_mov_b32 m0, {slot + W_OFF + e*1024}\ns_nop 0\nbuffer_load_dwordx4 v{SRC+i}, s[24:27], s47 offen lds")
    for c in range(3):
        issue(c)
    if mid:
        mid()
    k.stamp()
    waits = [24 + nmid, 12 + nmid, 12 + nmid, 12, 0]
    for c in range(5):
        k(f"s_waitcnt vmcnt({waits[c]})\ns_barrier")
        k.stamp()
        if 1 <= c <= 2:
            issue(c + 2)
    k.stamp()

def gemm_mm(k, colsum, gb):
    k(f"""
    v_lshlrev_b32 v6, 8, v3
    v_and_b32 v7, 3, v3
    v_xor_b32 v7, v7, v4
    v_lshl_add_u32 v6, v7, 4, v6
    v_add_u32 v6, {gb}, v6
    v_and_b32 v7, 12, v3
    """)
    for ks in range(4):
        k(f"v_xor_b32 v8, {4*ks}, v7\nv_lshl_add_u32 v{VA_RD+ks}, v8, 4, v6")
    k(f"""
    v_lshrrev_b32 v12, 2, v1
    v_and_b32 v12, 3, v12
    v_lshl_add_u32 v12, v4, 3, v12
    v_and_b32 v13, 3, v1
    s_lshl_b32 s48, s18, 5
    s_add_u32 s47, s48, {gb + W_OFF}
    v_mul_u32_u24 v{VW_RD}, 160, v12
    v_lshl_add_u32 v{VW_RD}, v13, 3, v{VW_RD}
    v_add_u32 v{VW_RD}, s47, v{VW_RD}
    """)
    if colsum:
        for i in range(4):
            k(f"v_mov_b32 v{ONES+i}, 0x3f803f80")
    k.stamp()
    def reads(ks, buf):
        for h in range(2):
            k(f"ds_read_b64_tr_b16 {v2(WF+4*buf+2*h)}, v{VW_RD} offset:{ks*5120 + h*640}")
        for rf in range(4):
            k(f"ds_read_b128 {v4(XF+16*buf+4*rf)}, v{VA_RD+ks} offset:{rf*4096}")
    for c in range(5):
        k("s_barrier")
        k.stamp()
        reads(0, 0)
        for ks in range(4):
            if ks < 3:
                reads(ks + 1, (ks + 1) & 1)
                k("s_waitcnt lgkmcnt(6)")
            else:
                k("s_waitcnt lgkmcnt(0)")
                if c < 4:
                    d = SLOT if (c % 3) != 2 else -2 * SLOT
                    for r in [VA_RD + i for i in range(4)] + [VW_RD]:
                        k(f"v_add_u32 v{r}, {d & 0xffffffff}, v{r}")
            first = (c == 0 and ks == 0)
            b = ks & 1
            for rf in range(4):
                a = ACC + 4 * rf
                k(f"v_mfma_f32_16x16x32_bf16 {v4(a)}, {v4(WF+4*b)}, {v4(XF+16*b+4*rf)}, {'0' if first else v4(a)}")
            if colsum:
                k(f"v_mfma_f32_16x16x32_bf16 {v4(CS)}, {v4(WF+4*b)}, {v4(ONES)}, {'0' if first else v4(CS)}")
    k.stamp()

def gen_k2():
    k = K("attn_kernel", 160)
    GB = 53248
    QB, EXS = 163840 - 10240, 163840 - 10240 - 512
    QF1, QF2, SA, SB, O, P = 8, 12, 16, 32, 48, 64
    KF = [72, 80]; VF = [88, 96]
    AK, AK2, AV = 104, 105, 106
    T = 108
    KMR = 126
    CP, CPD = 128, 148
    THRESH = 50.0
    k("""
    s_cmp_ge_u32 s2, 256
    s_cbranch_scc1 attn_kernel_exit
    s_load_dwordx4 s[4:7], s[0:1], 0
    s_load_dwordx2 s[12:13], s[0:1], 96
    s_load_dwordx2 s[14:15], s[0:1], 32
    s_load_dwordx4 s[8:11], s[0:1], 56
    """)
    gemm_ids(k)
    k("s_waitcnt lgkmcnt(0)")
    k.stamp()
    k.srd(20, 4, MATB)
    k("""
    s_mul_i32 s44, s16, 160
    s_add_u32 s24, s6, s44
    s_addc_u32 s25, s7, 0
    s_sub_u32 s26, 819200, s44
    s_mov_b32 s27, 0x00020000
    """)
    k.srd_off(28, 12, WS_KM, 1024)
    k.srd_off(56, 12, WS_KV, 163840)
    k(f"""
    v_lshlrev_b32 v7, 2, v1
    buffer_load_dword v{KMR}, v7, s[28:31], 0 offen
    buffer_load_dword v{KMR+1}, v7, s[28:31], 0 offen offset:256
    buffer_load_dword v{CP}, v7, s[28:31], 0 offen offset:512
    buffer_load_dword v{CP+1}, v7, s[28:31], 0 offen offset:768
    """)
    k(f"v_lshlrev_b32 v{CPD+4}, 4, v1\ns_lshl_b32 s52, s18, 10\ns_add_u32 s52, s52, 49152")
    def dma():
        k(f"s_mov_b32 m0, s52\ns_nop 0\nbuffer_load_dwordx4 v{CPD+4}, s[56:59], s52 offen lds\ns_add_u32 s52, s52, 8192")
    n0 = k.nst
    k("s_cmp_lt_u32 s18, 5\ns_cbranch_scc1 attn_kernel_mm")
    for lw in range(3):
        if lw < 2:
            k(f"s_cmp_eq_u32 s18, {5+lw}\ns_cbranch_scc0 attn_kernel_ld{lw+1}")
        def mid():
            for i in range(16):
                o = (lw * 16 + i) * 1024
                k(f"s_mov_b32 m0, {o}\ns_mov_b32 s46, {o}\nbuffer_load_dwordx4 v{CPD+4}, s[56:59], s46 offen lds")
        k.nst = n0
        gemm_loader(k, lw, False, GB, 128 * 1280, mid, 16)
        k("s_branch attn_kernel_qrd")
        if lw < 2:
            k.label(f"ld{lw+1}")
    k.label("mm")
    k.nst = n0
    k.srd_off(36, 12, WS_Q, 16384)
    k("s_lshl_b32 s46, s17, 9\nv_lshlrev_b32 v9, 3, v3")
    for rf in range(4):
        k(f"buffer_load_dwordx2 {v2(ST+2*rf)}, v9, s[36:39], s46 offen offset:{rf*128}")
    gemm_mm(k, True, GB)
    k(f"""
    v_mul_u32_u24 v10, 160, v3
    v_lshl_add_u32 v10, v4, 3, v10
    s_lshl_b32 s46, s18, 5
    s_add_u32 s46, s46, {QB}
    v_add_u32 v10, s46, v10
    s_waitcnt vmcnt(0)
    s_nop 3
    """)
    for rf in range(4):
        a = ACC + 4 * rf
        k(f"v_mul_f32 v14, {f32hex(QSCALE)}, v{ST+2*rf+1}\nv_mul_f32 v15, {f32hex(QSCALE)}, v{ST+2*rf}")
        for r in range(4):
            k(f"v_mul_f32 v{a+r}, v{a+r}, v14\nv_fma_f32 v{a+r}, -v{CS+r}, v15, v{a+r}")
        k(f"v_cvt_pk_bf16_f32 v{a}, v{a}, v{a+1}\nv_cvt_pk_bf16_f32 v{a+1}, v{a+2}, v{a+3}")
        k(f"ds_write_b64 v10, {v2(a)} offset:{rf*2560}")
    k("s_waitcnt lgkmcnt(0)")
    k.label("qrd")
    k("s_barrier")
    k.stamp()
    k(f"""
    v_and_b32 v3, 31, v1
    v_lshrrev_b32 v4, 5, v1
    v_lshrrev_b32 v6, 2, v3
    v_and_b32 v7, 3, v3
    v_mul_u32_u24 v{T+8}, 160, v6
    v_mul_u32_u24 v7, 40, v7
    v_add_u32 v{T+8}, v{T+8}, v7
    s_mul_i32 s46, s18, 1280
    s_add_u32 s46, s46, {QB}
    v_add_u32 v{T+8}, s46, v{T+8}
    v_lshl_add_u32 v{T+9}, v4, 4, v{T+8}
    ds_read_b64 {v2(QF1)}, v{T+9}
    ds_read_b64 {v2(QF1+2)}, v{T+9} offset:8
    ds_read_b64 {v2(QF2)}, v{T+8} offset:32
    v_mul_u32_u24 v5, 1280, v6
    v_add_u32 v5, v5, v7
    s_lshl_b32 s19, s17, 6
    s_lshl_b32 s46, s18, 3
    s_add_u32 s19, s19, s46
    s_mul_i32 s19, s19, 1280
    s_mul_i32 s46, s16, 160
    s_add_u32 s19, s19, s46
    v_lshlrev_b32 v{AK}, 4, v1
    v_lshlrev_b32 v{AK2}, 3, v3
    v_mul_u32_u24 v{AV}, 320, v4
    v_lshl_add_u32 v{AV}, v3, 4, v{AV}
    s_mov_b32 s40, 0x000fffff
    s_mov_b32 s41, 0x000fffff
    v_max_f32 v{T}, v{KMR}, v{KMR+1}
    v_max_f32 v{T+15}, v{CP}, v{CP+1}
    """)
    k.srd_off(32, 12, WS_O, MATB)
    for b in range(2):
        k(f"v_mov_b32 v{KF[b]+6}, 0x3f803f80\nv_mov_b32 v{KF[b]+7}, 0x00003f80")
    k(f"v_cmp_eq_u32 vcc, 20, v3\nv_mov_b32 v{T+2}, 0x3f803f80\ns_nop 1\nv_cndmask_b32 v{T+2}, 0, v{T+2}, vcc")
    for b in range(2):
        for r in range(8):
            k(f"v_mov_b32 v{VF[b]+r}, v{T+2}")
    for r in range(16):
        k(f"v_mov_b32 v{O+r}, 0")
    for r in range(4, 8):
        k(f"v_mov_b32 v{P+r}, 0")
    k(f"""
    s_lshl_b32 s45, s2, 3
    s_add_u32 s45, s45, s18
    s_lshl_b32 s45, s45, 6
    v_add_u32 v{T+8}, s45, v1
    s_mov_b32 s46, 0x12F684C
    s_mov_b32 s47, 0x3333334
    s_mov_b32 s48, 0x1999999A
    v_mov_b32 v{T+9}, 0x7fffffff
    """)
    for rnd in range(2):
        k(f"""
        v_add_u32 v{T+10}, {131072*rnd}, v{T+8}
        v_mul_hi_u32 v{T+11}, v{T+10}, s46
        v_mul_u32_u24 v{T+12}, 216, v{T+11}
        v_sub_u32 v{T+12}, v{T+10}, v{T+12}
        v_lshrrev_b32 v{T+13}, 1, v{T+12}
        v_mul_u32_u24 v{T+13}, 40960, v{T+13}
        v_lshl_add_u32 v{T+13}, v{T+11}, 5, v{T+13}
        v_and_b32 v{T+12}, 1, v{T+12}
        v_lshl_add_u32 v{T+13}, v{T+12}, 4, v{T+13}
        v_cmp_gt_u32 vcc, 138240, v{T+10}
        s_nop 1
        v_cndmask_b32 v{CPD+rnd}, v{T+9}, v{T+13}, vcc
        """)
    k(f"""
    v_mul_hi_u32 v{T+11}, v{T+8}, s47
    v_mul_u32_u24 v{T+12}, 80, v{T+11}
    v_sub_u32 v{T+12}, v{T+8}, v{T+12}
    v_mul_hi_u32 v{T+13}, v{T+12}, s48
    v_mul_u32_u24 v{T+14}, 10, v{T+13}
    v_sub_u32 v{T+14}, v{T+12}, v{T+14}
    v_mul_u32_u24 v{T+13}, 102400, v{T+13}
    v_mul_u32_u24 v{T+11}, 160, v{T+11}
    v_add_u32 v{T+13}, v{T+13}, v{T+11}
    v_lshl_add_u32 v{T+13}, v{T+14}, 4, v{T+13}
    v_cmp_gt_u32 vcc, 51200, v{T+8}
    s_nop 1
    v_cndmask_b32 v{CPD+2}, v{T+9}, v{T+13}, vcc
    v_lshlrev_b32 v{CPD+3}, 4, v{T+8}
    s_waitcnt lgkmcnt(0)
    v_cmp_eq_u32 vcc, 0, v4
    s_nop 1
    v_cndmask_b32 v{QF2}, 0, v{QF2}, vcc
    v_cndmask_b32 v{QF2+1}, 0, v{QF2+1}, vcc
    v_mov_b32 v{QF2+2}, 0
    v_mov_b32 v{QF2+3}, 0
    v_mov_b32 v{T+3}, 0
    """)
    if os.environ.get("DBGQ"):
        k.srd_off(36, 12, 0x3000000, MATB)
        k(f"v_lshl_add_u32 v6, v4, 4, v5\nbuffer_store_dwordx4 {v4(QF1)}, v6, s[36:39], s19 offen\ns_mov_b32 exec_hi, 0\nbuffer_store_dwordx2 {v2(QF2)}, v5, s[36:39], s19 offen offset:32\ns_mov_b32 exec_hi, -1\ns_waitcnt vmcnt(0)")
    for r in range(4):
        k(f"v_dot2_f32_bf16 v{T+3}, v{QF1+r}, v{QF1+r}, v{T+3}")
    for r in range(2):
        k(f"v_dot2_f32_bf16 v{T+3}, v{QF2+r}, v{QF2+r}, v{T+3}")
    for off in ("0x041F", "0x081F", "0x101F", "0x201F", "0x401F"):
        k(f"ds_swizzle_b32 v{T+1}, v{T} offset:{off}\nds_swizzle_b32 v{T+16}, v{T+15} offset:{off}\ns_waitcnt lgkmcnt(0)\nv_max_f32 v{T}, v{T}, v{T+1}\nv_max_f32 v{T+15}, v{T+15}, v{T+16}")
    k(f"""
    v_mov_b32 v{T+1}, v{T+15}
    v_mov_b32 v{T+2}, v{T+15}
    s_nop 1
    v_permlane32_swap_b32 v{T+1}, v{T+2}
    s_nop 1
    v_max_f32 v{T+15}, v{T+1}, v{T+2}
    v_mov_b32 v{T+1}, v{T}
    v_mov_b32 v{T+2}, v{T}
    v_mov_b32 v{T+4}, v{T+3}
    v_mov_b32 v{T+5}, v{T+3}
    s_nop 1
    v_permlane32_swap_b32 v{T+1}, v{T+2}
    v_permlane32_swap_b32 v{T+4}, v{T+5}
    s_nop 1
    v_max_f32 v{T}, v{T+1}, v{T+2}
    v_add_f32 v{T}, v{T}, v{T+15}
    v_add_f32 v{T+3}, v{T+4}, v{T+5}
    v_mul_f32 v{T+3}, v{T+3}, v{T}
    v_sqrt_f32 v{T+3}, v{T+3}
    s_nop 0
    v_mul_f32 v{T+3}, {f32hex(1.01)}, v{T+3}
    v_mov_b32 v{T+6}, {f32hex(THRESH)}
    v_cmp_nle_f32 vcc, v{T+3}, v{T+6}
    s_barrier
    s_cbranch_vccnz attn_kernel_slow
    """)
    def set_m():
        k(f"""
        v_xor_b32 v{T+3}, 0x80000000, v{T+3}
        v_and_b32 v{T+4}, 0xffff0000, v{T+3}
        v_sub_f32 v{T+5}, v{T+3}, v{T+4}
        v_and_b32 v{T+6}, 0xffff0000, v{T+5}
        v_sub_f32 v{T+5}, v{T+5}, v{T+6}
        v_lshrrev_b32 v{T+4}, 16, v{T+4}
        v_or_b32 v{T+4}, v{T+4}, v{T+6}
        v_lshrrev_b32 v{T+5}, 16, v{T+5}
        v_cmp_eq_u32 vcc, 0, v4
        s_nop 1
        v_cndmask_b32 v{QF2+2}, 0, v{T+4}, vcc
        v_cndmask_b32 v{QF2+3}, 0, v{T+5}, vcc
        """)
    def kreads(b, blk):
        k(f"ds_read_b128 {v4(KF[b])}, v{AK} offset:{blk*2560}\nds_read_b64 {v2(KF[b]+4)}, v{AK2} offset:{blk*2560+1024}")
    def vreads(b, blk):
        k(f"s_mov_b64 exec, s[40:41]\nds_read_b128 {v4(VF[b])}, v{AV} offset:{blk*2560+1280}\nds_read_b128 {v4(VF[b]+4)}, v{AV} offset:{blk*2560+1920}\ns_mov_b64 exec, -1")
    def pipe_start():
        kreads(0, 0); kreads(1, 1); vreads(0, 0)
        k("s_waitcnt lgkmcnt(4)")
        k(f"v_mfma_f32_32x32x16_bf16 {v16(SA)}, {v4(KF[0])}, {v4(QF1)}, 0")
        k(f"v_mfma_f32_32x32x16_bf16 {v16(SA)}, {v4(KF[0]+4)}, {v4(QF2)}, {v16(SA)}")
        k("s_nop 7\ns_nop 3")
    def E(Sc, a, b):
        for r in range(a, b):
            k(f"v_exp_f32 v{Sc+r}, v{Sc+r}")
    def C(Sc, a, b):
        for p in range(a, b):
            k(f"v_cvt_pk_bf16_f32 v{P+p}, v{Sc+2*p}, v{Sc+2*p+1}")
    def iteration(j, ndma):
        par = j & 1
        Sc, Sn = (SA, SB) if par == 0 else (SB, SA)
        k("s_waitcnt lgkmcnt(0)")
        E(Sc, 0, 2)
        k(f"v_mfma_f32_32x32x16_bf16 {v16(O)}, {v4(VF[1-par]+4)}, {v4(P+4)}, {v16(O)}")
        kreads(par, j + 2)
        vreads(1 - par, j + 1)
        E(Sc, 2, 5)
        k(f"v_mfma_f32_32x32x16_bf16 {v16(Sn)}, {v4(KF[1-par])}, {v4(QF1)}, 0")
        E(Sc, 5, 8); C(Sc, 0, 4); E(Sc, 8, 9)
        k(f"v_mfma_f32_32x32x16_bf16 {v16(Sn)}, {v4(KF[1-par]+4)}, {v4(QF2)}, {v16(Sn)}")
        if ndma >= 1: dma()
        E(Sc, 9, 12)
        k(f"v_mfma_f32_32x32x16_bf16 {v16(O)}, {v4(VF[par])}, {v4(P)}, {v16(O)}")
        if ndma >= 2: dma()
        E(Sc, 12, 16); C(Sc, 4, 8)
    def group(with_dma):
        for j in range(8):
            iteration(j, (2 if j < 7 else 0) if with_dma else 0)
        k(f"v_add_u32 v{AK}, 20480, v{AK}\nv_add_u32 v{AK2}, 20480, v{AK2}\nv_add_u32 v{AV}, 20480, v{AV}")
    def copy_loads():
        k.srd(36, 8, 640 * 3456)
        k(f"buffer_load_dwordx4 {v4(CP)}, v{CPD+3}, s[36:39], 0 offen\ns_mov_b32 s45, {131072*16}\nbuffer_load_dwordx4 {v4(CP+4)}, v{CPD+3}, s[36:39], s45 offen")
        k.srd(36, 10, 640 * 3456)
        k(f"buffer_load_dwordx4 {v4(CP+8)}, v{CPD+3}, s[36:39], 0 offen\nbuffer_load_dwordx4 {v4(CP+12)}, v{CPD+3}, s[36:39], s45 offen")
        k.srd(36, 14, 819200)
        k(f"buffer_load_dwordx4 {v4(CP+16)}, v{CPD+3}, s[36:39], 0 offen")
    set_m()
    k.stamp()
    pipe_start()
    group(True)
    k.stamp()
    k("s_waitcnt vmcnt(0)\ns_barrier")
    k.stamp()
    copy_loads()
    k("s_mov_b32 s42, 7\ns_branch attn_kernel_loop")
    k.label("slow")
    for i in range(14):
        dma()
    k("s_waitcnt vmcnt(0)\ns_barrier")
    copy_loads()
    k(f"v_mov_b32 v{T+3}, 0xff800000\ns_mov_b32 s42, 64")
    k.label("maxloop")
    kreads(0, 0)
    k(f"v_add_u32 v{AK}, 2560, v{AK}\nv_add_u32 v{AK2}, 2560, v{AK2}\ns_waitcnt lgkmcnt(0)")
    k(f"v_mfma_f32_32x32x16_bf16 {v16(SA)}, {v4(KF[0])}, {v4(QF1)}, 0")
    k(f"v_mfma_f32_32x32x16_bf16 {v16(SA)}, {v4(KF[0]+4)}, {v4(QF2)}, {v16(SA)}")
    k("s_nop 15\ns_nop 3")
    for r in range(0, 16, 2):
        k(f"v_max3_f32 v{T+3}, v{SA+r}, v{SA+r+1}, v{T+3}")
    k("s_sub_u32 s42, s42, 1\ns_cmp_lg_u32 s42, 0\ns_cbranch_scc1 attn_kernel_maxloop")
    k(f"""
    v_mov_b32 v{T+4}, v{T+3}
    v_mov_b32 v{T+5}, v{T+3}
    s_nop 1
    v_permlane32_swap_b32 v{T+4}, v{T+5}
    s_nop 1
    v_max_f32 v{T+3}, v{T+4}, v{T+5}
    v_lshlrev_b32 v{AK}, 4, v1
    v_lshlrev_b32 v{AK2}, 3, v3
    """)
    set_m()
    pipe_start()
    k("s_mov_b32 s42, 8")
    k.label("loop")
    group(False)
    k("s_sub_u32 s42, s42, 1\ns_cmp_lg_u32 s42, 0\ns_cbranch_scc1 attn_kernel_loop")
    k.stamp()
    k("s_nop 1")
    k(f"v_mfma_f32_32x32x16_bf16 {v16(O)}, {v4(VF[1]+4)}, {v4(P+4)}, {v16(O)}")
    k("s_waitcnt vmcnt(0)")
    k.srd_off(36, 12, WS_FW, NFF * 40960)
    k(f"""
    s_mov_b32 s45, 20480
    buffer_store_dwordx4 {v4(CP)}, v{CPD}, s[36:39], 0 offen
    buffer_store_dwordx4 {v4(CP+4)}, v{CPD+1}, s[36:39], 0 offen
    buffer_store_dwordx4 {v4(CP+8)}, v{CPD}, s[36:39], s45 offen
    buffer_store_dwordx4 {v4(CP+12)}, v{CPD+1}, s[36:39], s45 offen
    """)
    k.srd_off(36, 12, WS_WO, 819200)
    k(f"buffer_store_dwordx4 {v4(CP+16)}, v{CPD+2}, s[36:39], 0 offen")
    k("s_nop 7")
    k(f"""
    v_mov_b32 v{T}, v{O+8}
    v_mov_b32 v{T+1}, v{O+8}
    s_nop 1
    v_permlane32_swap_b32 v{T}, v{T+1}
    s_nop 1
    v_rcp_f32 v{T+1}, v{T+1}
    s_nop 0
    """)
    for r in range(12):
        k(f"v_mul_f32 v{O+r}, v{O+r}, v{T+1}")
    for p in range(6):
        k(f"v_cvt_pk_bf16_f32 v{P+p}, v{O+2*p}, v{O+2*p+1}")
    k(f"""
    v_lshl_add_u32 v6, v4, 3, v5
    buffer_store_dwordx2 {v2(P)}, v6, s[32:35], s19 offen
    buffer_store_dwordx2 {v2(P+2)}, v6, s[32:35], s19 offen offset:16
    s_mov_b32 exec_hi, 0
    buffer_store_dwordx2 {v2(P+4)}, v6, s[32:35], s19 offen offset:32
    """)
    k.finish(1)
    return k, "grid=(256,1,1) block=(512,1,1) lds=163840"

def gen_k3():
    k = K("oproj_kernel", 128)
    XR, WR = ST, ST + 8
    EXS = 3 * SLOT
    k("""
    s_cmp_ge_u32 s2, 256
    s_cbranch_scc1 oproj_kernel_exit
    s_load_dwordx2 s[4:5], s[0:1], 0
    s_load_dwordx2 s[12:13], s[0:1], 96
    s_load_dwordx2 s[14:15], s[0:1], 48
    """)
    gemm_ids(k)
    k("s_waitcnt lgkmcnt(0)")
    k.stamp()
    k.srd_off(20, 12, WS_O, MATB)
    k(f"""
    s_mul_i32 s44, s16, 102400
    s_add_u32 s44, s44, {WS_WO}
    s_add_u32 s24, s12, s44
    s_addc_u32 s25, s13, 0
    s_mov_b32 s26, 102400
    s_mov_b32 s27, 0x00020000
    """)
    k.srd(28, 4, MATB)
    k.srd(32, 14, 1280)
    k.srd_off(36, 12, WS_H, MATB)
    k.srd_off(40, 12, WS_ST, 32768)
    n0 = k.nst
    k("""
    s_cmp_lt_u32 s18, 5
    s_cbranch_scc0 oproj_kernel_idle
    s_lshl_b32 s45, s17, 6
    v_add_u32 v5, s45, v3
    v_mul_u32_u24 v10, 1280, v5
    v_lshl_add_u32 v10, v4, 3, v10
    v_lshlrev_b32 v11, 3, v4
    s_mul_i32 s59, s16, 160
    s_lshl_b32 s46, s18, 5
    s_add_u32 s59, s59, s46
    s_mov_b32 s44, s59
    """)
    for rf in range(4):
        k(f"buffer_load_dwordx2 {v2(XR+2*rf)}, v10, s[28:31], s44 offen\ns_add_u32 s44, s44, 20480")
    k(f"buffer_load_dwordx2 {v2(WR)}, v11, s[32:35], s59 offen")
    gemm_mm(k, False, 0)
    k("s_waitcnt vmcnt(0)")
    k("s_nop 7\nv_mov_b32 v15, 0x3f803f80\ns_mov_b32 s44, s59")
    for rf in range(4):
        a = ACC + 4 * rf
        S = TMP + 4 * rf
        k(f"v_cvt_pk_bf16_f32 v{a}, v{a}, v{a+1}\nv_cvt_pk_bf16_f32 v{a+1}, v{a+2}, v{a+3}")
        k(f"v_mov_b32 v{S}, 0\nv_mov_b32 v{S+1}, 0\nv_mov_b32 v{S+2}, 0\nv_mov_b32 v{S+3}, 0")
        for h in range(2):
            k(f"""
            v_lshlrev_b32 v12, 16, v{a+h}
            v_and_b32 v13, 0xffff0000, v{a+h}
            v_lshlrev_b32 v6, 16, v{XR+2*rf+h}
            v_and_b32 v7, 0xffff0000, v{XR+2*rf+h}
            v_add_f32 v12, v12, v6
            v_add_f32 v13, v13, v7
            v_cvt_pk_bf16_f32 v{a+h}, v12, v13
            """)
            k(f"v_dot2_f32_bf16 v{S}, v{a+h}, v15, v{S}\nv_dot2_f32_bf16 v{S+1}, v{a+h}, v{a+h}, v{S+1}\nv_dot2_f32_bf16 v{S+2}, v{a+h}, v{WR+h}, v{S+2}")
        k(f"buffer_store_dwordx2 {v2(a)}, v10, s[36:39], s44 offen\ns_add_u32 s44, s44, 20480")
    k("s_nop 3")
    red_g(k, [TMP + 4 * rf + i for rf in range(4) for i in range(3)], 16)
    k(f"""
    v_lshlrev_b32 v14, 4, v3
    s_lshl_b32 s46, s18, 10
    s_add_u32 s46, s46, {EXS}
    v_add_u32 v14, s46, v14
    s_mov_b64 exec, 0xffff
    """)
    for rf in range(4):
        k(f"ds_write_b128 v14, {v4(TMP+4*rf)} offset:{rf*256}")
    k("s_mov_b64 exec, -1\ns_waitcnt lgkmcnt(0)\ns_barrier\ns_branch oproj_kernel_end")
    k.label("idle")
    for lw in range(3):
        if lw < 2:
            k(f"s_cmp_eq_u32 s18, {5+lw}\ns_cbranch_scc0 oproj_kernel_ld{lw+1}")
        k.nst = n0
        gemm_loader(k, lw, True, 0, 20480)
        if lw < 2:
            k("s_barrier\ns_branch oproj_kernel_end")
            k.label(f"ld{lw+1}")
    k(f"""
    s_barrier
    s_cmp_eq_u32 s18, 7
    s_cbranch_scc0 oproj_kernel_end
    v_lshlrev_b32 v14, 2, v1
    v_add_u32 v9, {EXS}, v14
    """)
    for w in range(5):
        for q in range(4):
            k(f"ds_read_b32 v{16+4*w+q}, v9 offset:{w*1024+q*256}")
    k("s_lshl_b32 s44, s17, 10\ns_waitcnt lgkmcnt(0)")
    for q in range(4):
        k(f"v_add_f32 v{16+q}, v{16+q}, v{20+q}\nv_add_f32 v{24+q}, v{24+q}, v{28+q}\nv_add_f32 v{16+q}, v{16+q}, v{24+q}\nv_add_f32 v{16+q}, v{16+q}, v{32+q}")
    for q in range(4):
        k(f"buffer_atomic_add_f32 v{16+q}, v14, s[40:43], s44 offen offset:{q*256}")
    k.finish(2)
    return k, "grid=(256,1,1) block=(512,1,1) lds=%d" % (3 * SLOT + 5120)

def row_stats(k, s0, s1, s2, mean, rstd, r=None, wsum=None):
    k(f"""
    v_mul_f32 v{mean}, {f32hex(1/640)}, v{s0}
    v_mul_f32 v{rstd}, {f32hex(1/640)}, v{s1}
    v_fma_f32 v{rstd}, -v{mean}, v{mean}, v{rstd}
    v_max_f32 v{rstd}, 0, v{rstd}
    v_add_f32 v{rstd}, {f32hex(1e-5)}, v{rstd}
    v_rsq_f32 v{rstd}, v{rstd}
    """)
    if r is not None:
        k(f"v_fma_f32 v{r}, -v{mean}, v{wsum}, v{s2}\nv_mul_f32 v{r}, v{r}, v{rstd}")

def gen_k4():
    k = K("ffna_kernel", 128)
    k(f"""
    s_cmp_ge_u32 s2, {NFF+128}
    s_cbranch_scc1 ffna_kernel_exit
    s_load_dwordx4 s[8:11], s[0:1], 72
    s_load_dwordx2 s[12:13], s[0:1], 96
    s_waitcnt lgkmcnt(0)
    """)
    k.stamp()
    k.srd_off(20, 12, WS_H, MATB)
    k.srd_off(24, 12, WS_ST, 32768)
    k(f"s_cmp_lt_u32 s2, {NFF}\ns_cbranch_scc1 ffna_kernel_ffn")
    k.srd(28, 10, MATB)
    k(f"""
    s_sub_u32 s16, s2, {NFF}
    s_add_u32 s17, s16, {NFF % 8}
    s_and_b32 s17, s17, 7
    s_lshl_b32 s17, s17, 4
    s_lshr_b32 s16, s16, 3
    s_add_u32 s16, s16, s17
    s_mul_i32 s17, s16, 20480
    s_lshl_b32 s18, s16, 8
    v_lshlrev_b32 v1, 4, v0
    """)
    for i in range(5):
        k(f"buffer_load_dwordx4 {v4(16+4*i)}, v1, s[20:23], s17 offen offset:0" if i == 0 else
          f"v_add_u32 v{2+i}, {4096*i}, v1\nbuffer_load_dwordx4 {v4(16+4*i)}, v{2+i}, s[20:23], s17 offen")
    for i in range(5):
        k(f"""
        v_add_u32 v8, {256*i}, v0
        v_mul_u32_u24 v8, 3277, v8
        v_lshrrev_b32 v8, 18, v8
        v_lshlrev_b32 v8, 4, v8
        buffer_load_dwordx2 {v2(40+2*i)}, v8, s[24:27], s18 offen
        """)
    k("s_waitcnt vmcnt(0)")
    for i in range(5):
        row_stats(k, 40 + 2 * i, 41 + 2 * i, None, 52, 53)
        k("s_nop 0\nv_mul_f32 v52, v52, v53")
        for d in range(4):
            r = 16 + 4 * i + d
            k(f"""
            v_lshlrev_b32 v54, 16, v{r}
            v_and_b32 v55, 0xffff0000, v{r}
            v_fma_f32 v56, v54, v53, -v52
            v_fma_f32 v57, v55, v53, -v52
            v_cvt_pk_bf16_f32 v56, v56, v57
            v_lshlrev_b32 v57, 16, v56
            v_and_b32 v56, 0xffff0000, v56
            v_add_f32 v54, v54, v57
            v_add_f32 v55, v55, v56
            v_cvt_pk_bf16_f32 v{r}, v54, v55
            """)
        k(f"buffer_store_dwordx4 {v4(16+4*i)}, v{1 if i == 0 else 2+i}, s[28:31], s17 offen")
    k("s_branch ffna_kernel_end")
    k.label("ffn")
    G, U, D, SS, HX, AC = 16, 36, 56, 88, 120, 96
    k.srd_off(28, 12, WS_FW, NFF * 40960)
    k.srd(36, 8, 1728 * 1280)
    k.srd_off(40, 12, WS_SEL, 64)
    k.srd_off(44, 12, WS_YP, NFF * 2560)
    k("v_lshlrev_b32 v1, 4, v0")
    for i in range(8):
        k(f"v_add_u32 v2, {4096*i}, v1\nbuffer_load_dwordx3 v[{SS+4*i}:{SS+2+4*i}], v2, s[24:27], 0 offen")
    k("v_mov_b32 v2, 0\nbuffer_load_dword v125, v2, s[40:43], 0 offen offset:32")
    k("s_mul_i32 s16, s2, 40960")
    for i in range(5):
        k(f"s_add_u32 s17, s16, {i*4096}\nbuffer_load_dwordx4 {v4(G+4*i)}, v1, s[28:31], s17 offen\ns_add_u32 s17, s16, {20480+i*4096}\nbuffer_load_dwordx4 {v4(U+4*i)}, v1, s[28:31], s17 offen")
    k.stamp()
    k("s_waitcnt vmcnt(10)")
    k.stamp()
    k("v_mov_b32 v7, 0")
    for i in range(8):
        b = SS + 4 * i
        row_stats(k, b, b + 1, b + 2, 8, 9, 10, 125)
        k(f"""
        v_ashrrev_i32 v11, 31, v10
        v_or_b32 v11, 0x80000000, v11
        v_xor_b32 v11, v11, v10
        v_and_b32 v11, 0xfffff800, v11
        v_sub_u32 v12, {2047 - 256*i}, v0
        v_or_b32 v11, v11, v12
        v_max_u32 v7, v7, v11
        """)
    for off in ("0x041F", "0x081F", "0x101F", "0x201F", "0x401F"):
        k(f"ds_swizzle_b32 v8, v7 offset:{off}\ns_waitcnt lgkmcnt(0)\nv_max_u32 v7, v7, v8")
    k("""
    v_mov_b32 v8, v7
    v_mov_b32 v9, v7
    s_nop 1
    v_permlane32_swap_b32 v8, v9
    s_nop 1
    v_max_u32 v7, v8, v9
    v_lshrrev_b32 v8, 6, v0
    v_lshlrev_b32 v8, 2, v8
    ds_write_b32 v8, v7
    s_waitcnt lgkmcnt(0)
    s_barrier
    v_mov_b32 v8, 0
    ds_read_b128 v[8:11], v8
    s_waitcnt lgkmcnt(0)
    v_max_u32 v7, v8, v9
    v_max3_u32 v7, v10, v11, v7
    v_and_b32 v7, 0x7ff, v7
    v_sub_u32 v7, 2047, v7
    s_nop 0
    v_readfirstlane_b32 s18, v7
    s_nop 3
    s_lshl_b32 s19, s18, 4
    s_mul_i32 s50, s18, 1280
    """)
    k(f"v_mov_b32 v2, 0\nbuffer_load_dwordx3 v[{SS}:{SS+2}], v2, s[24:27], s19 offen\nv_and_b32 v8, 0xfe, v0")
    for i in range(5):
        k(f"buffer_load_ushort v{HX+i}, v8, s[20:23], s50 offen offset:{256*i}")
    k("v_lshlrev_b32 v6, 3, v0\ns_mul_i32 s16, s2, 20480\nv_cmp_gt_u32 vcc, 160, v0\nv_mov_b32 v2, 0x40000000\ns_nop 1\nv_cndmask_b32 v6, v2, v6, vcc")
    for j in range(16):
        k(f"s_add_u32 s17, s16, {j*1280}\nbuffer_load_dwordx2 {v2(D+2*j)}, v6, s[36:39], s17 offen")
    k.stamp()
    k("s_waitcnt vmcnt(21)")
    row_stats(k, SS, SS + 1, SS + 2, 8, 9, 10, 125)
    k("s_nop 0\nv_mul_f32 v11, v8, v9\ns_waitcnt vmcnt(16)")
    for i in range(5):
        k(f"v_lshlrev_b32 v{HX+i}, 16, v{HX+i}\nv_fma_f32 v{HX+i}, v{HX+i}, v9, -v11\nv_cvt_pk_bf16_f32 v{HX+i}, v{HX+i}, v{HX+i}\nv_lshlrev_b32 v{HX+i}, 16, v{HX+i}")
    k.stamp()
    for r in range(16):
        k(f"v_mov_b32 v{AC+r}, 0")
    for i in range(5):
        for (src, acc) in ((G, AC), (U, AC + 8)):
            for d in range(4):
                s = src + 4 * i + d
                k(f"v_lshlrev_b32 v12, 16, v{s}\nv_and_b32 v13, 0xffff0000, v{s}\nv_fmac_f32 v{acc+2*d}, v12, v{HX+i}\nv_fmac_f32 v{acc+2*d+1}, v13, v{HX+i}")
    k.stamp()
    for ror in (8, 4, 2):
        k("s_nop 1")
        for r in range(16):
            k(f"v_add_f32_dpp v{16+r}, v{AC+r}, v{AC+r} row_ror:{ror} row_mask:0xf bank_mask:0xf")
        for r in range(16):
            k(f"v_mov_b32 v{AC+r}, v{16+r}")
    k(f"""
    v_lshrrev_b32 v12, 4, v0
    v_lshlrev_b32 v12, 7, v12
    v_and_b32 v13, 1, v0
    v_lshl_add_u32 v12, v13, 6, v12
    s_mov_b32 s48, 0x00030003
    s_mov_b32 s49, 0x00030003
    s_mov_b64 exec, s[48:49]
    ds_write_b128 v12, v[{AC}:{AC+3}] offset:64
    ds_write_b128 v12, v[{AC+4}:{AC+7}] offset:80
    ds_write_b128 v12, v[{AC+8}:{AC+11}] offset:96
    ds_write_b128 v12, v[{AC+12}:{AC+15}] offset:112
    s_mov_b64 exec, -1
    s_waitcnt lgkmcnt(0)
    s_barrier
    """)
    k("""
    v_and_b32 v13, 7, v0
    v_bfe_u32 v12, v0, 3, 1
    v_lshlrev_b32 v12, 6, v12
    v_lshl_add_u32 v12, v13, 2, v12
    """)
    for rr in range(16):
        k(f"ds_read_b32 v{16+rr}, v12 offset:{64+128*rr}\nds_read_b32 v{32+rr}, v12 offset:{96+128*rr}")
    k("s_waitcnt lgkmcnt(0)")
    for st in (8, 4, 2, 1):
        for rr in range(st):
            k(f"v_add_f32 v{16+rr}, v{16+rr}, v{16+rr+st}\nv_add_f32 v{32+rr}, v{32+rr}, v{32+rr+st}")
    k(f"""
    v_cvt_pk_bf16_f32 v16, v16, v32
    v_and_b32 v20, 0xffff0000, v16
    v_lshlrev_b32 v16, 16, v16
    v_mul_f32 v17, {f32hex(-1.4426950408889634)}, v16
    v_exp_f32 v17, v17
    s_nop 0
    v_add_f32 v17, 1.0, v17
    v_rcp_f32 v17, v17
    s_nop 0
    v_mul_f32 v16, v16, v17
    v_cvt_pk_bf16_f32 v16, v16, v16
    v_lshlrev_b32 v16, 16, v16
    v_mul_f32 v16, v16, v20
    v_cvt_pk_bf16_f32 v16, v16, v16
    v_lshlrev_b32 v16, 16, v16
    s_nop 1
    """)
    k.stamp()
    for j in range(16):
        k(f"v_readlane_b32 s{76+j}, v16, {j}")
    k("v_mov_b32 v48, 0\nv_mov_b32 v49, 0\nv_mov_b32 v50, 0\nv_mov_b32 v51, 0\ns_waitcnt vmcnt(0)")
    for j in range(16):
        k(f"""
        v_lshlrev_b32 v12, 16, v{D+2*j}
        v_and_b32 v13, 0xffff0000, v{D+2*j}
        v_lshlrev_b32 v14, 16, v{D+2*j+1}
        v_and_b32 v15, 0xffff0000, v{D+2*j+1}
        v_fmac_f32 v48, s{76+j}, v12
        v_fmac_f32 v49, s{76+j}, v13
        v_fmac_f32 v50, s{76+j}, v14
        v_fmac_f32 v51, s{76+j}, v15
        """)
    k("""
    s_mul_i32 s16, s2, 2560
    v_cmp_gt_u32 vcc, 160, v0
    v_mov_b32 v2, 0x40000000
    s_nop 1
    v_cndmask_b32 v6, v2, v1, vcc
    buffer_store_dwordx4 v[48:51], v6, s[44:47], s16 offen
    s_cmp_eq_u32 s2, 0
    s_cbranch_scc0 ffna_kernel_end
    v_mov_b32 v12, v7
    v_mov_b32 v13, v10
    v_mov_b32 v14, v8
    v_mov_b32 v15, v9
    v_mov_b32 v6, 0
    v_cmp_eq_u32 vcc, 0, v0
    s_nop 1
    v_cndmask_b32 v6, v2, v6, vcc
    buffer_store_dwordx4 v[12:15], v6, s[40:43], 0 offen
    """)
    k.finish(3)
    return k, f"grid=({NFF+128},1,1) block=(256,1,1) lds=4096"

def gen_k5():
    k = K("ffnb_kernel", 64)
    NP = NFF // 4
    k(f"""
    s_cmp_ge_u32 s2, 10
    s_cbranch_scc1 ffnb_kernel_exit
    s_load_dwordx2 s[10:11], s[0:1], 80
    s_load_dwordx2 s[12:13], s[0:1], 96
    v_and_b32 v1, 63, v0
    v_lshrrev_b32 v2, 6, v0
    s_nop 0
    v_readfirstlane_b32 s18, v2
    s_waitcnt lgkmcnt(0)
    """)
    k.stamp()
    k.srd_off(20, 12, WS_H, MATB)
    k.srd(28, 10, MATB)
    k.srd_off(40, 12, WS_SEL, 64)
    k.srd_off(44, 12, WS_YP, NFF * 2560)
    k(f"""
    v_mov_b32 v2, 0
    buffer_load_dwordx4 v[4:7], v2, s[40:43], 0 offen
    s_lshl_b32 s16, s2, 8
    s_mul_i32 s17, s18, {NP*2560}
    s_add_u32 s16, s16, s17
    v_lshlrev_b32 v3, 2, v1
    """)
    for f in range(NP):
        k(f"s_add_u32 s17, s16, {f*2560}\nbuffer_load_dword v{16+f}, v3, s[44:47], s17 offen")
    k(f"""
    s_waitcnt vmcnt({NP})
    v_readfirstlane_b32 s19, v4
    s_nop 3
    s_mul_i32 s19, s19, 1280
    s_lshl_b32 s16, s2, 7
    s_add_u32 s19, s19, s16
    v_lshlrev_b32 v3, 1, v1
    buffer_load_ushort v8, v3, s[20:23], s19 offen
    v_cvt_pk_bf16_f32 v5, v5, v5
    v_lshlrev_b32 v5, 16, v5
    v_mul_f32 v9, {f32hex(-1.4426950408889634)}, v5
    v_exp_f32 v9, v9
    s_nop 0
    v_add_f32 v9, 1.0, v9
    v_rcp_f32 v9, v9
    s_nop 0
    v_cvt_pk_bf16_f32 v9, v9, v9
    v_lshlrev_b32 v9, 16, v9
    s_waitcnt vmcnt(1)
    """)
    for f in range(1, NP):
        k(f"v_add_f32 v16, v16, v{16+f}")
    k("""
    v_lshlrev_b32 v10, 2, v0
    ds_write_b32 v10, v16
    s_waitcnt lgkmcnt(0)
    s_barrier
    s_cmp_eq_u32 s18, 0
    s_cbranch_scc0 ffnb_kernel_end
    ds_read_b32 v17, v10 offset:256
    ds_read_b32 v18, v10 offset:512
    ds_read_b32 v19, v10 offset:768
    s_waitcnt vmcnt(0) lgkmcnt(0)
    v_add_f32 v16, v16, v17
    v_add_f32 v18, v18, v19
    v_add_f32 v16, v16, v18
    v_cvt_pk_bf16_f32 v16, v16, v16
    v_lshlrev_b32 v16, 16, v16
    v_mul_f32 v16, v16, v9
    v_cvt_pk_bf16_f32 v16, v16, v16
    v_lshlrev_b32 v16, 16, v16
    v_lshlrev_b32 v8, 16, v8
    v_sub_f32 v10, v8, v6
    v_mul_f32 v10, v10, v7
    v_cvt_pk_bf16_f32 v10, v10, v10
    v_lshlrev_b32 v10, 16, v10
    v_add_f32 v10, v10, v16
    v_cvt_pk_bf16_f32 v10, v10, v10
    v_lshlrev_b32 v10, 16, v10
    v_add_f32 v10, v10, v8
    v_cvt_pk_bf16_f32 v10, v10, v10
    buffer_store_short v10, v3, s[28:31], s19 offen
    """)
    k.finish(4)
    return k, "grid=(10,1,1) block=(256,1,1) lds=1024"

def main():
    ks = [gen_k1(), gen_k2(), gen_k3(), gen_k4(), gen_k5()]
    out = "; generated by dev/gen7.py (hand-written generator)\n"
    for k, l in ks:
        out += f"; @launch kernel={k.name} {l}\n"
    out += '.amdgcn_target "amdgcn-amd-amdhsa--gfx950"\n.text\n'
    for k, l in ks:
        out += k.text()
    out += '.section .rodata,"a"\n'
    for k, l in ks:
        out += ".p2align 6\n" + k.desc()
    path = sys.argv[1] if len(sys.argv) > 1 else f"cdna_kernels/{NAME}.s"
    open(path, "w").write(out)
    print("wrote", path, len(out))

main()
```

```python
import sys, struct, os
STAMP = os.environ.get("STAMP", "0") == "1"
NAME = "sequential_preLN__grouped_kv_mqa__moe_arch_mod__prompt"
WS_Q, WS_KV, WS_O, WS_H, WS_ST, WS_KM, WS_YP, WS_SEL = 0, 0x400000, 0x800000, 0xC00000, 0x1000000, 0x1100000, 0x1200000, 0x1300000
WS_FW, WS_WO, WS_WD, WS_A = 0x1400000, 0x1900000, 0x1A00000, 0x1D00000
MATB = 2048 * 1280
QSCALE = (20 ** -0.5) * 1.4426950408889634
NFF = 108

def f32hex(x):
    return "0x%08x" % struct.unpack("<I", struct.pack("<f", x))[0]

class K:
    def __init__(self, name, vgpr, sgpr=96):
        self.name, self.vgpr, self.sgpr = name, vgpr, sgpr
        self.lines = []
        self.nst = 0
    def __call__(self, s):
        for l in s.strip().split("\n"):
            if l.strip():
                self.lines.append("    " + l.strip())
    def label(self, s):
        self.lines.append(f"{self.name}_{s}:")
    def srd(self, d, b, size):
        self(f"s_mov_b32 s{d}, s{b}\ns_mov_b32 s{d+1}, s{b+1}\ns_mov_b32 s{d+2}, {size}\ns_mov_b32 s{d+3}, 0x00020000")
    def srd_off(self, d, b, off, size):
        self(f"s_add_u32 s{d}, s{b}, {off}\ns_addc_u32 s{d+1}, s{b+1}, 0\ns_mov_b32 s{d+2}, {size}\ns_mov_b32 s{d+3}, 0x00020000")
    def stamp(self, real=False):
        if not STAMP: return
        i = self.nst; self.nst += 1
        self(f"{'s_memrealtime' if real else 's_memtime'} s[{60+2*i}:{61+2*i}]")
    def finish(self, kid, wsreg=12):
        self.label("end")
        self.stamp()
        if STAMP:
            self(f"s_waitcnt lgkmcnt(0)\ns_mov_b64 exec, 1")
            self.srd_off(92, wsreg, 0x2000000 + kid * 0x100000, 0x100000)
            self("v_lshrrev_b32 v1, 6, v0\ns_lshl_b32 s90, s2, 4\nv_add_u32 v1, s90, v1\nv_lshlrev_b32 v1, 6, v1")
            for i in range(self.nst):
                self(f"v_mov_b32 v2, s{60+2*i}\nbuffer_store_dword v2, v1, s[92:95], 0 offen offset:{4*i}")
        self.label("exit")
        self("s_endpgm")
    def text(self):
        return (f".globl {self.name}\n.p2align 8\n.type {self.name},@function\n{self.name}:\n" + "\n".join(self.lines) + "\n")
    def desc(self):
        acc = (self.vgpr + 3) // 4 * 4
        return (f".amdhsa_kernel {self.name}\n  .amdhsa_next_free_vgpr {self.vgpr}\n  .amdhsa_next_free_sgpr {self.sgpr}\n"
                f"  .amdhsa_accum_offset {acc}\n  .amdhsa_group_segment_fixed_size 0\n  .amdhsa_kernarg_size 104\n"
                f"  .amdhsa_user_sgpr_count 2\n  .amdhsa_user_sgpr_kernarg_segment_ptr 1\n  .amdhsa_system_sgpr_workgroup_id_x 1\n"
                f".end_amdhsa_kernel\n")

def v4(b): return f"v[{b}:{b+3}]"
def v2(b): return f"v[{b}:{b+1}]"
def v16(b): return f"v[{b}:{b+15}]"

def red_g(k, regs, tmp, op="add"):
    ins = "v_add_f32" if op == "add" else "v_max_f32"
    for i, r in enumerate(regs):
        k(f"ds_swizzle_b32 v{tmp+i}, v{r} offset:0x401F")
    k("s_waitcnt lgkmcnt(0)")
    for i, r in enumerate(regs):
        k(f"{ins} v{r}, v{r}, v{tmp+i}\nv_mov_b32 v{tmp+i}, v{r}")
    k("s_nop 1")
    for i, r in enumerate(regs):
        k(f"v_permlane32_swap_b32 v{tmp+i}, v{r}")
    k("s_nop 1")
    for i, r in enumerate(regs):
        k(f"{ins} v{r}, v{r}, v{tmp+i}")

def ln_fin(k, m, r):
    k(f"""
    v_mul_f32 v{m}, {f32hex(1/640)}, v{m}
    v_mul_f32 v{r}, {f32hex(1/640)}, v{r}
    v_fma_f32 v{r}, -v{m}, v{m}, v{r}
    v_max_f32 v{r}, 0, v{r}
    v_add_f32 v{r}, {f32hex(1e-5)}, v{r}
    v_rsq_f32 v{r}, v{r}
    s_nop 0
    v_mul_f32 v{m}, v{m}, v{r}
    """)

def gen_k1():
    k = K("kv_kernel", 96)
    WK_OFF, WV_OFF = 20480, 20480 + 28672
    XF, WF, ACC, CS, ONES, ST, TMP = 16, 24, 32, 36, 40, 44, 52
    k("""
    s_cmp_ge_u32 s2, 128
    s_cbranch_scc1 kv_kernel_exit
    s_load_dwordx2 s[4:5], s[0:1], 0
    s_load_dwordx4 s[8:11], s[0:1], 16
    s_load_dwordx2 s[12:13], s[0:1], 96
    s_load_dwordx2 s[14:15], s[0:1], 48
    v_and_b32 v1, 63, v0
    v_lshrrev_b32 v2, 6, v0
    s_and_b32 s17, s2, 7
    s_lshl_b32 s17, s17, 4
    s_lshr_b32 s44, s2, 3
    s_add_u32 s17, s17, s44
    v_readfirstlane_b32 s18, v2
    v_and_b32 v3, 15, v1
    v_lshrrev_b32 v4, 4, v1
    s_waitcnt lgkmcnt(0)
    """)
    k.stamp()
    k.srd(20, 4, MATB)
    k.srd(24, 8, 25600)
    k.srd(28, 10, 25600)
    k("s_mul_i32 s45, s17, 20480\ns_mul_i32 s46, s18, 320\ns_mul_i32 s48, s18, 5120")
    for j in range(5):
        k(f"""
        v_add_u32 v6, s46, v1
        v_add_u32 v6, {64*j}, v6
        v_mul_u32_u24 v7, 3277, v6
        v_lshrrev_b32 v7, 18, v7
        v_mul_u32_u24 v8, 80, v7
        v_sub_u32 v8, v6, v8
        v_xor_b32 v8, v8, v7
        v_mul_u32_u24 v7, 1280, v7
        v_lshl_add_u32 v7, v8, 4, v7
        s_mov_b32 m0, s48
        s_add_u32 s48, s48, 1024
        buffer_load_dwordx4 v7, s[20:23], s45 offen lds
        """)
    k(f"v_lshlrev_b32 v7, 4, v1\ns_lshl_b32 s47, s18, 10\ns_add_u32 s48, s47, {WK_OFF}")
    for j in range(7):
        k(f"s_mov_b32 m0, s48\ns_add_u32 s49, s48, 28672\nbuffer_load_dwordx4 v7, s[24:27], s47 offen lds\ns_mov_b32 m0, s49\ns_add_u32 s48, s48, 4096\nbuffer_load_dwordx4 v7, s[28:31], s47 offen lds\ns_add_u32 s47, s47, 4096")
    k(f"""
    v_mul_u32_u24 v9, 1280, v3
    v_and_b32 v6, 3, v3
    v_xor_b32 v6, v6, v4
    v_lshl_add_u32 v9, v6, 4, v9
    v_and_b32 v10, 12, v3
    v_lshrrev_b32 v12, 2, v1
    v_and_b32 v12, 3, v12
    v_lshl_add_u32 v12, v4, 3, v12
    v_and_b32 v13, 3, v1
    v_mul_u32_u24 v11, 40, v12
    v_lshl_add_u32 v11, v13, 3, v11
    s_lshr_b32 s46, s18, 1
    s_mul_i32 s46, s46, 28672
    s_and_b32 s47, s18, 1
    s_lshl_b32 s47, s47, 5
    s_add_u32 s46, s46, s47
    s_add_u32 s46, s46, {WK_OFF}
    v_add_u32 v11, s46, v11
    """)
    for q in range(4):
        k(f"v_xor_b32 v6, {4*q}, v10\nv_lshl_add_u32 v{TMP+8+q}, v6, 4, v9")
    for i in range(4):
        k(f"v_mov_b32 v{ONES+i}, 0x3f803f80\nv_mov_b32 v{ST+i}, 0")
    k.srd_off(36, 12, WS_KV, 163840)
    k.stamp()
    k("s_waitcnt vmcnt(0)\ns_barrier")
    k.stamp()
    def reads(ks, b):
        k(f"ds_read_b128 {v4(XF+4*b)}, v{TMP+8+(ks&3)} offset:{(ks>>2)*256}")
        for h in range(2):
            k(f"ds_read_b64_tr_b16 {v2(WF+4*b+2*h)}, v11 offset:{ks*1280+h*160}")
    reads(0, 0)
    for ks in range(20):
        if ks < 19:
            reads(ks + 1, (ks + 1) & 1)
            k("s_waitcnt lgkmcnt(3)")
        else:
            k("s_waitcnt lgkmcnt(0)")
        b = ks & 1
        k(f"v_mfma_f32_16x16x32_bf16 {v4(ACC)}, {v4(WF+4*b)}, {v4(XF+4*b)}, {'0' if ks == 0 else v4(ACC)}")
        k(f"v_mfma_f32_16x16x32_bf16 {v4(CS)}, {v4(WF+4*b)}, {v4(ONES)}, {'0' if ks == 0 else v4(CS)}")
        for d in range(4):
            k(f"v_dot2_f32_bf16 v{ST+(d&1)}, v{XF+4*b+d}, v{ONES}, v{ST+(d&1)}\nv_dot2_f32_bf16 v{ST+2+(d&1)}, v{XF+4*b+d}, v{XF+4*b+d}, v{ST+2+(d&1)}")
    k.stamp()
    k(f"s_nop 7\nv_add_f32 v{ST}, v{ST}, v{ST+1}\nv_add_f32 v{ST+1}, v{ST+2}, v{ST+3}")
    red_g(k, [ST, ST + 1], TMP)
    ln_fin(k, ST, ST + 1)
    k.srd_off(40, 12, WS_Q, 16384)
    k(f"""
    s_cmp_eq_u32 s18, 3
    s_cbranch_scc0 kv_kernel_nost
    s_lshl_b32 s46, s17, 7
    v_lshlrev_b32 v14, 3, v3
    s_mov_b64 exec, 0xffff
    buffer_store_dwordx2 {v2(ST)}, v14, s[40:43], s46 offen
    s_mov_b64 exec, -1
    """)
    k.label("nost")
    for r in range(4):
        k(f"v_mul_f32 v{ACC+r}, v{ACC+r}, v{ST+1}\nv_fma_f32 v{ACC+r}, -v{CS+r}, v{ST}, v{ACC+r}")
    k(f"v_cvt_pk_bf16_f32 v{ACC}, v{ACC}, v{ACC+1}\nv_cvt_pk_bf16_f32 v{ACC+1}, v{ACC+2}, v{ACC+3}")
    k("""
    s_lshr_b32 s44, s17, 1
    s_mul_i32 s44, s44, 2560
    s_and_b32 s45, s17, 1
    s_cmp_ge_u32 s18, 2
    s_cbranch_scc1 kv_kernel_vepi
    v_mov_b32 v15, 0
    s_cmp_eq_u32 s18, 0
    s_cbranch_scc0 kv_kernel_k1
    """)
    k(f"""
    s_lshl_b32 s46, s45, 8
    s_add_u32 s44, s44, s46
    v_lshrrev_b32 v14, 1, v4
    v_lshlrev_b32 v14, 9, v14
    v_lshl_add_u32 v14, v3, 4, v14
    v_and_b32 v13, 1, v4
    v_lshl_add_u32 v14, v13, 3, v14
    buffer_store_dwordx2 {v2(ACC)}, v14, s[36:39], s44 offen
    v_dot2_f32_bf16 v15, v{ACC}, v{ACC}, v15
    v_dot2_f32_bf16 v15, v{ACC+1}, v{ACC+1}, v15
    s_nop 3
    """)
    red_g(k, [15], TMP)
    k("s_branch kv_kernel_kmax")
    k.label("k1")
    k(f"""
    s_lshl_b32 s46, s45, 7
    s_add_u32 s44, s44, s46
    v_lshlrev_b32 v14, 3, v3
    s_mov_b64 exec, 0xffff
    buffer_store_dwordx2 {v2(ACC)}, v14, s[36:39], s44 offen offset:1024
    v_dot2_f32_bf16 v15, v{ACC}, v{ACC}, v15
    v_dot2_f32_bf16 v15, v{ACC+1}, v{ACC+1}, v15
    """)
    k.srd_off(40, 12, WS_A, 1728 * 4)
    k("""
    s_mov_b64 exec, -1
    v_mov_b32 v20, -1
    v_mov_b32 v21, -1
    v_mov_b32 v22, -1
    v_mov_b32 v23, -1
    s_lshl_b32 s46, s2, 10
    v_lshlrev_b32 v14, 4, v1
    buffer_store_dwordx4 v[20:23], v14, s[40:43], s46 offen
    s_mov_b64 exec, 0xffff
    s_nop 1
    """)
    k.srd_off(40, 12, WS_ST, 32768)
    k("""
    v_mov_b32 v20, 0
    v_mov_b32 v21, 0
    v_mov_b32 v22, 0
    v_mov_b32 v23, 0
    s_lshl_b32 s46, s17, 8
    v_lshlrev_b32 v14, 4, v3
    buffer_store_dwordx4 v[20:23], v14, s[40:43], s46 offen
    s_mov_b64 exec, -1
    """)
    k.label("kmax")
    for off in ("0x041F", "0x081F", "0x101F", "0x201F"):
        k(f"ds_swizzle_b32 v{TMP}, v15 offset:{off}\ns_waitcnt lgkmcnt(0)\nv_max_f32 v15, v15, v{TMP}")
    k.srd_off(40, 12, WS_KM, 1024)
    k("""
    s_lshl_b32 s44, s18, 7
    s_add_u32 s44, s44, s17
    s_lshl_b32 s44, s44, 2
    v_mov_b32 v14, 0
    s_mov_b64 exec, 1
    buffer_store_dword v15, v14, s[40:43], s44 offen
    s_mov_b64 exec, -1
    s_branch kv_kernel_end
    """)
    k.label("vepi")
    k("""
    s_mul_i32 s46, s45, 640
    s_add_u32 s44, s44, s46
    v_bfe_u32 v14, v3, 2, 1
    v_mul_u32_u24 v12, 320, v14
    v_bfe_u32 v14, v3, 3, 1
    v_lshl_add_u32 v12, v14, 3, v12
    v_and_b32 v14, 3, v3
    v_lshl_add_u32 v12, v14, 1, v12
    v_lshl_add_u32 v14, v4, 6, v12
    s_cmp_eq_u32 s18, 2
    s_cbranch_scc1 kv_kernel_v0
    v_add_u32 v14, 256, v12
    s_mov_b64 exec, 0xffff
    """)
    k.label("v0")
    k(f"""
    buffer_store_short v{ACC}, v14, s[36:39], s44 offen offset:1280
    buffer_store_short_d16_hi v{ACC}, v14, s[36:39], s44 offen offset:1296
    buffer_store_short v{ACC+1}, v14, s[36:39], s44 offen offset:1312
    buffer_store_short_d16_hi v{ACC+1}, v14, s[36:39], s44 offen offset:1328
    s_mov_b64 exec, -1
    s_cmp_eq_u32 s18, 3
    s_cbranch_scc0 kv_kernel_end
    s_cmp_eq_u32 s2, 0
    s_cbranch_scc0 kv_kernel_end
    """)
    k.srd(40, 14, 1280)
    k(f"""
    v_mul_u32_u24 v8, 20, v1
    buffer_load_dwordx4 v[20:23], v8, s[40:43], 0 offen
    buffer_load_dword v24, v8, s[40:43], 0 offen offset:16
    v_mov_b32 v17, 0
    s_waitcnt vmcnt(0)
    v_dot2_f32_bf16 v17, v20, v{ONES}, v17
    v_dot2_f32_bf16 v17, v21, v{ONES}, v17
    v_dot2_f32_bf16 v17, v22, v{ONES}, v17
    v_dot2_f32_bf16 v17, v23, v{ONES}, v17
    v_dot2_f32_bf16 v17, v24, v{ONES}, v17
    s_nop 3
    """)
    for off in ("0x041F", "0x081F", "0x101F", "0x201F"):
        k(f"ds_swizzle_b32 v18, v17 offset:{off}\ns_waitcnt lgkmcnt(0)\nv_add_f32 v17, v17, v18")
    red_g(k, [17], 18)
    k.srd_off(40, 12, WS_SEL, 64)
    k("""
    v_mov_b32 v14, 0
    s_mov_b64 exec, 1
    buffer_store_dword v17, v14, s[40:43], 0 offen offset:32
    s_mov_b64 exec, -1
    """)
    k.finish(0)
    return k, "grid=(128,1,1) block=(256,1,1) lds=%d" % (20480 + 2 * 28672)

SLOT = 36864
W_OFF = 16384
XF, SRC, VA_RD, VW_RD, ST, ONES, ACC, CS, WF, TMP = 16, 16, 48, 52, 56, 76, 80, 96, 100, 108

def gemm_ids(k):
    k("""
    v_and_b32 v1, 63, v0
    v_lshrrev_b32 v2, 6, v0
    s_lshr_b32 s16, s2, 5
    s_and_b32 s17, s2, 7
    s_lshl_b32 s17, s17, 2
    s_bfe_u32 s44, s2, 0x20003
    s_add_u32 s17, s17, s44
    v_readfirstlane_b32 s18, v2
    v_and_b32 v3, 15, v1
    v_lshrrev_b32 v4, 4, v1
    """)

def loader_list(lw):
    return [("A", e) for e in range(16)][12*lw:12*lw+12] + [("W", e) for e in range(20)][max(0, 12*lw-16):max(0, 12*lw+12-16)]

def gemm_loader(k, lw, w_linear, gb, wchunk, mid=None, nmid=0):
    lst = loader_list(lw)
    k("s_lshl_b32 s45, s17, 6")
    for i, (kind, e) in enumerate(lst):
        if kind == "A":
            k(f"""
            v_add_u32 v6, {4*e}, v4
            v_and_b32 v7, 15, v6
            v_xor_b32 v7, v7, v3
            v_add_u32 v6, s45, v6
            v_mul_u32_u24 v6, 1280, v6
            v_lshl_add_u32 v{SRC+i}, v7, 4, v6
            """)
        elif w_linear:
            k(f"v_add_u32 v6, {64*e}, v1\nv_lshlrev_b32 v{SRC+i}, 4, v6")
        else:
            k(f"""
            v_add_u32 v6, {64*e}, v1
            v_mul_u32_u24 v7, 6554, v6
            v_lshrrev_b32 v7, 16, v7
            v_mul_u32_u24 v8, 10, v7
            v_sub_u32 v8, v6, v8
            v_mul_u32_u24 v7, 1280, v7
            v_lshl_add_u32 v{SRC+i}, v8, 4, v7
            """)
    def issue(c):
        slot = gb + (c % 3) * SLOT
        k(f"s_mov_b32 s46, {c*256}\ns_mov_b32 s47, {c*wchunk}")
        for i, (kind, e) in enumerate(lst):
            if kind == "A":
                k(f"s_mov_b32 m0, {slot + e*1024}\ns_nop 0\nbuffer_load_dwordx4 v{SRC+i}, s[20:23], s46 offen lds")
            else:
                k(f"s_mov_b32 m0, {slot + W_OFF + e*1024}\ns_nop 0\nbuffer_load_dwordx4 v{SRC+i}, s[24:27], s47 offen lds")
    for c in range(3):
        issue(c)
    if mid:
        mid()
    k.stamp()
    waits = [24 + nmid, 12 + nmid, 12 + nmid, 12, 0]
    for c in range(5):
        k(f"s_waitcnt vmcnt({waits[c]})\ns_barrier")
        k.stamp()
        if 1 <= c <= 2:
            issue(c + 2)
    k.stamp()

def gemm_mm(k, colsum, gb):
    k(f"""
    v_lshlrev_b32 v6, 8, v3
    v_and_b32 v7, 3, v3
    v_xor_b32 v7, v7, v4
    v_lshl_add_u32 v6, v7, 4, v6
    v_add_u32 v6, {gb}, v6
    v_and_b32 v7, 12, v3
    """)
    for ks in range(4):
        k(f"v_xor_b32 v8, {4*ks}, v7\nv_lshl_add_u32 v{VA_RD+ks}, v8, 4, v6")
    k(f"""
    v_lshrrev_b32 v12, 2, v1
    v_and_b32 v12, 3, v12
    v_lshl_add_u32 v12, v4, 3, v12
    v_and_b32 v13, 3, v1
    s_lshl_b32 s48, s18, 5
    s_add_u32 s47, s48, {gb + W_OFF}
    v_mul_u32_u24 v{VW_RD}, 160, v12
    v_lshl_add_u32 v{VW_RD}, v13, 3, v{VW_RD}
    v_add_u32 v{VW_RD}, s47, v{VW_RD}
    """)
    if colsum:
        for i in range(4):
            k(f"v_mov_b32 v{ONES+i}, 0x3f803f80")
    k.stamp()
    def reads(ks, buf):
        for h in range(2):
            k(f"ds_read_b64_tr_b16 {v2(WF+4*buf+2*h)}, v{VW_RD} offset:{ks*5120 + h*640}")
        for rf in range(4):
            k(f"ds_read_b128 {v4(XF+16*buf+4*rf)}, v{VA_RD+ks} offset:{rf*4096}")
    for c in range(5):
        k("s_barrier")
        k.stamp()
        reads(0, 0)
        for ks in range(4):
            if ks < 3:
                reads(ks + 1, (ks + 1) & 1)
                k("s_waitcnt lgkmcnt(6)")
            else:
                k("s_waitcnt lgkmcnt(0)")
                if c < 4:
                    d = SLOT if (c % 3) != 2 else -2 * SLOT
                    for r in [VA_RD + i for i in range(4)] + [VW_RD]:
                        k(f"v_add_u32 v{r}, {d & 0xffffffff}, v{r}")
            first = (c == 0 and ks == 0)
            b = ks & 1
            for rf in range(4):
                a = ACC + 4 * rf
                k(f"v_mfma_f32_16x16x32_bf16 {v4(a)}, {v4(WF+4*b)}, {v4(XF+16*b+4*rf)}, {'0' if first else v4(a)}")
            if colsum:
                k(f"v_mfma_f32_16x16x32_bf16 {v4(CS)}, {v4(WF+4*b)}, {v4(ONES)}, {'0' if first else v4(CS)}")
    k.stamp()

def gen_k2():
    k = K("attn_kernel", 168)
    GB = 53248
    QB, EXS = 163840 - 10240, 163840 - 10240 - 512
    QF1, QF2, SA, SB, O, P = 8, 12, 16, 32, 48, 64
    KF = [72, 80]; VF = [88, 96]
    AK, AK2, AV = 104, 105, 106
    T = 108
    KMR = 126
    CP, CPD = 128, 156
    THRESH = 50.0
    k("""
    s_cmp_ge_u32 s2, 256
    s_cbranch_scc1 attn_kernel_exit
    s_load_dwordx2 s[54:55], s[0:1], 72
    s_load_dwordx4 s[4:7], s[0:1], 0
    s_load_dwordx2 s[12:13], s[0:1], 96
    s_load_dwordx2 s[14:15], s[0:1], 32
    s_load_dwordx4 s[8:11], s[0:1], 56
    """)
    gemm_ids(k)
    k("s_waitcnt lgkmcnt(0)")
    k.stamp()
    k.srd(20, 4, MATB)
    k("""
    s_mul_i32 s44, s16, 160
    s_add_u32 s24, s6, s44
    s_addc_u32 s25, s7, 0
    s_sub_u32 s26, 819200, s44
    s_mov_b32 s27, 0x00020000
    """)
    k.srd_off(28, 12, WS_KM, 1024)
    k.srd_off(56, 12, WS_KV, 163840)
    k(f"""
    v_lshlrev_b32 v7, 2, v1
    buffer_load_dword v{KMR}, v7, s[28:31], 0 offen
    buffer_load_dword v{KMR+1}, v7, s[28:31], 0 offen offset:256
    buffer_load_dword v{CP}, v7, s[28:31], 0 offen offset:512
    buffer_load_dword v{CP+1}, v7, s[28:31], 0 offen offset:768
    """)
    k(f"v_lshlrev_b32 v{CPD+4}, 4, v1\ns_lshl_b32 s52, s18, 10\ns_add_u32 s52, s52, 49152")
    def dma():
        k(f"s_mov_b32 m0, s52\ns_nop 0\nbuffer_load_dwordx4 v{CPD+4}, s[56:59], s52 offen lds\ns_add_u32 s52, s52, 8192")
    n0 = k.nst
    k("s_cmp_lt_u32 s18, 5\ns_cbranch_scc1 attn_kernel_mm")
    for lw in range(3):
        if lw < 2:
            k(f"s_cmp_eq_u32 s18, {5+lw}\ns_cbranch_scc0 attn_kernel_ld{lw+1}")
        def mid():
            for i in range(16):
                o = (lw * 16 + i) * 1024
                k(f"s_mov_b32 m0, {o}\ns_mov_b32 s46, {o}\nbuffer_load_dwordx4 v{CPD+4}, s[56:59], s46 offen lds")
        k.nst = n0
        gemm_loader(k, lw, False, GB, 128 * 1280, mid, 16)
        k("s_branch attn_kernel_qrd")
        if lw < 2:
            k.label(f"ld{lw+1}")
    k.label("mm")
    k.nst = n0
    k.srd_off(36, 12, WS_Q, 16384)
    k("s_lshl_b32 s46, s17, 9\nv_lshlrev_b32 v9, 3, v3")
    for rf in range(4):
        k(f"buffer_load_dwordx2 {v2(ST+2*rf)}, v9, s[36:39], s46 offen offset:{rf*128}")
    gemm_mm(k, True, GB)
    k(f"""
    v_mul_u32_u24 v10, 160, v3
    v_lshl_add_u32 v10, v4, 3, v10
    s_lshl_b32 s46, s18, 5
    s_add_u32 s46, s46, {QB}
    v_add_u32 v10, s46, v10
    s_waitcnt vmcnt(0)
    s_nop 3
    """)
    for rf in range(4):
        a = ACC + 4 * rf
        k(f"v_mul_f32 v14, {f32hex(QSCALE)}, v{ST+2*rf+1}\nv_mul_f32 v15, {f32hex(QSCALE)}, v{ST+2*rf}")
        for r in range(4):
            k(f"v_mul_f32 v{a+r}, v{a+r}, v14\nv_fma_f32 v{a+r}, -v{CS+r}, v15, v{a+r}")
        k(f"v_cvt_pk_bf16_f32 v{a}, v{a}, v{a+1}\nv_cvt_pk_bf16_f32 v{a+1}, v{a+2}, v{a+3}")
        k(f"ds_write_b64 v10, {v2(a)} offset:{rf*2560}")
    k("s_waitcnt lgkmcnt(0)")
    k.label("qrd")
    k("s_barrier")
    k.stamp()
    k(f"""
    v_and_b32 v3, 31, v1
    v_lshrrev_b32 v4, 5, v1
    v_lshrrev_b32 v6, 2, v3
    v_and_b32 v7, 3, v3
    v_mul_u32_u24 v{T+8}, 160, v6
    v_mul_u32_u24 v7, 40, v7
    v_add_u32 v{T+8}, v{T+8}, v7
    s_mul_i32 s46, s18, 1280
    s_add_u32 s46, s46, {QB}
    v_add_u32 v{T+8}, s46, v{T+8}
    v_lshl_add_u32 v{T+9}, v4, 4, v{T+8}
    ds_read_b64 {v2(QF1)}, v{T+9}
    ds_read_b64 {v2(QF1+2)}, v{T+9} offset:8
    ds_read_b64 {v2(QF2)}, v{T+8} offset:32
    v_mul_u32_u24 v5, 1280, v6
    v_add_u32 v5, v5, v7
    s_lshl_b32 s19, s17, 6
    s_lshl_b32 s46, s18, 3
    s_add_u32 s19, s19, s46
    s_mul_i32 s19, s19, 1280
    s_mul_i32 s46, s16, 160
    s_add_u32 s19, s19, s46
    v_lshlrev_b32 v{AK}, 4, v1
    v_lshlrev_b32 v{AK2}, 3, v3
    v_mul_u32_u24 v{AV}, 320, v4
    v_lshl_add_u32 v{AV}, v3, 4, v{AV}
    s_mov_b32 s40, 0x000fffff
    s_mov_b32 s41, 0x000fffff
    v_max_f32 v{T}, v{KMR}, v{KMR+1}
    v_max_f32 v{T+15}, v{CP}, v{CP+1}
    """)
    k.srd_off(32, 12, WS_O, MATB)
    for b in range(2):
        k(f"v_mov_b32 v{KF[b]+6}, 0x3f803f80\nv_mov_b32 v{KF[b]+7}, 0x00003f80")
    k(f"v_cmp_eq_u32 vcc, 20, v3\nv_mov_b32 v{T+2}, 0x3f803f80\ns_nop 1\nv_cndmask_b32 v{T+2}, 0, v{T+2}, vcc")
    for b in range(2):
        for r in range(8):
            k(f"v_mov_b32 v{VF[b]+r}, v{T+2}")
    for r in range(16):
        k(f"v_mov_b32 v{O+r}, 0")
    for r in range(4, 8):
        k(f"v_mov_b32 v{P+r}, 0")
    k(f"""
    s_lshl_b32 s45, s2, 3
    s_add_u32 s45, s45, s18
    s_lshl_b32 s45, s45, 6
    v_add_u32 v{T+8}, s45, v1
    s_mov_b32 s46, 0x12F684C
    s_mov_b32 s47, 0x3333334
    s_mov_b32 s48, 0x1999999A
    v_mov_b32 v{T+9}, 0x7fffffff
    """)
    for rnd in range(2):
        k(f"""
        v_add_u32 v{T+10}, {131072*rnd}, v{T+8}
        v_mul_hi_u32 v{T+11}, v{T+10}, s46
        v_mul_u32_u24 v{T+12}, 216, v{T+11}
        v_sub_u32 v{T+12}, v{T+10}, v{T+12}
        v_lshrrev_b32 v{T+13}, 1, v{T+12}
        v_mul_u32_u24 v{T+13}, 40960, v{T+13}
        v_lshl_add_u32 v{T+13}, v{T+11}, 5, v{T+13}
        v_and_b32 v{T+12}, 1, v{T+12}
        v_lshl_add_u32 v{T+13}, v{T+12}, 4, v{T+13}
        v_cmp_gt_u32 vcc, 138240, v{T+10}
        s_nop 1
        v_cndmask_b32 v{CPD+rnd}, v{T+9}, v{T+13}, vcc
        v_mul_hi_u32 v{T+11}, v{T+10}, s47
        v_mul_u32_u24 v{T+12}, 80, v{T+11}
        v_sub_u32 v{T+12}, v{T+10}, v{T+12}
        v_lshrrev_b32 v{T+13}, 1, v{T+12}
        v_mul_u32_u24 v{T+13}, 55296, v{T+13}
        v_lshl_add_u32 v{T+13}, v{T+11}, 5, v{T+13}
        v_and_b32 v{T+12}, 1, v{T+12}
        v_lshl_add_u32 v{T+13}, v{T+12}, 4, v{T+13}
        v_cndmask_b32 v{CPD+5+rnd}, v{T+9}, v{T+13}, vcc
        """)
    k(f"""
    v_mul_hi_u32 v{T+11}, v{T+8}, s47
    v_mul_u32_u24 v{T+12}, 80, v{T+11}
    v_sub_u32 v{T+12}, v{T+8}, v{T+12}
    v_mul_hi_u32 v{T+13}, v{T+12}, s48
    v_mul_u32_u24 v{T+14}, 10, v{T+13}
    v_sub_u32 v{T+14}, v{T+12}, v{T+14}
    v_mul_u32_u24 v{T+13}, 102400, v{T+13}
    v_mul_u32_u24 v{T+11}, 160, v{T+11}
    v_add_u32 v{T+13}, v{T+13}, v{T+11}
    v_lshl_add_u32 v{T+13}, v{T+14}, 4, v{T+13}
    v_cmp_gt_u32 vcc, 51200, v{T+8}
    s_nop 1
    v_cndmask_b32 v{CPD+2}, v{T+9}, v{T+13}, vcc
    v_lshlrev_b32 v{CPD+3}, 4, v{T+8}
    s_waitcnt lgkmcnt(0)
    v_cmp_eq_u32 vcc, 0, v4
    s_nop 1
    v_cndmask_b32 v{QF2}, 0, v{QF2}, vcc
    v_cndmask_b32 v{QF2+1}, 0, v{QF2+1}, vcc
    v_mov_b32 v{QF2+2}, 0
    v_mov_b32 v{QF2+3}, 0
    v_mov_b32 v{T+3}, 0
    """)
    if os.environ.get("DBGQ"):
        k.srd_off(36, 12, 0x3000000, MATB)
        k(f"v_lshl_add_u32 v6, v4, 4, v5\nbuffer_store_dwordx4 {v4(QF1)}, v6, s[36:39], s19 offen\ns_mov_b32 exec_hi, 0\nbuffer_store_dwordx2 {v2(QF2)}, v5, s[36:39], s19 offen offset:32\ns_mov_b32 exec_hi, -1\ns_waitcnt vmcnt(0)")
    for r in range(4):
        k(f"v_dot2_f32_bf16 v{T+3}, v{QF1+r}, v{QF1+r}, v{T+3}")
    for r in range(2):
        k(f"v_dot2_f32_bf16 v{T+3}, v{QF2+r}, v{QF2+r}, v{T+3}")
    for off in ("0x041F", "0x081F", "0x101F", "0x201F", "0x401F"):
        k(f"ds_swizzle_b32 v{T+1}, v{T} offset:{off}\nds_swizzle_b32 v{T+16}, v{T+15} offset:{off}\ns_waitcnt lgkmcnt(0)\nv_max_f32 v{T}, v{T}, v{T+1}\nv_max_f32 v{T+15}, v{T+15}, v{T+16}")
    k(f"""
    v_mov_b32 v{T+1}, v{T+15}
    v_mov_b32 v{T+2}, v{T+15}
    s_nop 1
    v_permlane32_swap_b32 v{T+1}, v{T+2}
    s_nop 1
    v_max_f32 v{T+15}, v{T+1}, v{T+2}
    v_mov_b32 v{T+1}, v{T}
    v_mov_b32 v{T+2}, v{T}
    v_mov_b32 v{T+4}, v{T+3}
    v_mov_b32 v{T+5}, v{T+3}
    s_nop 1
    v_permlane32_swap_b32 v{T+1}, v{T+2}
    v_permlane32_swap_b32 v{T+4}, v{T+5}
    s_nop 1
    v_max_f32 v{T}, v{T+1}, v{T+2}
    v_add_f32 v{T}, v{T}, v{T+15}
    v_add_f32 v{T+3}, v{T+4}, v{T+5}
    v_mul_f32 v{T+3}, v{T+3}, v{T}
    v_sqrt_f32 v{T+3}, v{T+3}
    s_nop 0
    v_mul_f32 v{T+3}, {f32hex(1.01)}, v{T+3}
    v_mov_b32 v{T+6}, {f32hex(THRESH)}
    v_cmp_nle_f32 vcc, v{T+3}, v{T+6}
    s_barrier
    s_cbranch_vccnz attn_kernel_slow
    """)
    def set_m():
        k(f"""
        v_xor_b32 v{T+3}, 0x80000000, v{T+3}
        v_and_b32 v{T+4}, 0xffff0000, v{T+3}
        v_sub_f32 v{T+5}, v{T+3}, v{T+4}
        v_and_b32 v{T+6}, 0xffff0000, v{T+5}
        v_sub_f32 v{T+5}, v{T+5}, v{T+6}
        v_lshrrev_b32 v{T+4}, 16, v{T+4}
        v_or_b32 v{T+4}, v{T+4}, v{T+6}
        v_lshrrev_b32 v{T+5}, 16, v{T+5}
        v_cmp_eq_u32 vcc, 0, v4
        s_nop 1
        v_cndmask_b32 v{QF2+2}, 0, v{T+4}, vcc
        v_cndmask_b32 v{QF2+3}, 0, v{T+5}, vcc
        """)
    def kreads(b, blk):
        k(f"ds_read_b128 {v4(KF[b])}, v{AK} offset:{blk*2560}\nds_read_b64 {v2(KF[b]+4)}, v{AK2} offset:{blk*2560+1024}")
    def vreads(b, blk):
        k(f"s_mov_b64 exec, s[40:41]\nds_read_b128 {v4(VF[b])}, v{AV} offset:{blk*2560+1280}\nds_read_b128 {v4(VF[b]+4)}, v{AV} offset:{blk*2560+1920}\ns_mov_b64 exec, -1")
    def pipe_start():
        kreads(0, 0); kreads(1, 1); vreads(0, 0)
        k("s_waitcnt lgkmcnt(4)")
        k(f"v_mfma_f32_32x32x16_bf16 {v16(SA)}, {v4(KF[0])}, {v4(QF1)}, 0")
        k(f"v_mfma_f32_32x32x16_bf16 {v16(SA)}, {v4(KF[0]+4)}, {v4(QF2)}, {v16(SA)}")
        k("s_nop 7\ns_nop 3")
    def E(Sc, a, b):
        for r in range(a, b):
            k(f"v_exp_f32 v{Sc+r}, v{Sc+r}")
    def C(Sc, a, b):
        for p in range(a, b):
            k(f"v_cvt_pk_bf16_f32 v{P+p}, v{Sc+2*p}, v{Sc+2*p+1}")
    def iteration(j, ndma):
        par = j & 1
        Sc, Sn = (SA, SB) if par == 0 else (SB, SA)
        k("s_waitcnt lgkmcnt(0)")
        E(Sc, 0, 2)
        k(f"v_mfma_f32_32x32x16_bf16 {v16(O)}, {v4(VF[1-par]+4)}, {v4(P+4)}, {v16(O)}")
        kreads(par, j + 2)
        vreads(1 - par, j + 1)
        E(Sc, 2, 5)
        k(f"v_mfma_f32_32x32x16_bf16 {v16(Sn)}, {v4(KF[1-par])}, {v4(QF1)}, 0")
        E(Sc, 5, 8); C(Sc, 0, 4); E(Sc, 8, 9)
        k(f"v_mfma_f32_32x32x16_bf16 {v16(Sn)}, {v4(KF[1-par]+4)}, {v4(QF2)}, {v16(Sn)}")
        if ndma >= 1: dma()
        E(Sc, 9, 12)
        k(f"v_mfma_f32_32x32x16_bf16 {v16(O)}, {v4(VF[par])}, {v4(P)}, {v16(O)}")
        if ndma >= 2: dma()
        E(Sc, 12, 16); C(Sc, 4, 8)
    def group(with_dma):
        for j in range(8):
            iteration(j, (2 if j < 7 else 0) if with_dma else 0)
        k(f"v_add_u32 v{AK}, 20480, v{AK}\nv_add_u32 v{AK2}, 20480, v{AK2}\nv_add_u32 v{AV}, 20480, v{AV}")
    def copy_loads():
        k.srd(36, 8, 640 * 3456)
        k(f"buffer_load_dwordx4 {v4(CP)}, v{CPD+3}, s[36:39], 0 offen\ns_mov_b32 s45, {131072*16}\nbuffer_load_dwordx4 {v4(CP+4)}, v{CPD+3}, s[36:39], s45 offen")
        k.srd(36, 10, 640 * 3456)
        k(f"buffer_load_dwordx4 {v4(CP+8)}, v{CPD+3}, s[36:39], 0 offen\nbuffer_load_dwordx4 {v4(CP+12)}, v{CPD+3}, s[36:39], s45 offen")
        k.srd(36, 14, 819200)
        k(f"buffer_load_dwordx4 {v4(CP+16)}, v{CPD+3}, s[36:39], 0 offen")
        k.srd(36, 54, 1728 * 1280)
        k(f"buffer_load_dwordx4 {v4(CP+20)}, v{CPD+3}, s[36:39], 0 offen\nbuffer_load_dwordx4 {v4(CP+24)}, v{CPD+3}, s[36:39], s45 offen")
    set_m()
    k.stamp()
    pipe_start()
    group(True)
    k.stamp()
    k("s_waitcnt vmcnt(0)\ns_barrier")
    k.stamp()
    copy_loads()
    k("s_mov_b32 s42, 7\ns_branch attn_kernel_loop")
    k.label("slow")
    for i in range(14):
        dma()
    k("s_waitcnt vmcnt(0)\ns_barrier")
    copy_loads()
    k(f"v_mov_b32 v{T+3}, 0xff800000\ns_mov_b32 s42, 64")
    k.label("maxloop")
    kreads(0, 0)
    k(f"v_add_u32 v{AK}, 2560, v{AK}\nv_add_u32 v{AK2}, 2560, v{AK2}\ns_waitcnt lgkmcnt(0)")
    k(f"v_mfma_f32_32x32x16_bf16 {v16(SA)}, {v4(KF[0])}, {v4(QF1)}, 0")
    k(f"v_mfma_f32_32x32x16_bf16 {v16(SA)}, {v4(KF[0]+4)}, {v4(QF2)}, {v16(SA)}")
    k("s_nop 15\ns_nop 3")
    for r in range(0, 16, 2):
        k(f"v_max3_f32 v{T+3}, v{SA+r}, v{SA+r+1}, v{T+3}")
    k("s_sub_u32 s42, s42, 1\ns_cmp_lg_u32 s42, 0\ns_cbranch_scc1 attn_kernel_maxloop")
    k(f"""
    v_mov_b32 v{T+4}, v{T+3}
    v_mov_b32 v{T+5}, v{T+3}
    s_nop 1
    v_permlane32_swap_b32 v{T+4}, v{T+5}
    s_nop 1
    v_max_f32 v{T+3}, v{T+4}, v{T+5}
    v_lshlrev_b32 v{AK}, 4, v1
    v_lshlrev_b32 v{AK2}, 3, v3
    """)
    set_m()
    pipe_start()
    k("s_mov_b32 s42, 8")
    k.label("loop")
    if os.environ.get("NOPRIO") is None:
        k(f"s_lshr_b32 s43, s18, 2\ns_add_u32 s43, s43, s42\ns_and_b32 s43, s43, 1\ns_cmp_eq_u32 s43, 0\ns_cbranch_scc1 attn_kernel_p0\ns_setprio 1\ns_branch attn_kernel_p1")
        k.label("p0")
        k("s_setprio 0")
        k.label("p1")
    group(False)
    k("s_sub_u32 s42, s42, 1\ns_cmp_lg_u32 s42, 0\ns_cbranch_scc1 attn_kernel_loop")
    k.stamp()
    k("s_nop 1")
    k(f"v_mfma_f32_32x32x16_bf16 {v16(O)}, {v4(VF[1]+4)}, {v4(P+4)}, {v16(O)}")
    k("s_waitcnt vmcnt(0)")
    k.srd_off(36, 12, WS_FW, NFF * 40960)
    k(f"""
    s_mov_b32 s45, 20480
    buffer_store_dwordx4 {v4(CP)}, v{CPD}, s[36:39], 0 offen
    buffer_store_dwordx4 {v4(CP+4)}, v{CPD+1}, s[36:39], 0 offen
    buffer_store_dwordx4 {v4(CP+8)}, v{CPD}, s[36:39], s45 offen
    buffer_store_dwordx4 {v4(CP+12)}, v{CPD+1}, s[36:39], s45 offen
    """)
    k.srd_off(36, 12, WS_WO, 819200)
    k(f"buffer_store_dwordx4 {v4(CP+16)}, v{CPD+2}, s[36:39], 0 offen")
    k.srd_off(36, 12, WS_WD, 40 * 55296)
    k(f"buffer_store_dwordx4 {v4(CP+20)}, v{CPD+5}, s[36:39], 0 offen\nbuffer_store_dwordx4 {v4(CP+24)}, v{CPD+6}, s[36:39], 0 offen")
    k("s_nop 7")
    k(f"""
    v_mov_b32 v{T}, v{O+8}
    v_mov_b32 v{T+1}, v{O+8}
    s_nop 1
    v_permlane32_swap_b32 v{T}, v{T+1}
    s_nop 1
    v_rcp_f32 v{T+1}, v{T+1}
    s_nop 0
    """)
    for r in range(12):
        k(f"v_mul_f32 v{O+r}, v{O+r}, v{T+1}")
    for p in range(6):
        k(f"v_cvt_pk_bf16_f32 v{P+p}, v{O+2*p}, v{O+2*p+1}")
    k(f"""
    v_lshl_add_u32 v6, v4, 3, v5
    buffer_store_dwordx2 {v2(P)}, v6, s[32:35], s19 offen
    buffer_store_dwordx2 {v2(P+2)}, v6, s[32:35], s19 offen offset:16
    s_mov_b32 exec_hi, 0
    buffer_store_dwordx2 {v2(P+4)}, v6, s[32:35], s19 offen offset:32
    """)
    k.finish(1)
    return k, "grid=(256,1,1) block=(512,1,1) lds=163840"

def gen_k3():
    k = K("oproj_kernel", 128)
    XR, WR = ST, ST + 8
    EXS = 3 * SLOT
    k("""
    s_cmp_ge_u32 s2, 256
    s_cbranch_scc1 oproj_kernel_exit
    s_load_dwordx2 s[4:5], s[0:1], 0
    s_load_dwordx2 s[12:13], s[0:1], 96
    s_load_dwordx2 s[14:15], s[0:1], 48
    """)
    gemm_ids(k)
    k("s_waitcnt lgkmcnt(0)")
    k.stamp()
    k.srd_off(20, 12, WS_O, MATB)
    k(f"""
    s_mul_i32 s44, s16, 102400
    s_add_u32 s44, s44, {WS_WO}
    s_add_u32 s24, s12, s44
    s_addc_u32 s25, s13, 0
    s_mov_b32 s26, 102400
    s_mov_b32 s27, 0x00020000
    """)
    k.srd(28, 4, MATB)
    k.srd(32, 14, 1280)
    k.srd_off(36, 12, WS_H, MATB)
    k.srd_off(40, 12, WS_ST, 32768)
    n0 = k.nst
    k("""
    s_cmp_lt_u32 s18, 5
    s_cbranch_scc0 oproj_kernel_idle
    s_lshl_b32 s45, s17, 6
    v_add_u32 v5, s45, v3
    v_mul_u32_u24 v10, 1280, v5
    v_lshl_add_u32 v10, v4, 3, v10
    v_lshlrev_b32 v11, 3, v4
    s_mul_i32 s59, s16, 160
    s_lshl_b32 s46, s18, 5
    s_add_u32 s59, s59, s46
    s_mov_b32 s44, s59
    """)
    for rf in range(4):
        k(f"buffer_load_dwordx2 {v2(XR+2*rf)}, v10, s[28:31], s44 offen\ns_add_u32 s44, s44, 20480")
    k(f"buffer_load_dwordx2 {v2(WR)}, v11, s[32:35], s59 offen")
    gemm_mm(k, False, 0)
    k("s_waitcnt vmcnt(0)")
    k("s_nop 7\nv_mov_b32 v15, 0x3f803f80\ns_mov_b32 s44, s59")
    for rf in range(4):
        a = ACC + 4 * rf
        S = TMP + 4 * rf
        k(f"v_cvt_pk_bf16_f32 v{a}, v{a}, v{a+1}\nv_cvt_pk_bf16_f32 v{a+1}, v{a+2}, v{a+3}")
        k(f"v_mov_b32 v{S}, 0\nv_mov_b32 v{S+1}, 0\nv_mov_b32 v{S+2}, 0\nv_mov_b32 v{S+3}, 0")
        for h in range(2):
            k(f"""
            v_lshlrev_b32 v12, 16, v{a+h}
            v_and_b32 v13, 0xffff0000, v{a+h}
            v_lshlrev_b32 v6, 16, v{XR+2*rf+h}
            v_and_b32 v7, 0xffff0000, v{XR+2*rf+h}
            v_add_f32 v12, v12, v6
            v_add_f32 v13, v13, v7
            v_cvt_pk_bf16_f32 v{a+h}, v12, v13
            """)
            k(f"v_dot2_f32_bf16 v{S}, v{a+h}, v15, v{S}\nv_dot2_f32_bf16 v{S+1}, v{a+h}, v{a+h}, v{S+1}\nv_dot2_f32_bf16 v{S+2}, v{a+h}, v{WR+h}, v{S+2}")
        k(f"buffer_store_dwordx2 {v2(a)}, v10, s[36:39], s44 offen\ns_add_u32 s44, s44, 20480")
    k("s_nop 3")
    red_g(k, [TMP + 4 * rf + i for rf in range(4) for i in range(3)], 16)
    k(f"""
    v_lshlrev_b32 v14, 4, v3
    s_lshl_b32 s46, s18, 10
    s_add_u32 s46, s46, {EXS}
    v_add_u32 v14, s46, v14
    s_mov_b64 exec, 0xffff
    """)
    for rf in range(4):
        k(f"ds_write_b128 v14, {v4(TMP+4*rf)} offset:{rf*256}")
    k("s_mov_b64 exec, -1\ns_waitcnt lgkmcnt(0)\ns_barrier\ns_branch oproj_kernel_end")
    k.label("idle")
    for lw in range(3):
        if lw < 2:
            k(f"s_cmp_eq_u32 s18, {5+lw}\ns_cbranch_scc0 oproj_kernel_ld{lw+1}")
        k.nst = n0
        gemm_loader(k, lw, True, 0, 20480)
        if lw < 2:
            k("s_barrier\ns_branch oproj_kernel_end")
            k.label(f"ld{lw+1}")
    k(f"""
    s_barrier
    s_cmp_eq_u32 s18, 7
    s_cbranch_scc0 oproj_kernel_end
    v_lshlrev_b32 v14, 2, v1
    v_add_u32 v9, {EXS}, v14
    """)
    for w in range(5):
        for q in range(4):
            k(f"ds_read_b32 v{16+4*w+q}, v9 offset:{w*1024+q*256}")
    k("s_lshl_b32 s44, s17, 10\ns_waitcnt lgkmcnt(0)")
    for q in range(4):
        k(f"v_add_f32 v{16+q}, v{16+q}, v{20+q}\nv_add_f32 v{24+q}, v{24+q}, v{28+q}\nv_add_f32 v{16+q}, v{16+q}, v{24+q}\nv_add_f32 v{16+q}, v{16+q}, v{32+q}")
    for q in range(4):
        k(f"buffer_atomic_add_f32 v{16+q}, v14, s[40:43], s44 offen offset:{q*256}")
    k.finish(2)
    return k, "grid=(256,1,1) block=(512,1,1) lds=%d" % (3 * SLOT + 5120)

def row_stats(k, s0, s1, s2, mean, rstd, r=None, wsum=None):
    k(f"""
    v_mul_f32 v{mean}, {f32hex(1/640)}, v{s0}
    v_mul_f32 v{rstd}, {f32hex(1/640)}, v{s1}
    v_fma_f32 v{rstd}, -v{mean}, v{mean}, v{rstd}
    v_max_f32 v{rstd}, 0, v{rstd}
    v_add_f32 v{rstd}, {f32hex(1e-5)}, v{rstd}
    v_rsq_f32 v{rstd}, v{rstd}
    """)
    if r is not None:
        k(f"v_fma_f32 v{r}, -v{mean}, v{wsum}, v{s2}\nv_mul_f32 v{r}, v{r}, v{rstd}")

NFB = 40
def gen_k4():
    k = K("ffn_kernel", 128)
    NTOT = NFF + NFB + 128
    SS = 88
    k(f"""
    s_cmp_ge_u32 s2, {NTOT}
    s_cbranch_scc1 ffn_kernel_exit
    s_load_dwordx4 s[8:11], s[0:1], 80
    s_load_dwordx2 s[12:13], s[0:1], 96
    s_waitcnt lgkmcnt(0)
    """)
    k.stamp()
    k.srd_off(20, 12, WS_H, MATB)
    k.srd_off(24, 12, WS_ST, 32768)
    k.srd_off(40, 12, WS_SEL, 64)
    k.srd(28, 8, MATB)
    k.srd(48, 10, 256)
    k.srd_off(44, 12, WS_A, 1728 * 4)
    k("v_lshlrev_b32 v1, 4, v0")
    for i in range(8):
        k(f"v_add_u32 v2, {4096*i}, v1\nbuffer_load_dwordx3 v[{SS+4*i}:{SS+2+4*i}], v2, s[24:27], 0 offen")
    k("v_mov_b32 v2, 0\nbuffer_load_dword v125, v2, s[40:43], 0 offen offset:32")
    def argmax(nyounger):
        k(f"s_waitcnt vmcnt({nyounger})")
        k("v_mov_b32 v7, 0")
        for i in range(8):
            b = SS + 4 * i
            row_stats(k, b, b + 1, b + 2, 8, 9, 10, 125)
            k(f"""
            v_ashrrev_i32 v11, 31, v10
            v_or_b32 v11, 0x80000000, v11
            v_xor_b32 v11, v11, v10
            v_and_b32 v11, 0xfffff800, v11
            v_sub_u32 v12, {2047 - 256*i}, v0
            v_or_b32 v11, v11, v12
            v_max_u32 v7, v7, v11
            """)
        for ror in (8, 4, 2, 1):
            k(f"s_nop 1\nv_max_u32_dpp v7, v7, v7 row_ror:{ror} row_mask:0xf bank_mask:0xf")
        k("""
        v_lshrrev_b32 v8, 4, v0
        v_lshlrev_b32 v8, 2, v8
        ds_write_b32 v8, v7
        s_waitcnt lgkmcnt(0)
        s_barrier
        v_mov_b32 v8, 0
        ds_read_b128 v[8:11], v8
        v_mov_b32 v12, 0
        ds_read_b128 v[12:15], v12 offset:16
        v_mov_b32 v2, 0
        ds_read_b128 v[2:5], v2 offset:32
        v_mov_b32 v120, 0
        ds_read_b128 v[120:123], v120 offset:48
        s_waitcnt lgkmcnt(0)
        v_max3_u32 v7, v8, v9, v10
        v_max3_u32 v7, v11, v12, v7
        v_max3_u32 v7, v13, v14, v7
        v_max3_u32 v7, v15, v2, v7
        v_max3_u32 v7, v3, v4, v7
        v_max3_u32 v7, v5, v120, v7
        v_max3_u32 v7, v121, v122, v7
        v_max_u32 v7, v123, v7
        v_and_b32 v7, 0x7ff, v7
        v_sub_u32 v7, 2047, v7
        s_nop 0
        v_readfirstlane_b32 s18, v7
        s_nop 3
        s_lshl_b32 s19, s18, 4
        s_mul_i32 s50, s18, 1280
        """.replace("s_mul_i32 s50, s18, 1280", "s_mul_i32 s53, s18, 1280"))
    def gemv_reduce(AC, nacc):
        for ror in (8, 4, 2):
            k("s_nop 1")
            for r in range(nacc):
                k(f"v_add_f32_dpp v{AC+r}, v{AC+r}, v{AC+r} row_ror:{ror} row_mask:0xf bank_mask:0xf")
        k(f"""
        v_lshrrev_b32 v12, 4, v0
        v_lshlrev_b32 v12, 7, v12
        v_and_b32 v13, 1, v0
        v_lshl_add_u32 v12, v13, 6, v12
        s_mov_b32 s52, 0x00030003
        s_mov_b32 exec_lo, s52
        s_mov_b32 exec_hi, s52
        """)
        for q in range(nacc // 4):
            k(f"ds_write_b128 v12, {v4(AC+4*q)} offset:{64+16*q}")
        k("s_mov_b64 exec, -1\ns_waitcnt lgkmcnt(0)\ns_barrier")
        k("""
        v_and_b32 v13, 7, v0
        v_bfe_u32 v12, v0, 3, 1
        v_lshlrev_b32 v12, 6, v12
        v_lshl_add_u32 v12, v13, 2, v12
        """)
    k(f"s_cmp_lt_u32 s2, {NFF}\ns_cbranch_scc1 ffn_kernel_ffa\ns_cmp_lt_u32 s2, {NFF+NFB}\ns_cbranch_scc1 ffn_kernel_ffb")
    k(f"""
    s_sub_u32 s16, s2, {NFF+NFB}
    s_add_u32 s17, s16, {(NFF+NFB) % 8}
    s_and_b32 s17, s17, 7
    s_lshl_b32 s17, s17, 4
    s_lshr_b32 s16, s16, 3
    s_add_u32 s16, s16, s17
    s_mul_i32 s17, s16, 20480
    s_lshl_b32 s51, s16, 8
    s_lshl_b32 s16, s16, 4
    """)
    for i in range(5):
        k(f"v_add_u32 v{60+i}, {4096*i}, v1\nbuffer_load_dwordx4 {v4(16+4*i)}, v{60+i}, s[20:23], s17 offen")
    for i in range(5):
        k(f"""
        v_add_u32 v{66+i}, {256*i}, v0
        v_mul_u32_u24 v{66+i}, 3277, v{66+i}
        v_lshrrev_b32 v{66+i}, 18, v{66+i}
        v_lshlrev_b32 v72, 4, v{66+i}
        buffer_load_dwordx2 {v2(40+2*i)}, v72, s[24:27], s51 offen
        """)
    argmax(10)
    k("s_sub_u32 s18, s18, s16\nv_mov_b32 v73, 0x40000000\ns_waitcnt vmcnt(0)")
    for i in range(5):
        row_stats(k, 40 + 2 * i, 41 + 2 * i, None, 52, 53)
        k(f"v_cmp_eq_u32 vcc, s18, v{66+i}\nv_mul_f32 v52, v52, v53\ns_nop 0")
        k(f"v_cndmask_b32 v{60+i}, v{60+i}, v73, vcc")
        for d in range(4):
            r = 16 + 4 * i + d
            k(f"""
            v_lshlrev_b32 v54, 16, v{r}
            v_and_b32 v55, 0xffff0000, v{r}
            v_fma_f32 v56, v54, v53, -v52
            v_fma_f32 v57, v55, v53, -v52
            v_cvt_pk_bf16_f32 v56, v56, v57
            v_lshlrev_b32 v57, 16, v56
            v_and_b32 v56, 0xffff0000, v56
            v_add_f32 v54, v54, v57
            v_add_f32 v55, v55, v56
            v_cvt_pk_bf16_f32 v{r}, v54, v55
            """)
        k(f"buffer_store_dwordx4 {v4(16+4*i)}, v{60+i}, s[28:31], s17 offen")
    k("s_branch ffn_kernel_end")
    k.label("ffa")
    G, U, HX, AC = 16, 36, 56, 64
    k.srd_off(32, 12, WS_FW, NFF * 40960)
    k("s_mul_i32 s16, s2, 40960")
    for i in range(5):
        k(f"s_add_u32 s17, s16, {i*4096}\nbuffer_load_dwordx4 {v4(G+4*i)}, v1, s[32:35], s17 offen\ns_add_u32 s17, s16, {20480+i*4096}\nbuffer_load_dwordx4 {v4(U+4*i)}, v1, s[32:35], s17 offen")
    k.stamp()
    argmax(10)
    k.stamp()
    k(f"v_mov_b32 v2, 0\nbuffer_load_dwordx3 v[{SS}:{SS+2}], v2, s[24:27], s19 offen\nv_and_b32 v8, 0xfe, v0")
    for i in range(5):
        k(f"buffer_load_ushort v{HX+i}, v8, s[20:23], s53 offen offset:{256*i}")
    k("s_waitcnt vmcnt(5)")
    row_stats(k, SS, SS + 1, SS + 2, 8, 9)
    k("s_nop 0\nv_mul_f32 v11, v8, v9\ns_waitcnt vmcnt(0)")
    for i in range(5):
        k(f"v_lshlrev_b32 v{HX+i}, 16, v{HX+i}\nv_fma_f32 v{HX+i}, v{HX+i}, v9, -v11\nv_cvt_pk_bf16_f32 v{HX+i}, v{HX+i}, v{HX+i}\nv_lshlrev_b32 v{HX+i}, 16, v{HX+i}")
    k.stamp()
    for r in range(16):
        k(f"v_mov_b32 v{AC+r}, 0")
    for i in range(5):
        for (src, acc) in ((G, AC), (U, AC + 8)):
            for d in range(4):
                s_ = src + 4 * i + d
                k(f"v_lshlrev_b32 v12, 16, v{s_}\nv_and_b32 v13, 0xffff0000, v{s_}\nv_fmac_f32 v{acc+2*d}, v12, v{HX+i}\nv_fmac_f32 v{acc+2*d+1}, v13, v{HX+i}")
    k.stamp()
    gemv_reduce(AC, 16)
    k("s_cmp_lt_u32 s2, 0x7fffffff\nv_cmp_gt_u32 vcc, 64, v0\ns_cbranch_vccz ffn_kernel_end")
    for rr in range(16):
        k(f"ds_read_b32 v{16+rr}, v12 offset:{64+128*rr}\nds_read_b32 v{32+rr}, v12 offset:{96+128*rr}")
    k("s_waitcnt lgkmcnt(0)")
    for st in (8, 4, 2, 1):
        for rr in range(st):
            k(f"v_add_f32 v{16+rr}, v{16+rr}, v{16+rr+st}\nv_add_f32 v{32+rr}, v{32+rr}, v{32+rr+st}")
    k(f"""
    v_cvt_pk_bf16_f32 v16, v16, v32
    v_and_b32 v20, 0xffff0000, v16
    v_lshlrev_b32 v16, 16, v16
    v_mul_f32 v17, {f32hex(-1.4426950408889634)}, v16
    v_exp_f32 v17, v17
    s_nop 0
    v_add_f32 v17, 1.0, v17
    v_rcp_f32 v17, v17
    s_nop 0
    v_mul_f32 v16, v16, v17
    v_cvt_pk_bf16_f32 v16, v16, v16
    v_lshlrev_b32 v16, 16, v16
    v_mul_f32 v16, v16, v20
    v_cvt_pk_bf16_f32 v16, v16, v16
    v_lshlrev_b32 v16, 16, v16
    v_lshlrev_b32 v12, 2, v0
    s_lshl_b32 s16, s2, 6
    s_mov_b64 exec, 0xffff
    buffer_store_dword v16, v12, s[44:47], s16 offen sc1
    s_mov_b64 exec, -1
    s_branch ffn_kernel_end
    """)
    k.label("ffb")
    D, AV_, AC = 16, 72, 104
    k.srd_off(32, 12, WS_WD, 40 * 55296)
    k(f"s_sub_u32 s16, s2, {NFF}\ns_mul_i32 s17, s16, 55296\nv_cmp_gt_u32 vcc, 128, v0\nv_mov_b32 v2, 0x40000000\ns_nop 1\nv_cndmask_b32 v6, v2, v1, vcc")
    for i in range(14):
        k(f"buffer_load_dwordx4 {v4(D+4*i)}, v{6 if i == 13 else 1}, s[32:35], s17 offen\ns_add_u32 s17, s17, 4096")
    argmax(14)
    k(f"v_mov_b32 v2, 0\nbuffer_load_dwordx3 v[{SS}:{SS+2}], v2, s[24:27], s19 offen")
    k("v_and_b32 v3, 15, v0\nv_lshlrev_b32 v3, 1, v3\ns_lshl_b32 s17, s16, 5\ns_add_u32 s53, s53, s17\nbuffer_load_ushort v124, v3, s[20:23], s53 offen")
    k("s_waitcnt vmcnt(1)")
    row_stats(k, SS, SS + 1, SS + 2, 8, 9, 10, 125)
    k(f"""
    s_nop 0
    v_cvt_pk_bf16_f32 v10, v10, v10
    v_lshlrev_b32 v10, 16, v10
    v_mul_f32 v11, {f32hex(-1.4426950408889634)}, v10
    v_exp_f32 v11, v11
    s_nop 0
    v_add_f32 v11, 1.0, v11
    v_rcp_f32 v11, v11
    s_nop 0
    v_cvt_pk_bf16_f32 v11, v11, v11
    v_lshlrev_b32 v11, 16, v11
    s_mov_b32 s17, 0
    """)
    k.stamp()
    k("v_lshrrev_b32 v4, 1, v0\nv_lshlrev_b32 v4, 2, v4")
    k.label("poll")
    for i in range(14):
        k(f"s_mov_b32 s16, {512*i}\nbuffer_load_dword v{AV_+i}, v4, s[44:47], s16 offen sc1")
    k("s_waitcnt vmcnt(0)")
    k(f"v_and_b32 v5, v{AV_}, v{AV_+1}")
    k(f"v_max_u32 v5, v{AV_}, v{AV_+1}")
    for i in range(2, 14, 2):
        k(f"v_max3_u32 v5, v{AV_+i}, v{AV_+i+1}, v5")
    k(f"""
    v_cmp_eq_u32 vcc, -1, v5
    s_add_u32 s17, s17, 1
    s_cbranch_vccz ffn_kernel_go
    s_cmp_lt_u32 s17, 0x100000
    s_cbranch_scc0 ffn_kernel_go
    s_sleep 2
    s_branch ffn_kernel_poll
    """)
    k.label("go")
    k.stamp()
    for r in range(8):
        k(f"v_mov_b32 v{AC+r}, 0")
    for i in range(14):
        for d in range(4):
            s_ = D + 4 * i + d
            k(f"v_lshlrev_b32 v12, 16, v{s_}\nv_and_b32 v13, 0xffff0000, v{s_}\nv_fmac_f32 v{AC+2*d}, v12, v{AV_+i}\nv_fmac_f32 v{AC+2*d+1}, v13, v{AV_+i}")
    gemv_reduce(AC, 8)
    k("v_cmp_gt_u32 vcc, 64, v0\ns_cbranch_vccz ffn_kernel_end")
    for rr in range(16):
        k(f"ds_read_b32 v{16+rr}, v12 offset:{64+128*rr}")
    k("s_waitcnt lgkmcnt(0)")
    for st in (8, 4, 2, 1):
        for rr in range(st):
            k(f"v_add_f32 v{16+rr}, v{16+rr}, v{16+rr+st}")
    k("""
    v_cvt_pk_bf16_f32 v16, v16, v16
    v_lshlrev_b32 v16, 16, v16
    v_mul_f32 v16, v16, v11
    v_cvt_pk_bf16_f32 v16, v16, v16
    v_lshlrev_b32 v16, 16, v16
    v_lshlrev_b32 v124, 16, v124
    v_sub_f32 v10, v124, v8
    v_mul_f32 v10, v10, v9
    v_cvt_pk_bf16_f32 v10, v10, v10
    v_lshlrev_b32 v10, 16, v10
    v_add_f32 v10, v10, v16
    v_cvt_pk_bf16_f32 v10, v10, v10
    v_lshlrev_b32 v10, 16, v10
    v_add_f32 v10, v10, v124
    v_cvt_pk_bf16_f32 v10, v10, v10
    s_mov_b64 exec, 0xffff
    buffer_store_short v10, v3, s[28:31], s53 offen
    s_mov_b64 exec, -1
    """)
    k.finish(3)
    return k, f"grid=({NTOT},1,1) block=(256,1,1) lds=4096"

def main():
    ks = [gen_k1(), gen_k2(), gen_k3(), gen_k4()]
    out = "; generated by dev/gen7.py (hand-written generator)\n"
    for k, l in ks:
        out += f"; @launch kernel={k.name} {l}\n"
    out += '.amdgcn_target "amdgcn-amd-amdhsa--gfx950"\n.text\n'
    for k, l in ks:
        out += k.text()
    out += '.section .rodata,"a"\n'
    for k, l in ks:
        out += ".p2align 6\n" + k.desc()
    path = sys.argv[1] if len(sys.argv) > 1 else f"cdna_kernels/{NAME}.s"
    open(path, "w").write(out)
    print("wrote", path, len(out))

main()
```

```python
import sys, struct, os
STAMP = os.environ.get("STAMP", "0") == "1"
DIAG = os.environ.get("DIAG", "0") == "1"
NAME = "sequential_preLN__grouped_kv_mqa__moe_arch_mod__prompt"
WS_Q, WS_KV, WS_O, WS_H, WS_ST, WS_KM, WS_YP, WS_SEL = 0, 0x400000, 0x800000, 0xC00000, 0x1000000, 0x1100000, 0x1200000, 0x1300000
WS_FW, WS_WO, WS_WD, WS_A = 0x1400000, 0x1900000, 0x1A00000, 0x1D00000
MATB = 2048 * 1280
QSCALE = (20 ** -0.5) * 1.4426950408889634
NFF = 108

def f32hex(x):
    return "0x%08x" % struct.unpack("<I", struct.pack("<f", x))[0]

class K:
    def __init__(self, name, vgpr, sgpr=96):
        self.name, self.vgpr, self.sgpr = name, vgpr, sgpr
        self.lines = []
        self.nst = 0
    def __call__(self, s):
        for l in s.strip().split("\n"):
            if l.strip():
                self.lines.append("    " + l.strip())
    def label(self, s):
        self.lines.append(f"{self.name}_{s}:")
    def srd(self, d, b, size):
        self(f"s_mov_b32 s{d}, s{b}\ns_mov_b32 s{d+1}, s{b+1}\ns_mov_b32 s{d+2}, {size}\ns_mov_b32 s{d+3}, 0x00020000")
    def srd_off(self, d, b, off, size):
        self(f"s_add_u32 s{d}, s{b}, {off}\ns_addc_u32 s{d+1}, s{b+1}, 0\ns_mov_b32 s{d+2}, {size}\ns_mov_b32 s{d+3}, 0x00020000")
    def stamp(self, real=False):
        if not STAMP: return
        i = self.nst; self.nst += 1
        self(f"{'s_memrealtime' if real else 's_memtime'} s[{60+2*i}:{61+2*i}]")
    def diag_start(self, kid):
        if not DIAG: return
        self(f"s_load_dwordx2 s[84:85], s[0:1], 88\ns_memrealtime s[86:87]\ns_waitcnt lgkmcnt(0)\ns_sub_u32 s84, s84, {512*kid}\ns_subb_u32 s85, s85, 0")
    def finish(self, kid, wsreg=12):
        self.label("end")
        self.stamp()
        if DIAG:
            self(f"""
            s_memrealtime s[88:89]
            s_waitcnt lgkmcnt(0) vmcnt(0)
            s_mov_b64 exec, 1
            s_mov_b32 s92, s84
            s_mov_b32 s93, s85
            s_mov_b32 s94, 256
            s_mov_b32 s95, 0x00020000
            v_mov_b32 v1, 0
            v_mov_b32 v2, s88
            buffer_atomic_umax v2, v1, s[92:95], 0 offen offset:{8*kid+4} sc1
            v_not_b32 v3, s86
            buffer_atomic_umax v3, v1, s[92:95], 0 offen offset:{8*kid} sc1
            """)
        if STAMP:
            self(f"s_waitcnt lgkmcnt(0)\ns_mov_b64 exec, 1")
            self.srd_off(92, wsreg, 0x2000000 + kid * 0x100000, 0x100000)
            self("v_lshrrev_b32 v1, 6, v0\ns_lshl_b32 s90, s2, 4\nv_add_u32 v1, s90, v1\nv_lshlrev_b32 v1, 6, v1")
            for i in range(self.nst):
                self(f"v_mov_b32 v2, s{60+2*i}\nbuffer_store_dword v2, v1, s[92:95], 0 offen offset:{4*i}")
        self.label("exit")
        self("s_endpgm")
    def text(self):
        return (f".globl {self.name}\n.p2align 8\n.type {self.name},@function\n{self.name}:\n" + "\n".join(self.lines) + "\n")
    def desc(self):
        acc = (self.vgpr + 3) // 4 * 4
        return (f".amdhsa_kernel {self.name}\n  .amdhsa_next_free_vgpr {self.vgpr}\n  .amdhsa_next_free_sgpr {self.sgpr}\n"
                f"  .amdhsa_accum_offset {acc}\n  .amdhsa_group_segment_fixed_size 0\n  .amdhsa_kernarg_size 104\n"
                f"  .amdhsa_user_sgpr_count 2\n  .amdhsa_user_sgpr_kernarg_segment_ptr 1\n  .amdhsa_system_sgpr_workgroup_id_x 1\n"
                f".end_amdhsa_kernel\n")

def v4(b): return f"v[{b}:{b+3}]"
def v2(b): return f"v[{b}:{b+1}]"
def v16(b): return f"v[{b}:{b+15}]"

def red_g(k, regs, tmp, op="add"):
    ins = "v_add_f32" if op == "add" else "v_max_f32"
    for i, r in enumerate(regs):
        k(f"ds_swizzle_b32 v{tmp+i}, v{r} offset:0x401F")
    k("s_waitcnt lgkmcnt(0)")
    for i, r in enumerate(regs):
        k(f"{ins} v{r}, v{r}, v{tmp+i}\nv_mov_b32 v{tmp+i}, v{r}")
    k("s_nop 1")
    for i, r in enumerate(regs):
        k(f"v_permlane32_swap_b32 v{tmp+i}, v{r}")
    k("s_nop 1")
    for i, r in enumerate(regs):
        k(f"{ins} v{r}, v{r}, v{tmp+i}")

def ln_fin(k, m, r):
    k(f"""
    v_mul_f32 v{m}, {f32hex(1/640)}, v{m}
    v_mul_f32 v{r}, {f32hex(1/640)}, v{r}
    v_fma_f32 v{r}, -v{m}, v{m}, v{r}
    v_max_f32 v{r}, 0, v{r}
    v_add_f32 v{r}, {f32hex(1e-5)}, v{r}
    v_rsq_f32 v{r}, v{r}
    s_nop 0
    v_mul_f32 v{m}, v{m}, v{r}
    """)

def gen_k1():
    k = K("kv_kernel", 96)
    WK_OFF, WV_OFF = 20480, 20480 + 28672
    XF, WF, ACC, CS, ONES, ST, TMP = 16, 24, 32, 36, 40, 44, 52
    k("""
    s_cmp_ge_u32 s2, 128
    s_cbranch_scc1 kv_kernel_exit
    s_load_dwordx2 s[4:5], s[0:1], 0
    s_load_dwordx4 s[8:11], s[0:1], 16
    s_load_dwordx2 s[12:13], s[0:1], 96
    s_load_dwordx2 s[14:15], s[0:1], 48
    v_and_b32 v1, 63, v0
    v_lshrrev_b32 v2, 6, v0
    s_and_b32 s17, s2, 7
    s_lshl_b32 s17, s17, 4
    s_lshr_b32 s44, s2, 3
    s_add_u32 s17, s17, s44
    v_readfirstlane_b32 s18, v2
    v_and_b32 v3, 15, v1
    v_lshrrev_b32 v4, 4, v1
    s_waitcnt lgkmcnt(0)
    """)
    k.diag_start(0)
    k.stamp()
    k.srd(20, 4, MATB)
    k.srd(24, 8, 25600)
    k.srd(28, 10, 25600)
    k("s_mul_i32 s45, s17, 20480\ns_mul_i32 s46, s18, 320\ns_mul_i32 s48, s18, 5120")
    for j in range(5):
        k(f"""
        v_add_u32 v6, s46, v1
        v_add_u32 v6, {64*j}, v6
        v_mul_u32_u24 v7, 3277, v6
        v_lshrrev_b32 v7, 18, v7
        v_mul_u32_u24 v8, 80, v7
        v_sub_u32 v8, v6, v8
        v_xor_b32 v8, v8, v7
        v_mul_u32_u24 v7, 1280, v7
        v_lshl_add_u32 v7, v8, 4, v7
        s_mov_b32 m0, s48
        s_add_u32 s48, s48, 1024
        buffer_load_dwordx4 v7, s[20:23], s45 offen lds
        """)
    k(f"v_lshlrev_b32 v7, 4, v1\ns_lshl_b32 s47, s18, 10\ns_add_u32 s48, s47, {WK_OFF}")
    for j in range(7):
        k(f"s_mov_b32 m0, s48\ns_add_u32 s49, s48, 28672\nbuffer_load_dwordx4 v7, s[24:27], s47 offen lds\ns_mov_b32 m0, s49\ns_add_u32 s48, s48, 4096\nbuffer_load_dwordx4 v7, s[28:31], s47 offen lds\ns_add_u32 s47, s47, 4096")
    k(f"""
    v_mul_u32_u24 v9, 1280, v3
    v_and_b32 v6, 3, v3
    v_xor_b32 v6, v6, v4
    v_lshl_add_u32 v9, v6, 4, v9
    v_and_b32 v10, 12, v3
    v_lshrrev_b32 v12, 2, v1
    v_and_b32 v12, 3, v12
    v_lshl_add_u32 v12, v4, 3, v12
    v_and_b32 v13, 3, v1
    v_mul_u32_u24 v11, 40, v12
    v_lshl_add_u32 v11, v13, 3, v11
    s_lshr_b32 s46, s18, 1
    s_mul_i32 s46, s46, 28672
    s_and_b32 s47, s18, 1
    s_lshl_b32 s47, s47, 5
    s_add_u32 s46, s46, s47
    s_add_u32 s46, s46, {WK_OFF}
    v_add_u32 v11, s46, v11
    """)
    for q in range(4):
        k(f"v_xor_b32 v6, {4*q}, v10\nv_lshl_add_u32 v{TMP+8+q}, v6, 4, v9")
    for i in range(4):
        k(f"v_mov_b32 v{ONES+i}, 0x3f803f80\nv_mov_b32 v{ST+i}, 0")
    k.srd_off(36, 12, WS_KV, 163840)
    k.stamp()
    k("s_waitcnt vmcnt(0)\ns_barrier")
    k.stamp()
    def reads(ks, b):
        k(f"ds_read_b128 {v4(XF+4*b)}, v{TMP+8+(ks&3)} offset:{(ks>>2)*256}")
        for h in range(2):
            k(f"ds_read_b64_tr_b16 {v2(WF+4*b+2*h)}, v11 offset:{ks*1280+h*160}")
    reads(0, 0)
    for ks in range(20):
        if ks < 19:
            reads(ks + 1, (ks + 1) & 1)
            k("s_waitcnt lgkmcnt(3)")
        else:
            k("s_waitcnt lgkmcnt(0)")
        b = ks & 1
        k(f"v_mfma_f32_16x16x32_bf16 {v4(ACC)}, {v4(WF+4*b)}, {v4(XF+4*b)}, {'0' if ks == 0 else v4(ACC)}")
        k(f"v_mfma_f32_16x16x32_bf16 {v4(CS)}, {v4(WF+4*b)}, {v4(ONES)}, {'0' if ks == 0 else v4(CS)}")
        for d in range(4):
            k(f"v_dot2_f32_bf16 v{ST+(d&1)}, v{XF+4*b+d}, v{ONES}, v{ST+(d&1)}\nv_dot2_f32_bf16 v{ST+2+(d&1)}, v{XF+4*b+d}, v{XF+4*b+d}, v{ST+2+(d&1)}")
    k.stamp()
    k(f"s_nop 7\nv_add_f32 v{ST}, v{ST}, v{ST+1}\nv_add_f32 v{ST+1}, v{ST+2}, v{ST+3}")
    red_g(k, [ST, ST + 1], TMP)
    ln_fin(k, ST, ST + 1)
    k.srd_off(40, 12, WS_Q, 16384)
    k(f"""
    s_cmp_eq_u32 s18, 3
    s_cbranch_scc0 kv_kernel_nost
    s_lshl_b32 s46, s17, 7
    v_lshlrev_b32 v14, 3, v3
    s_mov_b64 exec, 0xffff
    buffer_store_dwordx2 {v2(ST)}, v14, s[40:43], s46 offen
    s_mov_b64 exec, -1
    """)
    k.label("nost")
    for r in range(4):
        k(f"v_mul_f32 v{ACC+r}, v{ACC+r}, v{ST+1}\nv_fma_f32 v{ACC+r}, -v{CS+r}, v{ST}, v{ACC+r}")
    k(f"v_cvt_pk_bf16_f32 v{ACC}, v{ACC}, v{ACC+1}\nv_cvt_pk_bf16_f32 v{ACC+1}, v{ACC+2}, v{ACC+3}")
    k("""
    s_lshr_b32 s44, s17, 1
    s_mul_i32 s44, s44, 2560
    s_and_b32 s45, s17, 1
    s_cmp_ge_u32 s18, 2
    s_cbranch_scc1 kv_kernel_vepi
    v_mov_b32 v15, 0
    s_cmp_eq_u32 s18, 0
    s_cbranch_scc0 kv_kernel_k1
    """)
    k(f"""
    s_lshl_b32 s46, s45, 8
    s_add_u32 s44, s44, s46
    v_lshrrev_b32 v14, 1, v4
    v_lshlrev_b32 v14, 9, v14
    v_lshl_add_u32 v14, v3, 4, v14
    v_and_b32 v13, 1, v4
    v_lshl_add_u32 v14, v13, 3, v14
    buffer_store_dwordx2 {v2(ACC)}, v14, s[36:39], s44 offen
    v_dot2_f32_bf16 v15, v{ACC}, v{ACC}, v15
    v_dot2_f32_bf16 v15, v{ACC+1}, v{ACC+1}, v15
    s_nop 3
    """)
    red_g(k, [15], TMP)
    k("s_branch kv_kernel_kmax")
    k.label("k1")
    k(f"""
    s_lshl_b32 s46, s45, 7
    s_add_u32 s44, s44, s46
    v_lshlrev_b32 v14, 3, v3
    s_mov_b64 exec, 0xffff
    buffer_store_dwordx2 {v2(ACC)}, v14, s[36:39], s44 offen offset:1024
    v_dot2_f32_bf16 v15, v{ACC}, v{ACC}, v15
    v_dot2_f32_bf16 v15, v{ACC+1}, v{ACC+1}, v15
    """)
    k.srd_off(40, 12, WS_A, 1728 * 4)
    k("""
    s_mov_b64 exec, -1
    v_mov_b32 v20, -1
    v_mov_b32 v21, -1
    v_mov_b32 v22, -1
    v_mov_b32 v23, -1
    s_lshl_b32 s46, s2, 10
    v_lshlrev_b32 v14, 4, v1
    buffer_store_dwordx4 v[20:23], v14, s[40:43], s46 offen
    s_mov_b64 exec, 0xffff
    s_nop 1
    """)
    k.srd_off(40, 12, WS_ST, 32768)
    k("""
    v_mov_b32 v20, 0
    v_mov_b32 v21, 0
    v_mov_b32 v22, 0
    v_mov_b32 v23, 0
    s_lshl_b32 s46, s17, 8
    v_lshlrev_b32 v14, 4, v3
    buffer_store_dwordx4 v[20:23], v14, s[40:43], s46 offen
    s_mov_b64 exec, -1
    """)
    k.label("kmax")
    for off in ("0x041F", "0x081F", "0x101F", "0x201F"):
        k(f"ds_swizzle_b32 v{TMP}, v15 offset:{off}\ns_waitcnt lgkmcnt(0)\nv_max_f32 v15, v15, v{TMP}")
    k.srd_off(40, 12, WS_KM, 1024)
    k("""
    s_lshl_b32 s44, s18, 7
    s_add_u32 s44, s44, s17
    s_lshl_b32 s44, s44, 2
    v_mov_b32 v14, 0
    s_mov_b64 exec, 1
    buffer_store_dword v15, v14, s[40:43], s44 offen
    s_mov_b64 exec, -1
    s_branch kv_kernel_end
    """)
    k.label("vepi")
    k("""
    s_mul_i32 s46, s45, 640
    s_add_u32 s44, s44, s46
    v_bfe_u32 v14, v3, 2, 1
    v_mul_u32_u24 v12, 320, v14
    v_bfe_u32 v14, v3, 3, 1
    v_lshl_add_u32 v12, v14, 3, v12
    v_and_b32 v14, 3, v3
    v_lshl_add_u32 v12, v14, 1, v12
    v_lshl_add_u32 v14, v4, 6, v12
    s_cmp_eq_u32 s18, 2
    s_cbranch_scc1 kv_kernel_v0
    v_add_u32 v14, 256, v12
    s_mov_b64 exec, 0xffff
    """)
    k.label("v0")
    k(f"""
    buffer_store_short v{ACC}, v14, s[36:39], s44 offen offset:1280
    buffer_store_short_d16_hi v{ACC}, v14, s[36:39], s44 offen offset:1296
    buffer_store_short v{ACC+1}, v14, s[36:39], s44 offen offset:1312
    buffer_store_short_d16_hi v{ACC+1}, v14, s[36:39], s44 offen offset:1328
    s_mov_b64 exec, -1
    s_cmp_eq_u32 s18, 3
    s_cbranch_scc0 kv_kernel_end
    s_cmp_eq_u32 s2, 0
    s_cbranch_scc0 kv_kernel_end
    """)
    k.srd(40, 14, 1280)
    k(f"""
    v_mul_u32_u24 v8, 20, v1
    buffer_load_dwordx4 v[20:23], v8, s[40:43], 0 offen
    buffer_load_dword v24, v8, s[40:43], 0 offen offset:16
    v_mov_b32 v17, 0
    s_waitcnt vmcnt(0)
    v_dot2_f32_bf16 v17, v20, v{ONES}, v17
    v_dot2_f32_bf16 v17, v21, v{ONES}, v17
    v_dot2_f32_bf16 v17, v22, v{ONES}, v17
    v_dot2_f32_bf16 v17, v23, v{ONES}, v17
    v_dot2_f32_bf16 v17, v24, v{ONES}, v17
    s_nop 3
    """)
    for off in ("0x041F", "0x081F", "0x101F", "0x201F"):
        k(f"ds_swizzle_b32 v18, v17 offset:{off}\ns_waitcnt lgkmcnt(0)\nv_add_f32 v17, v17, v18")
    red_g(k, [17], 18)
    k.srd_off(40, 12, WS_SEL, 64)
    k("""
    v_mov_b32 v14, 0
    s_mov_b64 exec, 1
    buffer_store_dword v17, v14, s[40:43], 0 offen offset:32
    s_mov_b64 exec, -1
    """)
    k.finish(0)
    return k, "grid=(128,1,1) block=(256,1,1) lds=%d" % (20480 + 2 * 28672)

SLOT = 36864
W_OFF = 16384
XF, SRC, VA_RD, VW_RD, ST, ONES, ACC, CS, WF, TMP = 16, 16, 48, 52, 56, 76, 80, 96, 100, 108

def gemm_ids(k):
    k("""
    v_and_b32 v1, 63, v0
    v_lshrrev_b32 v2, 6, v0
    s_lshr_b32 s16, s2, 5
    s_and_b32 s17, s2, 7
    s_lshl_b32 s17, s17, 2
    s_bfe_u32 s44, s2, 0x20003
    s_add_u32 s17, s17, s44
    v_readfirstlane_b32 s18, v2
    v_and_b32 v3, 15, v1
    v_lshrrev_b32 v4, 4, v1
    """)

def loader_list(lw):
    return [("A", e) for e in range(16)][12*lw:12*lw+12] + [("W", e) for e in range(20)][max(0, 12*lw-16):max(0, 12*lw+12-16)]

def gemm_loader(k, lw, w_linear, gb, wchunk, mid=None, nmid=0):
    lst = loader_list(lw)
    k("s_lshl_b32 s45, s17, 6")
    for i, (kind, e) in enumerate(lst):
        if kind == "A":
            k(f"""
            v_add_u32 v6, {4*e}, v4
            v_and_b32 v7, 15, v6
            v_xor_b32 v7, v7, v3
            v_add_u32 v6, s45, v6
            v_mul_u32_u24 v6, 1280, v6
            v_lshl_add_u32 v{SRC+i}, v7, 4, v6
            """)
        elif w_linear:
            k(f"v_add_u32 v6, {64*e}, v1\nv_lshlrev_b32 v{SRC+i}, 4, v6")
        else:
            k(f"""
            v_add_u32 v6, {64*e}, v1
            v_mul_u32_u24 v7, 6554, v6
            v_lshrrev_b32 v7, 16, v7
            v_mul_u32_u24 v8, 10, v7
            v_sub_u32 v8, v6, v8
            v_mul_u32_u24 v7, 1280, v7
            v_lshl_add_u32 v{SRC+i}, v8, 4, v7
            """)
    def issue(c):
        slot = gb + (c % 3) * SLOT
        k(f"s_mov_b32 s46, {c*256}\ns_mov_b32 s47, {c*wchunk}")
        for i, (kind, e) in enumerate(lst):
            if kind == "A":
                k(f"s_mov_b32 m0, {slot + e*1024}\ns_nop 0\nbuffer_load_dwordx4 v{SRC+i}, s[20:23], s46 offen lds")
            else:
                k(f"s_mov_b32 m0, {slot + W_OFF + e*1024}\ns_nop 0\nbuffer_load_dwordx4 v{SRC+i}, s[24:27], s47 offen lds")
    for c in range(3):
        issue(c)
    if mid:
        mid()
    k.stamp()
    waits = [24 + nmid, 12 + nmid, 12 + nmid, 12, 0]
    for c in range(5):
        k(f"s_waitcnt vmcnt({waits[c]})\ns_barrier")
        k.stamp()
        if 1 <= c <= 2:
            issue(c + 2)
    k.stamp()

def gemm_mm(k, colsum, gb):
    k(f"""
    v_lshlrev_b32 v6, 8, v3
    v_and_b32 v7, 3, v3
    v_xor_b32 v7, v7, v4
    v_lshl_add_u32 v6, v7, 4, v6
    v_add_u32 v6, {gb}, v6
    v_and_b32 v7, 12, v3
    """)
    for ks in range(4):
        k(f"v_xor_b32 v8, {4*ks}, v7\nv_lshl_add_u32 v{VA_RD+ks}, v8, 4, v6")
    k(f"""
    v_lshrrev_b32 v12, 2, v1
    v_and_b32 v12, 3, v12
    v_lshl_add_u32 v12, v4, 3, v12
    v_and_b32 v13, 3, v1
    s_lshl_b32 s48, s18, 5
    s_add_u32 s47, s48, {gb + W_OFF}
    v_mul_u32_u24 v{VW_RD}, 160, v12
    v_lshl_add_u32 v{VW_RD}, v13, 3, v{VW_RD}
    v_add_u32 v{VW_RD}, s47, v{VW_RD}
    """)
    if colsum:
        for i in range(4):
            k(f"v_mov_b32 v{ONES+i}, 0x3f803f80")
    k.stamp()
    def reads(ks, buf):
        for h in range(2):
            k(f"ds_read_b64_tr_b16 {v2(WF+4*buf+2*h)}, v{VW_RD} offset:{ks*5120 + h*640}")
        for rf in range(4):
            k(f"ds_read_b128 {v4(XF+16*buf+4*rf)}, v{VA_RD+ks} offset:{rf*4096}")
    for c in range(5):
        k("s_barrier")
        k.stamp()
        reads(0, 0)
        for ks in range(4):
            if ks < 3:
                reads(ks + 1, (ks + 1) & 1)
                k("s_waitcnt lgkmcnt(6)")
            else:
                k("s_waitcnt lgkmcnt(0)")
                if c < 4:
                    d = SLOT if (c % 3) != 2 else -2 * SLOT
                    for r in [VA_RD + i for i in range(4)] + [VW_RD]:
                        k(f"v_add_u32 v{r}, {d & 0xffffffff}, v{r}")
            first = (c == 0 and ks == 0)
            b = ks & 1
            for rf in range(4):
                a = ACC + 4 * rf
                k(f"v_mfma_f32_16x16x32_bf16 {v4(a)}, {v4(WF+4*b)}, {v4(XF+16*b+4*rf)}, {'0' if first else v4(a)}")
            if colsum:
                k(f"v_mfma_f32_16x16x32_bf16 {v4(CS)}, {v4(WF+4*b)}, {v4(ONES)}, {'0' if first else v4(CS)}")
    k.stamp()

def gen_k2():
    k = K("attn_kernel", 168)
    GB = 53248
    QB, EXS = 163840 - 10240, 163840 - 10240 - 512
    QF1, QF2, SA, SB, O, P = 8, 12, 16, 32, 48, 64
    KF = [72, 80]; VF = [88, 96]
    AK, AK2, AV = 104, 105, 106
    T = 108
    KMR = 126
    CP, CPD = 128, 156
    THRESH = 50.0
    k("""
    s_cmp_ge_u32 s2, 256
    s_cbranch_scc1 attn_kernel_exit
    s_load_dwordx2 s[54:55], s[0:1], 72
    s_load_dwordx4 s[4:7], s[0:1], 0
    s_load_dwordx2 s[12:13], s[0:1], 96
    s_load_dwordx2 s[14:15], s[0:1], 32
    s_load_dwordx4 s[8:11], s[0:1], 56
    """)
    gemm_ids(k)
    k("s_waitcnt lgkmcnt(0)")
    k.diag_start(1)
    k.stamp()
    k.srd(20, 4, MATB)
    k("""
    s_mul_i32 s44, s16, 160
    s_add_u32 s24, s6, s44
    s_addc_u32 s25, s7, 0
    s_sub_u32 s26, 819200, s44
    s_mov_b32 s27, 0x00020000
    """)
    k.srd_off(28, 12, WS_KM, 1024)
    k.srd_off(56, 12, WS_KV, 163840)
    k(f"""
    v_lshlrev_b32 v7, 2, v1
    buffer_load_dword v{KMR}, v7, s[28:31], 0 offen
    buffer_load_dword v{KMR+1}, v7, s[28:31], 0 offen offset:256
    buffer_load_dword v{CP}, v7, s[28:31], 0 offen offset:512
    buffer_load_dword v{CP+1}, v7, s[28:31], 0 offen offset:768
    """)
    k(f"v_lshlrev_b32 v{CPD+4}, 4, v1\ns_lshl_b32 s52, s18, 10\ns_add_u32 s52, s52, 49152")
    def dma():
        k(f"s_mov_b32 m0, s52\ns_nop 0\nbuffer_load_dwordx4 v{CPD+4}, s[56:59], s52 offen lds\ns_add_u32 s52, s52, 8192")
    n0 = k.nst
    k("s_cmp_lt_u32 s18, 5\ns_cbranch_scc1 attn_kernel_mm")
    for lw in range(3):
        if lw < 2:
            k(f"s_cmp_eq_u32 s18, {5+lw}\ns_cbranch_scc0 attn_kernel_ld{lw+1}")
        def mid():
            for i in range(16):
                o = (lw * 16 + i) * 1024
                k(f"s_mov_b32 m0, {o}\ns_mov_b32 s46, {o}\nbuffer_load_dwordx4 v{CPD+4}, s[56:59], s46 offen lds")
        k.nst = n0
        gemm_loader(k, lw, False, GB, 128 * 1280, mid, 16)
        k("s_branch attn_kernel_qrd")
        if lw < 2:
            k.label(f"ld{lw+1}")
    k.label("mm")
    k.nst = n0
    k.srd_off(36, 12, WS_Q, 16384)
    k("s_lshl_b32 s46, s17, 9\nv_lshlrev_b32 v9, 3, v3")
    for rf in range(4):
        k(f"buffer_load_dwordx2 {v2(ST+2*rf)}, v9, s[36:39], s46 offen offset:{rf*128}")
    gemm_mm(k, True, GB)
    k(f"""
    v_mul_u32_u24 v10, 160, v3
    v_lshl_add_u32 v10, v4, 3, v10
    s_lshl_b32 s46, s18, 5
    s_add_u32 s46, s46, {QB}
    v_add_u32 v10, s46, v10
    s_waitcnt vmcnt(0)
    s_nop 3
    """)
    for rf in range(4):
        a = ACC + 4 * rf
        k(f"v_mul_f32 v14, {f32hex(QSCALE)}, v{ST+2*rf+1}\nv_mul_f32 v15, {f32hex(QSCALE)}, v{ST+2*rf}")
        for r in range(4):
            k(f"v_mul_f32 v{a+r}, v{a+r}, v14\nv_fma_f32 v{a+r}, -v{CS+r}, v15, v{a+r}")
        k(f"v_cvt_pk_bf16_f32 v{a}, v{a}, v{a+1}\nv_cvt_pk_bf16_f32 v{a+1}, v{a+2}, v{a+3}")
        k(f"ds_write_b64 v10, {v2(a)} offset:{rf*2560}")
    k("s_waitcnt lgkmcnt(0)")
    k.label("qrd")
    k("s_barrier")
    k.stamp()
    k(f"""
    v_and_b32 v3, 31, v1
    v_lshrrev_b32 v4, 5, v1
    v_lshrrev_b32 v6, 2, v3
    v_and_b32 v7, 3, v3
    v_mul_u32_u24 v{T+8}, 160, v6
    v_mul_u32_u24 v7, 40, v7
    v_add_u32 v{T+8}, v{T+8}, v7
    s_mul_i32 s46, s18, 1280
    s_add_u32 s46, s46, {QB}
    v_add_u32 v{T+8}, s46, v{T+8}
    v_lshl_add_u32 v{T+9}, v4, 4, v{T+8}
    ds_read_b64 {v2(QF1)}, v{T+9}
    ds_read_b64 {v2(QF1+2)}, v{T+9} offset:8
    ds_read_b64 {v2(QF2)}, v{T+8} offset:32
    v_mul_u32_u24 v5, 1280, v6
    v_add_u32 v5, v5, v7
    s_lshl_b32 s19, s17, 6
    s_lshl_b32 s46, s18, 3
    s_add_u32 s19, s19, s46
    s_mul_i32 s19, s19, 1280
    s_mul_i32 s46, s16, 160
    s_add_u32 s19, s19, s46
    v_lshlrev_b32 v{AK}, 4, v1
    v_lshlrev_b32 v{AK2}, 3, v3
    v_mul_u32_u24 v{AV}, 320, v4
    v_lshl_add_u32 v{AV}, v3, 4, v{AV}
    s_mov_b32 s40, 0x000fffff
    s_mov_b32 s41, 0x000fffff
    v_max_f32 v{T}, v{KMR}, v{KMR+1}
    v_max_f32 v{T+15}, v{CP}, v{CP+1}
    """)
    k.srd_off(32, 12, WS_O, MATB)
    for b in range(2):
        k(f"v_mov_b32 v{KF[b]+6}, 0x3f803f80\nv_mov_b32 v{KF[b]+7}, 0x00003f80")
    k(f"v_cmp_eq_u32 vcc, 20, v3\nv_mov_b32 v{T+2}, 0x3f803f80\ns_nop 1\nv_cndmask_b32 v{T+2}, 0, v{T+2}, vcc")
    for b in range(2):
        for r in range(8):
            k(f"v_mov_b32 v{VF[b]+r}, v{T+2}")
    for r in range(16):
        k(f"v_mov_b32 v{O+r}, 0")
    for r in range(4, 8):
        k(f"v_mov_b32 v{P+r}, 0")
    k(f"""
    s_lshl_b32 s45, s2, 3
    s_add_u32 s45, s45, s18
    s_lshl_b32 s45, s45, 6
    v_add_u32 v{T+8}, s45, v1
    s_mov_b32 s46, 0x12F684C
    s_mov_b32 s47, 0x3333334
    s_mov_b32 s48, 0x1999999A
    v_mov_b32 v{T+9}, 0x7fffffff
    """)
    for rnd in range(2):
        k(f"""
        v_add_u32 v{T+10}, {131072*rnd}, v{T+8}
        v_mul_hi_u32 v{T+11}, v{T+10}, s46
        v_mul_u32_u24 v{T+12}, 216, v{T+11}
        v_sub_u32 v{T+12}, v{T+10}, v{T+12}
        v_lshrrev_b32 v{T+13}, 1, v{T+12}
        v_mul_u32_u24 v{T+13}, 40960, v{T+13}
        v_lshl_add_u32 v{T+13}, v{T+11}, 5, v{T+13}
        v_and_b32 v{T+12}, 1, v{T+12}
        v_lshl_add_u32 v{T+13}, v{T+12}, 4, v{T+13}
        v_cmp_gt_u32 vcc, 138240, v{T+10}
        s_nop 1
        v_cndmask_b32 v{CPD+rnd}, v{T+9}, v{T+13}, vcc
        v_mul_hi_u32 v{T+11}, v{T+10}, s47
        v_mul_u32_u24 v{T+12}, 80, v{T+11}
        v_sub_u32 v{T+12}, v{T+10}, v{T+12}
        v_lshrrev_b32 v{T+13}, 1, v{T+12}
        v_mul_u32_u24 v{T+13}, 55296, v{T+13}
        v_lshl_add_u32 v{T+13}, v{T+11}, 5, v{T+13}
        v_and_b32 v{T+12}, 1, v{T+12}
        v_lshl_add_u32 v{T+13}, v{T+12}, 4, v{T+13}
        v_cndmask_b32 v{CPD+5+rnd}, v{T+9}, v{T+13}, vcc
        """)
    k(f"""
    v_mul_hi_u32 v{T+11}, v{T+8}, s47
    v_mul_u32_u24 v{T+12}, 80, v{T+11}
    v_sub_u32 v{T+12}, v{T+8}, v{T+12}
    v_mul_hi_u32 v{T+13}, v{T+12}, s48
    v_mul_u32_u24 v{T+14}, 10, v{T+13}
    v_sub_u32 v{T+14}, v{T+12}, v{T+14}
    v_mul_u32_u24 v{T+13}, 102400, v{T+13}
    v_mul_u32_u24 v{T+11}, 160, v{T+11}
    v_add_u32 v{T+13}, v{T+13}, v{T+11}
    v_lshl_add_u32 v{T+13}, v{T+14}, 4, v{T+13}
    v_cmp_gt_u32 vcc, 51200, v{T+8}
    s_nop 1
    v_cndmask_b32 v{CPD+2}, v{T+9}, v{T+13}, vcc
    v_lshlrev_b32 v{CPD+3}, 4, v{T+8}
    s_waitcnt lgkmcnt(0)
    v_cmp_eq_u32 vcc, 0, v4
    s_nop 1
    v_cndmask_b32 v{QF2}, 0, v{QF2}, vcc
    v_cndmask_b32 v{QF2+1}, 0, v{QF2+1}, vcc
    v_mov_b32 v{QF2+2}, 0
    v_mov_b32 v{QF2+3}, 0
    v_mov_b32 v{T+3}, 0
    """)
    if os.environ.get("DBGQ"):
        k.srd_off(36, 12, 0x3000000, MATB)
        k(f"v_lshl_add_u32 v6, v4, 4, v5\nbuffer_store_dwordx4 {v4(QF1)}, v6, s[36:39], s19 offen\ns_mov_b32 exec_hi, 0\nbuffer_store_dwordx2 {v2(QF2)}, v5, s[36:39], s19 offen offset:32\ns_mov_b32 exec_hi, -1\ns_waitcnt vmcnt(0)")
    for r in range(4):
        k(f"v_dot2_f32_bf16 v{T+3}, v{QF1+r}, v{QF1+r}, v{T+3}")
    for r in range(2):
        k(f"v_dot2_f32_bf16 v{T+3}, v{QF2+r}, v{QF2+r}, v{T+3}")
    for off in ("0x041F", "0x081F", "0x101F", "0x201F", "0x401F"):
        k(f"ds_swizzle_b32 v{T+1}, v{T} offset:{off}\nds_swizzle_b32 v{T+16}, v{T+15} offset:{off}\ns_waitcnt lgkmcnt(0)\nv_max_f32 v{T}, v{T}, v{T+1}\nv_max_f32 v{T+15}, v{T+15}, v{T+16}")
    k(f"""
    v_mov_b32 v{T+1}, v{T+15}
    v_mov_b32 v{T+2}, v{T+15}
    s_nop 1
    v_permlane32_swap_b32 v{T+1}, v{T+2}
    s_nop 1
    v_max_f32 v{T+15}, v{T+1}, v{T+2}
    v_mov_b32 v{T+1}, v{T}
    v_mov_b32 v{T+2}, v{T}
    v_mov_b32 v{T+4}, v{T+3}
    v_mov_b32 v{T+5}, v{T+3}
    s_nop 1
    v_permlane32_swap_b32 v{T+1}, v{T+2}
    v_permlane32_swap_b32 v{T+4}, v{T+5}
    s_nop 1
    v_max_f32 v{T}, v{T+1}, v{T+2}
    v_add_f32 v{T}, v{T}, v{T+15}
    v_add_f32 v{T+3}, v{T+4}, v{T+5}
    v_mul_f32 v{T+3}, v{T+3}, v{T}
    v_sqrt_f32 v{T+3}, v{T+3}
    s_nop 0
    v_mul_f32 v{T+3}, {f32hex(1.01)}, v{T+3}
    v_mov_b32 v{T+6}, {f32hex(THRESH)}
    v_cmp_nle_f32 vcc, v{T+3}, v{T+6}
    s_barrier
    s_cbranch_vccnz attn_kernel_slow
    """)
    def set_m():
        k(f"""
        v_xor_b32 v{T+3}, 0x80000000, v{T+3}
        v_and_b32 v{T+4}, 0xffff0000, v{T+3}
        v_sub_f32 v{T+5}, v{T+3}, v{T+4}
        v_and_b32 v{T+6}, 0xffff0000, v{T+5}
        v_sub_f32 v{T+5}, v{T+5}, v{T+6}
        v_lshrrev_b32 v{T+4}, 16, v{T+4}
        v_or_b32 v{T+4}, v{T+4}, v{T+6}
        v_lshrrev_b32 v{T+5}, 16, v{T+5}
        v_cmp_eq_u32 vcc, 0, v4
        s_nop 1
        v_cndmask_b32 v{QF2+2}, 0, v{T+4}, vcc
        v_cndmask_b32 v{QF2+3}, 0, v{T+5}, vcc
        """)
    def kreads(b, blk):
        k(f"ds_read_b128 {v4(KF[b])}, v{AK} offset:{blk*2560}\nds_read_b64 {v2(KF[b]+4)}, v{AK2} offset:{blk*2560+1024}")
    def vreads(b, blk):
        k(f"s_mov_b64 exec, s[40:41]\nds_read_b128 {v4(VF[b])}, v{AV} offset:{blk*2560+1280}\nds_read_b128 {v4(VF[b]+4)}, v{AV} offset:{blk*2560+1920}\ns_mov_b64 exec, -1")
    def pipe_start():
        kreads(0, 0); kreads(1, 1); vreads(0, 0)
        k("s_waitcnt lgkmcnt(4)")
        k(f"v_mfma_f32_32x32x16_bf16 {v16(SA)}, {v4(KF[0])}, {v4(QF1)}, 0")
        k(f"v_mfma_f32_32x32x16_bf16 {v16(SA)}, {v4(KF[0]+4)}, {v4(QF2)}, {v16(SA)}")
        k("s_nop 7\ns_nop 3")
    def E(Sc, a, b):
        for r in range(a, b):
            k(f"v_exp_f32 v{Sc+r}, v{Sc+r}")
    def C(Sc, a, b):
        for p in range(a, b):
            k(f"v_cvt_pk_bf16_f32 v{P+p}, v{Sc+2*p}, v{Sc+2*p+1}")
    def iteration(j, ndma):
        par = j & 1
        Sc, Sn = (SA, SB) if par == 0 else (SB, SA)
        k("s_waitcnt lgkmcnt(0)")
        E(Sc, 0, 2)
        k(f"v_mfma_f32_32x32x16_bf16 {v16(O)}, {v4(VF[1-par]+4)}, {v4(P+4)}, {v16(O)}")
        kreads(par, j + 2)
        vreads(1 - par, j + 1)
        E(Sc, 2, 5)
        k(f"v_mfma_f32_32x32x16_bf16 {v16(Sn)}, {v4(KF[1-par])}, {v4(QF1)}, 0")
        E(Sc, 5, 8); C(Sc, 0, 4); E(Sc, 8, 9)
        k(f"v_mfma_f32_32x32x16_bf16 {v16(Sn)}, {v4(KF[1-par]+4)}, {v4(QF2)}, {v16(Sn)}")
        if ndma >= 1: dma()
        E(Sc, 9, 12)
        k(f"v_mfma_f32_32x32x16_bf16 {v16(O)}, {v4(VF[par])}, {v4(P)}, {v16(O)}")
        if ndma >= 2: dma()
        E(Sc, 12, 16); C(Sc, 4, 8)
    def group(with_dma):
        for j in range(8):
            iteration(j, (2 if j < 7 else 0) if with_dma else 0)
        k(f"v_add_u32 v{AK}, 20480, v{AK}\nv_add_u32 v{AK2}, 20480, v{AK2}\nv_add_u32 v{AV}, 20480, v{AV}")
    def copy_loads():
        k.srd(36, 8, 640 * 3456)
        k(f"buffer_load_dwordx4 {v4(CP)}, v{CPD+3}, s[36:39], 0 offen\ns_mov_b32 s45, {131072*16}\nbuffer_load_dwordx4 {v4(CP+4)}, v{CPD+3}, s[36:39], s45 offen")
        k.srd(36, 10, 640 * 3456)
        k(f"buffer_load_dwordx4 {v4(CP+8)}, v{CPD+3}, s[36:39], 0 offen\nbuffer_load_dwordx4 {v4(CP+12)}, v{CPD+3}, s[36:39], s45 offen")
        k.srd(36, 14, 819200)
        k(f"buffer_load_dwordx4 {v4(CP+16)}, v{CPD+3}, s[36:39], 0 offen")
        k.srd(36, 54, 1728 * 1280)
        k(f"buffer_load_dwordx4 {v4(CP+20)}, v{CPD+3}, s[36:39], 0 offen\nbuffer_load_dwordx4 {v4(CP+24)}, v{CPD+3}, s[36:39], s45 offen")
    set_m()
    k.stamp()
    pipe_start()
    group(True)
    k.stamp()
    k("s_waitcnt vmcnt(0)\ns_barrier")
    k.stamp()
    copy_loads()
    k("s_mov_b32 s42, 7\ns_branch attn_kernel_loop")
    k.label("slow")
    for i in range(14):
        dma()
    k("s_waitcnt vmcnt(0)\ns_barrier")
    copy_loads()
    k(f"v_mov_b32 v{T+3}, 0xff800000\ns_mov_b32 s42, 64")
    k.label("maxloop")
    kreads(0, 0)
    k(f"v_add_u32 v{AK}, 2560, v{AK}\nv_add_u32 v{AK2}, 2560, v{AK2}\ns_waitcnt lgkmcnt(0)")
    k(f"v_mfma_f32_32x32x16_bf16 {v16(SA)}, {v4(KF[0])}, {v4(QF1)}, 0")
    k(f"v_mfma_f32_32x32x16_bf16 {v16(SA)}, {v4(KF[0]+4)}, {v4(QF2)}, {v16(SA)}")
    k("s_nop 15\ns_nop 3")
    for r in range(0, 16, 2):
        k(f"v_max3_f32 v{T+3}, v{SA+r}, v{SA+r+1}, v{T+3}")
    k("s_sub_u32 s42, s42, 1\ns_cmp_lg_u32 s42, 0\ns_cbranch_scc1 attn_kernel_maxloop")
    k(f"""
    v_mov_b32 v{T+4}, v{T+3}
    v_mov_b32 v{T+5}, v{T+3}
    s_nop 1
    v_permlane32_swap_b32 v{T+4}, v{T+5}
    s_nop 1
    v_max_f32 v{T+3}, v{T+4}, v{T+5}
    v_lshlrev_b32 v{AK}, 4, v1
    v_lshlrev_b32 v{AK2}, 3, v3
    """)
    set_m()
    pipe_start()
    k("s_mov_b32 s42, 8")
    k.label("loop")
    if os.environ.get("NOPRIO") is None:
        k(f"s_lshr_b32 s43, s18, 2\ns_add_u32 s43, s43, s42\ns_and_b32 s43, s43, 1\ns_cmp_eq_u32 s43, 0\ns_cbranch_scc1 attn_kernel_p0\ns_setprio 1\ns_branch attn_kernel_p1")
        k.label("p0")
        k("s_setprio 0")
        k.label("p1")
    group(False)
    k("s_sub_u32 s42, s42, 1\ns_cmp_lg_u32 s42, 0\ns_cbranch_scc1 attn_kernel_loop")
    k.stamp()
    k("s_nop 1")
    k(f"v_mfma_f32_32x32x16_bf16 {v16(O)}, {v4(VF[1]+4)}, {v4(P+4)}, {v16(O)}")
    k("s_waitcnt vmcnt(0)")
    k.srd_off(36, 12, WS_FW, NFF * 40960)
    k(f"""
    s_mov_b32 s45, 20480
    buffer_store_dwordx4 {v4(CP)}, v{CPD}, s[36:39], 0 offen
    buffer_store_dwordx4 {v4(CP+4)}, v{CPD+1}, s[36:39], 0 offen
    buffer_store_dwordx4 {v4(CP+8)}, v{CPD}, s[36:39], s45 offen
    buffer_store_dwordx4 {v4(CP+12)}, v{CPD+1}, s[36:39], s45 offen
    """)
    k.srd_off(36, 12, WS_WO, 819200)
    k(f"buffer_store_dwordx4 {v4(CP+16)}, v{CPD+2}, s[36:39], 0 offen")
    k.srd_off(36, 12, WS_WD, 40 * 55296)
    k(f"buffer_store_dwordx4 {v4(CP+20)}, v{CPD+5}, s[36:39], 0 offen\nbuffer_store_dwordx4 {v4(CP+24)}, v{CPD+6}, s[36:39], 0 offen")
    k("s_nop 7")
    k(f"""
    v_mov_b32 v{T}, v{O+8}
    v_mov_b32 v{T+1}, v{O+8}
    s_nop 1
    v_permlane32_swap_b32 v{T}, v{T+1}
    s_nop 1
    v_rcp_f32 v{T+1}, v{T+1}
    s_nop 0
    """)
    for r in range(12):
        k(f"v_mul_f32 v{O+r}, v{O+r}, v{T+1}")
    for p in range(6):
        k(f"v_cvt_pk_bf16_f32 v{P+p}, v{O+2*p}, v{O+2*p+1}")
    k(f"""
    v_lshl_add_u32 v6, v4, 3, v5
    buffer_store_dwordx2 {v2(P)}, v6, s[32:35], s19 offen
    buffer_store_dwordx2 {v2(P+2)}, v6, s[32:35], s19 offen offset:16
    s_mov_b32 exec_hi, 0
    buffer_store_dwordx2 {v2(P+4)}, v6, s[32:35], s19 offen offset:32
    """)
    k.finish(1)
    return k, "grid=(256,1,1) block=(512,1,1) lds=163840"

def gen_k3():
    k = K("oproj_kernel", 128)
    XR, WR = ST, ST + 8
    EXS = 3 * SLOT
    k("""
    s_cmp_ge_u32 s2, 256
    s_cbranch_scc1 oproj_kernel_exit
    s_load_dwordx2 s[4:5], s[0:1], 0
    s_load_dwordx2 s[12:13], s[0:1], 96
    s_load_dwordx2 s[14:15], s[0:1], 48
    """)
    gemm_ids(k)
    k("s_waitcnt lgkmcnt(0)")
    k.diag_start(2)
    k.stamp()
    k.srd_off(20, 12, WS_O, MATB)
    k(f"""
    s_mul_i32 s44, s16, 102400
    s_add_u32 s44, s44, {WS_WO}
    s_add_u32 s24, s12, s44
    s_addc_u32 s25, s13, 0
    s_mov_b32 s26, 102400
    s_mov_b32 s27, 0x00020000
    """)
    k.srd(28, 4, MATB)
    k.srd(32, 14, 1280)
    k.srd_off(36, 12, WS_H, MATB)
    k.srd_off(40, 12, WS_ST, 32768)
    n0 = k.nst
    k("""
    s_cmp_lt_u32 s18, 5
    s_cbranch_scc0 oproj_kernel_idle
    s_lshl_b32 s45, s17, 6
    v_add_u32 v5, s45, v3
    v_mul_u32_u24 v10, 1280, v5
    v_lshl_add_u32 v10, v4, 3, v10
    v_lshlrev_b32 v11, 3, v4
    s_mul_i32 s59, s16, 160
    s_lshl_b32 s46, s18, 5
    s_add_u32 s59, s59, s46
    s_mov_b32 s44, s59
    """)
    for rf in range(4):
        k(f"buffer_load_dwordx2 {v2(XR+2*rf)}, v10, s[28:31], s44 offen\ns_add_u32 s44, s44, 20480")
    k(f"buffer_load_dwordx2 {v2(WR)}, v11, s[32:35], s59 offen")
    gemm_mm(k, False, 0)
    k("s_waitcnt vmcnt(0)")
    k("s_nop 7\nv_mov_b32 v15, 0x3f803f80\ns_mov_b32 s44, s59")
    for rf in range(4):
        a = ACC + 4 * rf
        S = TMP + 4 * rf
        k(f"v_cvt_pk_bf16_f32 v{a}, v{a}, v{a+1}\nv_cvt_pk_bf16_f32 v{a+1}, v{a+2}, v{a+3}")
        k(f"v_mov_b32 v{S}, 0\nv_mov_b32 v{S+1}, 0\nv_mov_b32 v{S+2}, 0\nv_mov_b32 v{S+3}, 0")
        for h in range(2):
            k(f"""
            v_lshlrev_b32 v12, 16, v{a+h}
            v_and_b32 v13, 0xffff0000, v{a+h}
            v_lshlrev_b32 v6, 16, v{XR+2*rf+h}
            v_and_b32 v7, 0xffff0000, v{XR+2*rf+h}
            v_add_f32 v12, v12, v6
            v_add_f32 v13, v13, v7
            v_cvt_pk_bf16_f32 v{a+h}, v12, v13
            """)
            k(f"v_dot2_f32_bf16 v{S}, v{a+h}, v15, v{S}\nv_dot2_f32_bf16 v{S+1}, v{a+h}, v{a+h}, v{S+1}\nv_dot2_f32_bf16 v{S+2}, v{a+h}, v{WR+h}, v{S+2}")
        k(f"buffer_store_dwordx2 {v2(a)}, v10, s[36:39], s44 offen\ns_add_u32 s44, s44, 20480")
    k("s_nop 3")
    red_g(k, [TMP + 4 * rf + i for rf in range(4) for i in range(3)], 16)
    k(f"""
    v_lshlrev_b32 v14, 4, v3
    s_lshl_b32 s46, s18, 10
    s_add_u32 s46, s46, {EXS}
    v_add_u32 v14, s46, v14
    s_mov_b64 exec, 0xffff
    """)
    for rf in range(4):
        k(f"ds_write_b128 v14, {v4(TMP+4*rf)} offset:{rf*256}")
    k("s_mov_b64 exec, -1\ns_waitcnt lgkmcnt(0)\ns_barrier\ns_branch oproj_kernel_end")
    k.label("idle")
    for lw in range(3):
        if lw < 2:
            k(f"s_cmp_eq_u32 s18, {5+lw}\ns_cbranch_scc0 oproj_kernel_ld{lw+1}")
        k.nst = n0
        gemm_loader(k, lw, True, 0, 20480)
        if lw < 2:
            k("s_barrier\ns_branch oproj_kernel_end")
            k.label(f"ld{lw+1}")
    k(f"""
    s_barrier
    s_cmp_eq_u32 s18, 7
    s_cbranch_scc0 oproj_kernel_end
    v_lshlrev_b32 v14, 2, v1
    v_add_u32 v9, {EXS}, v14
    """)
    for w in range(5):
        for q in range(4):
            k(f"ds_read_b32 v{16+4*w+q}, v9 offset:{w*1024+q*256}")
    k("s_lshl_b32 s44, s17, 10\ns_waitcnt lgkmcnt(0)")
    for q in range(4):
        k(f"v_add_f32 v{16+q}, v{16+q}, v{20+q}\nv_add_f32 v{24+q}, v{24+q}, v{28+q}\nv_add_f32 v{16+q}, v{16+q}, v{24+q}\nv_add_f32 v{16+q}, v{16+q}, v{32+q}")
    for q in range(4):
        k(f"buffer_atomic_add_f32 v{16+q}, v14, s[40:43], s44 offen offset:{q*256}")
    k.finish(2)
    return k, "grid=(256,1,1) block=(512,1,1) lds=%d" % (3 * SLOT + 5120)

def row_stats(k, s0, s1, s2, mean, rstd, r=None, wsum=None):
    k(f"""
    v_mul_f32 v{mean}, {f32hex(1/640)}, v{s0}
    v_mul_f32 v{rstd}, {f32hex(1/640)}, v{s1}
    v_fma_f32 v{rstd}, -v{mean}, v{mean}, v{rstd}
    v_max_f32 v{rstd}, 0, v{rstd}
    v_add_f32 v{rstd}, {f32hex(1e-5)}, v{rstd}
    v_rsq_f32 v{rstd}, v{rstd}
    """)
    if r is not None:
        k(f"v_fma_f32 v{r}, -v{mean}, v{wsum}, v{s2}\nv_mul_f32 v{r}, v{r}, v{rstd}")

NFB = 40
def gen_k4():
    k = K("ffn_kernel", 128)
    NTOT = NFF + NFB + 128
    SS = 88
    k(f"""
    s_cmp_ge_u32 s2, {NTOT}
    s_cbranch_scc1 ffn_kernel_exit
    s_load_dwordx4 s[8:11], s[0:1], 80
    s_load_dwordx2 s[12:13], s[0:1], 96
    s_waitcnt lgkmcnt(0)
    """)
    k.diag_start(3)
    k.stamp()
    k.srd_off(20, 12, WS_H, MATB)
    k.srd_off(24, 12, WS_ST, 32768)
    k.srd_off(40, 12, WS_SEL, 64)
    k.srd(28, 8, MATB)
    k.srd(48, 10, 256)
    k.srd_off(44, 12, WS_A, 1728 * 4)
    k("v_lshlrev_b32 v1, 4, v0")
    for i in range(8):
        k(f"v_add_u32 v2, {4096*i}, v1\nbuffer_load_dwordx3 v[{SS+4*i}:{SS+2+4*i}], v2, s[24:27], 0 offen")
    k("v_mov_b32 v2, 0\nbuffer_load_dword v125, v2, s[40:43], 0 offen offset:32")
    def argmax(nyounger):
        k(f"s_waitcnt vmcnt({nyounger})")
        k("v_mov_b32 v7, 0")
        for i in range(8):
            b = SS + 4 * i
            row_stats(k, b, b + 1, b + 2, 8, 9, 10, 125)
            k(f"""
            v_ashrrev_i32 v11, 31, v10
            v_or_b32 v11, 0x80000000, v11
            v_xor_b32 v11, v11, v10
            v_and_b32 v11, 0xfffff800, v11
            v_sub_u32 v12, {2047 - 256*i}, v0
            v_or_b32 v11, v11, v12
            v_max_u32 v7, v7, v11
            """)
        for ror in (8, 4, 2, 1):
            k(f"s_nop 1\nv_max_u32_dpp v7, v7, v7 row_ror:{ror} row_mask:0xf bank_mask:0xf")
        k("""
        v_lshrrev_b32 v8, 4, v0
        v_lshlrev_b32 v8, 2, v8
        ds_write_b32 v8, v7
        s_waitcnt lgkmcnt(0)
        s_barrier
        v_mov_b32 v8, 0
        ds_read_b128 v[8:11], v8
        v_mov_b32 v12, 0
        ds_read_b128 v[12:15], v12 offset:16
        v_mov_b32 v2, 0
        ds_read_b128 v[2:5], v2 offset:32
        v_mov_b32 v120, 0
        ds_read_b128 v[120:123], v120 offset:48
        s_waitcnt lgkmcnt(0)
        v_max3_u32 v7, v8, v9, v10
        v_max3_u32 v7, v11, v12, v7
        v_max3_u32 v7, v13, v14, v7
        v_max3_u32 v7, v15, v2, v7
        v_max3_u32 v7, v3, v4, v7
        v_max3_u32 v7, v5, v120, v7
        v_max3_u32 v7, v121, v122, v7
        v_max_u32 v7, v123, v7
        v_and_b32 v7, 0x7ff, v7
        v_sub_u32 v7, 2047, v7
        s_nop 0
        v_readfirstlane_b32 s18, v7
        s_nop 3
        s_lshl_b32 s19, s18, 4
        s_mul_i32 s50, s18, 1280
        """.replace("s_mul_i32 s50, s18, 1280", "s_mul_i32 s53, s18, 1280"))
    def gemv_reduce(AC, nacc):
        for ror in (8, 4, 2):
            k("s_nop 1")
            for r in range(nacc):
                k(f"v_add_f32_dpp v{AC+r}, v{AC+r}, v{AC+r} row_ror:{ror} row_mask:0xf bank_mask:0xf")
        k(f"""
        v_lshrrev_b32 v12, 4, v0
        v_lshlrev_b32 v12, 7, v12
        v_and_b32 v13, 1, v0
        v_lshl_add_u32 v12, v13, 6, v12
        s_mov_b32 s52, 0x00030003
        s_mov_b32 exec_lo, s52
        s_mov_b32 exec_hi, s52
        """)
        for q in range(nacc // 4):
            k(f"ds_write_b128 v12, {v4(AC+4*q)} offset:{64+16*q}")
        k("s_mov_b64 exec, -1\ns_waitcnt lgkmcnt(0)\ns_barrier")
        k("""
        v_and_b32 v13, 7, v0
        v_bfe_u32 v12, v0, 3, 1
        v_lshlrev_b32 v12, 6, v12
        v_lshl_add_u32 v12, v13, 2, v12
        """)
    k(f"s_cmp_lt_u32 s2, {NFF}\ns_cbranch_scc1 ffn_kernel_ffa\ns_cmp_lt_u32 s2, {NFF+NFB}\ns_cbranch_scc1 ffn_kernel_ffb")
    k(f"""
    s_sub_u32 s16, s2, {NFF+NFB}
    s_add_u32 s17, s16, {(NFF+NFB) % 8}
    s_and_b32 s17, s17, 7
    s_lshl_b32 s17, s17, 4
    s_lshr_b32 s16, s16, 3
    s_add_u32 s16, s16, s17
    s_mul_i32 s17, s16, 20480
    s_lshl_b32 s51, s16, 8
    s_lshl_b32 s16, s16, 4
    """)
    for i in range(5):
        k(f"v_add_u32 v{60+i}, {4096*i}, v1\nbuffer_load_dwordx4 {v4(16+4*i)}, v{60+i}, s[20:23], s17 offen")
    for i in range(5):
        k(f"""
        v_add_u32 v{66+i}, {256*i}, v0
        v_mul_u32_u24 v{66+i}, 3277, v{66+i}
        v_lshrrev_b32 v{66+i}, 18, v{66+i}
        v_lshlrev_b32 v72, 4, v{66+i}
        buffer_load_dwordx2 {v2(40+2*i)}, v72, s[24:27], s51 offen
        """)
    argmax(10)
    k("s_sub_u32 s18, s18, s16\nv_mov_b32 v73, 0x40000000\ns_waitcnt vmcnt(0)")
    for i in range(5):
        row_stats(k, 40 + 2 * i, 41 + 2 * i, None, 52, 53)
        k(f"v_cmp_eq_u32 vcc, s18, v{66+i}\nv_mul_f32 v52, v52, v53\ns_nop 0")
        k(f"v_cndmask_b32 v{60+i}, v{60+i}, v73, vcc")
        for d in range(4):
            r = 16 + 4 * i + d
            k(f"""
            v_lshlrev_b32 v54, 16, v{r}
            v_and_b32 v55, 0xffff0000, v{r}
            v_fma_f32 v56, v54, v53, -v52
            v_fma_f32 v57, v55, v53, -v52
            v_cvt_pk_bf16_f32 v56, v56, v57
            v_lshlrev_b32 v57, 16, v56
            v_and_b32 v56, 0xffff0000, v56
            v_add_f32 v54, v54, v57
            v_add_f32 v55, v55, v56
            v_cvt_pk_bf16_f32 v{r}, v54, v55
            """)
        k(f"buffer_store_dwordx4 {v4(16+4*i)}, v{60+i}, s[28:31], s17 offen")
    k("s_branch ffn_kernel_end")
    k.label("ffa")
    G, U, HX, AC = 16, 36, 56, 64
    k.srd_off(32, 12, WS_FW, NFF * 40960)
    k("s_mul_i32 s16, s2, 40960")
    for i in range(5):
        k(f"s_add_u32 s17, s16, {i*4096}\nbuffer_load_dwordx4 {v4(G+4*i)}, v1, s[32:35], s17 offen\ns_add_u32 s17, s16, {20480+i*4096}\nbuffer_load_dwordx4 {v4(U+4*i)}, v1, s[32:35], s17 offen")
    k.stamp()
    argmax(10)
    k.stamp()
    k(f"v_mov_b32 v2, 0\nbuffer_load_dwordx3 v[{SS}:{SS+2}], v2, s[24:27], s19 offen\nv_and_b32 v8, 0xfe, v0")
    for i in range(5):
        k(f"buffer_load_ushort v{HX+i}, v8, s[20:23], s53 offen offset:{256*i}")
    k("s_waitcnt vmcnt(5)")
    row_stats(k, SS, SS + 1, SS + 2, 8, 9)
    k("s_nop 0\nv_mul_f32 v11, v8, v9\ns_waitcnt vmcnt(0)")
    for i in range(5):
        k(f"v_lshlrev_b32 v{HX+i}, 16, v{HX+i}\nv_fma_f32 v{HX+i}, v{HX+i}, v9, -v11\nv_cvt_pk_bf16_f32 v{HX+i}, v{HX+i}, v{HX+i}\nv_lshlrev_b32 v{HX+i}, 16, v{HX+i}")
    k.stamp()
    for r in range(16):
        k(f"v_mov_b32 v{AC+r}, 0")
    for i in range(5):
        for (src, acc) in ((G, AC), (U, AC + 8)):
            for d in range(4):
                s_ = src + 4 * i + d
                k(f"v_lshlrev_b32 v12, 16, v{s_}\nv_and_b32 v13, 0xffff0000, v{s_}\nv_fmac_f32 v{acc+2*d}, v12, v{HX+i}\nv_fmac_f32 v{acc+2*d+1}, v13, v{HX+i}")
    k.stamp()
    gemv_reduce(AC, 16)
    k("s_cmp_lt_u32 s2, 0x7fffffff\nv_cmp_gt_u32 vcc, 64, v0\ns_cbranch_vccz ffn_kernel_end")
    for rr in range(16):
        k(f"ds_read_b32 v{16+rr}, v12 offset:{64+128*rr}\nds_read_b32 v{32+rr}, v12 offset:{96+128*rr}")
    k("s_waitcnt lgkmcnt(0)")
    for st in (8, 4, 2, 1):
        for rr in range(st):
            k(f"v_add_f32 v{16+rr}, v{16+rr}, v{16+rr+st}\nv_add_f32 v{32+rr}, v{32+rr}, v{32+rr+st}")
    k(f"""
    v_cvt_pk_bf16_f32 v16, v16, v32
    v_and_b32 v20, 0xffff0000, v16
    v_lshlrev_b32 v16, 16, v16
    v_mul_f32 v17, {f32hex(-1.4426950408889634)}, v16
    v_exp_f32 v17, v17
    s_nop 0
    v_add_f32 v17, 1.0, v17
    v_rcp_f32 v17, v17
    s_nop 0
    v_mul_f32 v16, v16, v17
    v_cvt_pk_bf16_f32 v16, v16, v16
    v_lshlrev_b32 v16, 16, v16
    v_mul_f32 v16, v16, v20
    v_cvt_pk_bf16_f32 v16, v16, v16
    v_lshlrev_b32 v16, 16, v16
    v_lshlrev_b32 v12, 2, v0
    s_lshl_b32 s16, s2, 6
    s_mov_b64 exec, 0xffff
    buffer_store_dword v16, v12, s[44:47], s16 offen sc1
    s_mov_b64 exec, -1
    s_branch ffn_kernel_end
    """)
    k.label("ffb")
    D, AV_, AC = 16, 72, 104
    k.srd_off(32, 12, WS_WD, 40 * 55296)
    k(f"s_sub_u32 s16, s2, {NFF}\ns_mul_i32 s17, s16, 55296\nv_cmp_gt_u32 vcc, 128, v0\nv_mov_b32 v2, 0x40000000\ns_nop 1\nv_cndmask_b32 v6, v2, v1, vcc")
    for i in range(14):
        k(f"buffer_load_dwordx4 {v4(D+4*i)}, v{6 if i == 13 else 1}, s[32:35], s17 offen\ns_add_u32 s17, s17, 4096")
    argmax(14)
    k(f"v_mov_b32 v2, 0\nbuffer_load_dwordx3 v[{SS}:{SS+2}], v2, s[24:27], s19 offen")
    k("v_and_b32 v3, 15, v0\nv_lshlrev_b32 v3, 1, v3\ns_lshl_b32 s17, s16, 5\ns_add_u32 s53, s53, s17\nbuffer_load_ushort v124, v3, s[20:23], s53 offen")
    k("s_waitcnt vmcnt(1)")
    row_stats(k, SS, SS + 1, SS + 2, 8, 9, 10, 125)
    k(f"""
    s_nop 0
    v_cvt_pk_bf16_f32 v10, v10, v10
    v_lshlrev_b32 v10, 16, v10
    v_mul_f32 v11, {f32hex(-1.4426950408889634)}, v10
    v_exp_f32 v11, v11
    s_nop 0
    v_add_f32 v11, 1.0, v11
    v_rcp_f32 v11, v11
    s_nop 0
    v_cvt_pk_bf16_f32 v11, v11, v11
    v_lshlrev_b32 v11, 16, v11
    s_mov_b32 s17, 0
    """)
    k.stamp()
    k("v_lshrrev_b32 v4, 1, v0\nv_lshlrev_b32 v4, 2, v4")
    k.label("poll")
    for i in range(14):
        k(f"s_mov_b32 s16, {512*i}\nbuffer_load_dword v{AV_+i}, v4, s[44:47], s16 offen sc1")
    k("s_waitcnt vmcnt(0)")
    k(f"v_and_b32 v5, v{AV_}, v{AV_+1}")
    k(f"v_max_u32 v5, v{AV_}, v{AV_+1}")
    for i in range(2, 14, 2):
        k(f"v_max3_u32 v5, v{AV_+i}, v{AV_+i+1}, v5")
    k(f"""
    v_cmp_eq_u32 vcc, -1, v5
    s_add_u32 s17, s17, 1
    s_cbranch_vccz ffn_kernel_go
    s_cmp_lt_u32 s17, 0x100000
    s_cbranch_scc0 ffn_kernel_go
    s_sleep 2
    s_branch ffn_kernel_poll
    """)
    k.label("go")
    k.stamp()
    for r in range(8):
        k(f"v_mov_b32 v{AC+r}, 0")
    for i in range(14):
        for d in range(4):
            s_ = D + 4 * i + d
            k(f"v_lshlrev_b32 v12, 16, v{s_}\nv_and_b32 v13, 0xffff0000, v{s_}\nv_fmac_f32 v{AC+2*d}, v12, v{AV_+i}\nv_fmac_f32 v{AC+2*d+1}, v13, v{AV_+i}")
    gemv_reduce(AC, 8)
    k("v_cmp_gt_u32 vcc, 64, v0\ns_cbranch_vccz ffn_kernel_end")
    for rr in range(16):
        k(f"ds_read_b32 v{16+rr}, v12 offset:{64+128*rr}")
    k("s_waitcnt lgkmcnt(0)")
    for st in (8, 4, 2, 1):
        for rr in range(st):
            k(f"v_add_f32 v{16+rr}, v{16+rr}, v{16+rr+st}")
    k("""
    v_cvt_pk_bf16_f32 v16, v16, v16
    v_lshlrev_b32 v16, 16, v16
    v_mul_f32 v16, v16, v11
    v_cvt_pk_bf16_f32 v16, v16, v16
    v_lshlrev_b32 v16, 16, v16
    v_lshlrev_b32 v124, 16, v124
    v_sub_f32 v10, v124, v8
    v_mul_f32 v10, v10, v9
    v_cvt_pk_bf16_f32 v10, v10, v10
    v_lshlrev_b32 v10, 16, v10
    v_add_f32 v10, v10, v16
    v_cvt_pk_bf16_f32 v10, v10, v10
    v_lshlrev_b32 v10, 16, v10
    v_add_f32 v10, v10, v124
    v_cvt_pk_bf16_f32 v10, v10, v10
    s_mov_b64 exec, 0xffff
    buffer_store_short v10, v3, s[28:31], s53 offen
    s_mov_b64 exec, -1
    """)
    k.finish(3)
    return k, f"grid=({NTOT},1,1) block=(256,1,1) lds=4096"

def main():
    ks = [gen_k1(), gen_k2(), gen_k3(), gen_k4()]
    out = "; generated by dev/gen7.py (hand-written generator)\n"
    for k, l in ks:
        out += f"; @launch kernel={k.name} {l}\n"
    out += '.amdgcn_target "amdgcn-amd-amdhsa--gfx950"\n.text\n'
    for k, l in ks:
        out += k.text()
    out += '.section .rodata,"a"\n'
    for k, l in ks:
        out += ".p2align 6\n" + k.desc()
    path = sys.argv[1] if len(sys.argv) > 1 else f"cdna_kernels/{NAME}.s"
    open(path, "w").write(out)
    print("wrote", path, len(out))

main()
```

```python
import sys, struct, os
STAMP = os.environ.get("STAMP", "0") == "1"
DIAG = os.environ.get("DIAG", "0") == "1"
NAME = "sequential_preLN__grouped_kv_mqa__moe_arch_mod__prompt"
WS_Q, WS_KV, WS_O, WS_H, WS_ST, WS_KM, WS_YP, WS_SEL = 0, 0x400000, 0x800000, 0xC00000, 0x1000000, 0x1100000, 0x1200000, 0x1300000
WS_FW, WS_WO, WS_WD, WS_A = 0x1400000, 0x1900000, 0x1A00000, 0x1D00000
MATB = 2048 * 1280
QSCALE = (20 ** -0.5) * 1.4426950408889634
NFF = 108

def f32hex(x):
    return "0x%08x" % struct.unpack("<I", struct.pack("<f", x))[0]

class K:
    def __init__(self, name, vgpr, sgpr=96):
        self.name, self.vgpr, self.sgpr = name, vgpr, sgpr
        self.lines = []
        self.nst = 0
    def __call__(self, s):
        for l in s.strip().split("\n"):
            if l.strip():
                self.lines.append("    " + l.strip())
    def label(self, s):
        self.lines.append(f"{self.name}_{s}:")
    def srd(self, d, b, size):
        self(f"s_mov_b32 s{d}, s{b}\ns_mov_b32 s{d+1}, s{b+1}\ns_mov_b32 s{d+2}, {size}\ns_mov_b32 s{d+3}, 0x00020000")
    def srd_off(self, d, b, off, size):
        self(f"s_add_u32 s{d}, s{b}, {off}\ns_addc_u32 s{d+1}, s{b+1}, 0\ns_mov_b32 s{d+2}, {size}\ns_mov_b32 s{d+3}, 0x00020000")
    def stamp(self, real=False):
        if not STAMP: return
        i = self.nst; self.nst += 1
        self(f"{'s_memrealtime' if real else 's_memtime'} s[{60+2*i}:{61+2*i}]")
    def diag_start(self, kid):
        if not DIAG: return
        self(f"s_load_dwordx2 s[84:85], s[0:1], 88\ns_memrealtime s[86:87]\ns_waitcnt lgkmcnt(0)\ns_add_u32 s84, s84, {512*(3-kid)}\ns_addc_u32 s85, s85, 0")
    def finish(self, kid, wsreg=12):
        self.label("end")
        self.stamp()
        if DIAG:
            self(f"""
            s_memrealtime s[88:89]
            s_waitcnt lgkmcnt(0) vmcnt(0)
            s_and_b32 s90, s2, 7
            s_cmp_eq_u32 s90, 3
            s_cbranch_scc0 {self.name}_exit
            s_mov_b64 exec, 1
            s_mov_b32 s92, s84
            s_mov_b32 s93, s85
            s_mov_b32 s94, 256
            s_mov_b32 s95, 0x00020000
            v_mov_b32 v1, 0
            v_mov_b32 v2, s88
            buffer_atomic_umax v2, v1, s[92:95], 0 offen offset:{8*kid+4} sc1
            v_not_b32 v3, s86
            buffer_atomic_umax v3, v1, s[92:95], 0 offen offset:{8*kid} sc1
            """)
        if STAMP:
            self(f"s_waitcnt lgkmcnt(0)\ns_mov_b64 exec, 1")
            self.srd_off(92, wsreg, 0x2000000 + kid * 0x100000, 0x100000)
            self("v_lshrrev_b32 v1, 6, v0\ns_lshl_b32 s90, s2, 4\nv_add_u32 v1, s90, v1\nv_lshlrev_b32 v1, 6, v1")
            for i in range(self.nst):
                self(f"v_mov_b32 v2, s{60+2*i}\nbuffer_store_dword v2, v1, s[92:95], 0 offen offset:{4*i}")
        self.label("exit")
        self("s_endpgm")
    def text(self):
        return (f".globl {self.name}\n.p2align 8\n.type {self.name},@function\n{self.name}:\n" + "\n".join(self.lines) + "\n")
    def desc(self):
        acc = (self.vgpr + 3) // 4 * 4
        return (f".amdhsa_kernel {self.name}\n  .amdhsa_next_free_vgpr {self.vgpr}\n  .amdhsa_next_free_sgpr {self.sgpr}\n"
                f"  .amdhsa_accum_offset {acc}\n  .amdhsa_group_segment_fixed_size 0\n  .amdhsa_kernarg_size 104\n"
                f"  .amdhsa_user_sgpr_count 2\n  .amdhsa_user_sgpr_kernarg_segment_ptr 1\n  .amdhsa_system_sgpr_workgroup_id_x 1\n"
                f".end_amdhsa_kernel\n")

def v4(b): return f"v[{b}:{b+3}]"
def v2(b): return f"v[{b}:{b+1}]"
def v16(b): return f"v[{b}:{b+15}]"

def red_g(k, regs, tmp, op="add"):
    ins = "v_add_f32" if op == "add" else "v_max_f32"
    for i, r in enumerate(regs):
        k(f"ds_swizzle_b32 v{tmp+i}, v{r} offset:0x401F")
    k("s_waitcnt lgkmcnt(0)")
    for i, r in enumerate(regs):
        k(f"{ins} v{r}, v{r}, v{tmp+i}\nv_mov_b32 v{tmp+i}, v{r}")
    k("s_nop 1")
    for i, r in enumerate(regs):
        k(f"v_permlane32_swap_b32 v{tmp+i}, v{r}")
    k("s_nop 1")
    for i, r in enumerate(regs):
        k(f"{ins} v{r}, v{r}, v{tmp+i}")

def ln_fin(k, m, r):
    k(f"""
    v_mul_f32 v{m}, {f32hex(1/640)}, v{m}
    v_mul_f32 v{r}, {f32hex(1/640)}, v{r}
    v_fma_f32 v{r}, -v{m}, v{m}, v{r}
    v_max_f32 v{r}, 0, v{r}
    v_add_f32 v{r}, {f32hex(1e-5)}, v{r}
    v_rsq_f32 v{r}, v{r}
    s_nop 0
    v_mul_f32 v{m}, v{m}, v{r}
    """)

def gen_k1():
    k = K("kv_kernel", 96)
    WK_OFF, WV_OFF = 20480, 20480 + 28672
    XF, WF, ACC, CS, ONES, ST, TMP = 16, 24, 32, 36, 40, 44, 52
    k("""
    s_cmp_ge_u32 s2, 128
    s_cbranch_scc1 kv_kernel_exit
    s_load_dwordx2 s[4:5], s[0:1], 0
    s_load_dwordx4 s[8:11], s[0:1], 16
    s_load_dwordx2 s[12:13], s[0:1], 96
    s_load_dwordx2 s[14:15], s[0:1], 48
    v_and_b32 v1, 63, v0
    v_lshrrev_b32 v2, 6, v0
    s_and_b32 s17, s2, 7
    s_lshl_b32 s17, s17, 4
    s_lshr_b32 s44, s2, 3
    s_add_u32 s17, s17, s44
    v_readfirstlane_b32 s18, v2
    v_and_b32 v3, 15, v1
    v_lshrrev_b32 v4, 4, v1
    s_waitcnt lgkmcnt(0)
    """)
    k.diag_start(0)
    k.stamp()
    k.srd(20, 4, MATB)
    k.srd(24, 8, 25600)
    k.srd(28, 10, 25600)
    k("s_mul_i32 s45, s17, 20480\ns_mul_i32 s46, s18, 320\ns_mul_i32 s48, s18, 5120")
    for j in range(5):
        k(f"""
        v_add_u32 v6, s46, v1
        v_add_u32 v6, {64*j}, v6
        v_mul_u32_u24 v7, 3277, v6
        v_lshrrev_b32 v7, 18, v7
        v_mul_u32_u24 v8, 80, v7
        v_sub_u32 v8, v6, v8
        v_xor_b32 v8, v8, v7
        v_mul_u32_u24 v7, 1280, v7
        v_lshl_add_u32 v7, v8, 4, v7
        s_mov_b32 m0, s48
        s_add_u32 s48, s48, 1024
        buffer_load_dwordx4 v7, s[20:23], s45 offen lds
        """)
    k(f"v_lshlrev_b32 v7, 4, v1\ns_lshl_b32 s47, s18, 10\ns_add_u32 s48, s47, {WK_OFF}")
    for j in range(7):
        k(f"s_mov_b32 m0, s48\ns_add_u32 s49, s48, 28672\nbuffer_load_dwordx4 v7, s[24:27], s47 offen lds\ns_mov_b32 m0, s49\ns_add_u32 s48, s48, 4096\nbuffer_load_dwordx4 v7, s[28:31], s47 offen lds\ns_add_u32 s47, s47, 4096")
    k(f"""
    v_mul_u32_u24 v9, 1280, v3
    v_and_b32 v6, 3, v3
    v_xor_b32 v6, v6, v4
    v_lshl_add_u32 v9, v6, 4, v9
    v_and_b32 v10, 12, v3
    v_lshrrev_b32 v12, 2, v1
    v_and_b32 v12, 3, v12
    v_lshl_add_u32 v12, v4, 3, v12
    v_and_b32 v13, 3, v1
    v_mul_u32_u24 v11, 40, v12
    v_lshl_add_u32 v11, v13, 3, v11
    s_lshr_b32 s46, s18, 1
    s_mul_i32 s46, s46, 28672
    s_and_b32 s47, s18, 1
    s_lshl_b32 s47, s47, 5
    s_add_u32 s46, s46, s47
    s_add_u32 s46, s46, {WK_OFF}
    v_add_u32 v11, s46, v11
    """)
    for q in range(4):
        k(f"v_xor_b32 v6, {4*q}, v10\nv_lshl_add_u32 v{TMP+8+q}, v6, 4, v9")
    for i in range(4):
        k(f"v_mov_b32 v{ONES+i}, 0x3f803f80\nv_mov_b32 v{ST+i}, 0")
    k.srd_off(36, 12, WS_KV, 163840)
    k.stamp()
    k("s_waitcnt vmcnt(0)\ns_barrier")
    k.stamp()
    def reads(ks, b):
        k(f"ds_read_b128 {v4(XF+4*b)}, v{TMP+8+(ks&3)} offset:{(ks>>2)*256}")
        for h in range(2):
            k(f"ds_read_b64_tr_b16 {v2(WF+4*b+2*h)}, v11 offset:{ks*1280+h*160}")
    reads(0, 0)
    for ks in range(20):
        if ks < 19:
            reads(ks + 1, (ks + 1) & 1)
            k("s_waitcnt lgkmcnt(3)")
        else:
            k("s_waitcnt lgkmcnt(0)")
        b = ks & 1
        k(f"v_mfma_f32_16x16x32_bf16 {v4(ACC)}, {v4(WF+4*b)}, {v4(XF+4*b)}, {'0' if ks == 0 else v4(ACC)}")
        k(f"v_mfma_f32_16x16x32_bf16 {v4(CS)}, {v4(WF+4*b)}, {v4(ONES)}, {'0' if ks == 0 else v4(CS)}")
        for d in range(4):
            k(f"v_dot2_f32_bf16 v{ST+(d&1)}, v{XF+4*b+d}, v{ONES}, v{ST+(d&1)}\nv_dot2_f32_bf16 v{ST+2+(d&1)}, v{XF+4*b+d}, v{XF+4*b+d}, v{ST+2+(d&1)}")
    k.stamp()
    k(f"s_nop 7\nv_add_f32 v{ST}, v{ST}, v{ST+1}\nv_add_f32 v{ST+1}, v{ST+2}, v{ST+3}")
    red_g(k, [ST, ST + 1], TMP)
    ln_fin(k, ST, ST + 1)
    k.srd_off(40, 12, WS_Q, 16384)
    k(f"""
    s_cmp_eq_u32 s18, 3
    s_cbranch_scc0 kv_kernel_nost
    s_lshl_b32 s46, s17, 7
    v_lshlrev_b32 v14, 3, v3
    s_mov_b64 exec, 0xffff
    buffer_store_dwordx2 {v2(ST)}, v14, s[40:43], s46 offen
    s_mov_b64 exec, -1
    """)
    k.label("nost")
    for r in range(4):
        k(f"v_mul_f32 v{ACC+r}, v{ACC+r}, v{ST+1}\nv_fma_f32 v{ACC+r}, -v{CS+r}, v{ST}, v{ACC+r}")
    k(f"v_cvt_pk_bf16_f32 v{ACC}, v{ACC}, v{ACC+1}\nv_cvt_pk_bf16_f32 v{ACC+1}, v{ACC+2}, v{ACC+3}")
    k("""
    s_lshr_b32 s44, s17, 1
    s_mul_i32 s44, s44, 2560
    s_and_b32 s45, s17, 1
    s_cmp_ge_u32 s18, 2
    s_cbranch_scc1 kv_kernel_vepi
    v_mov_b32 v15, 0
    s_cmp_eq_u32 s18, 0
    s_cbranch_scc0 kv_kernel_k1
    """)
    k(f"""
    s_lshl_b32 s46, s45, 8
    s_add_u32 s44, s44, s46
    v_lshrrev_b32 v14, 1, v4
    v_lshlrev_b32 v14, 9, v14
    v_lshl_add_u32 v14, v3, 4, v14
    v_and_b32 v13, 1, v4
    v_lshl_add_u32 v14, v13, 3, v14
    buffer_store_dwordx2 {v2(ACC)}, v14, s[36:39], s44 offen
    v_dot2_f32_bf16 v15, v{ACC}, v{ACC}, v15
    v_dot2_f32_bf16 v15, v{ACC+1}, v{ACC+1}, v15
    s_nop 3
    """)
    red_g(k, [15], TMP)
    k("s_branch kv_kernel_kmax")
    k.label("k1")
    k(f"""
    s_lshl_b32 s46, s45, 7
    s_add_u32 s44, s44, s46
    v_lshlrev_b32 v14, 3, v3
    s_mov_b64 exec, 0xffff
    buffer_store_dwordx2 {v2(ACC)}, v14, s[36:39], s44 offen offset:1024
    v_dot2_f32_bf16 v15, v{ACC}, v{ACC}, v15
    v_dot2_f32_bf16 v15, v{ACC+1}, v{ACC+1}, v15
    """)
    k.srd_off(40, 12, WS_A, 1728 * 4)
    k("""
    s_mov_b64 exec, -1
    v_mov_b32 v20, -1
    v_mov_b32 v21, -1
    v_mov_b32 v22, -1
    v_mov_b32 v23, -1
    s_lshl_b32 s46, s2, 10
    v_lshlrev_b32 v14, 4, v1
    buffer_store_dwordx4 v[20:23], v14, s[40:43], s46 offen
    s_mov_b64 exec, 0xffff
    s_nop 1
    """)
    k.srd_off(40, 12, WS_ST, 32768)
    k("""
    v_mov_b32 v20, 0
    v_mov_b32 v21, 0
    v_mov_b32 v22, 0
    v_mov_b32 v23, 0
    s_lshl_b32 s46, s17, 8
    v_lshlrev_b32 v14, 4, v3
    buffer_store_dwordx4 v[20:23], v14, s[40:43], s46 offen
    s_mov_b64 exec, -1
    """)
    k.label("kmax")
    for off in ("0x041F", "0x081F", "0x101F", "0x201F"):
        k(f"ds_swizzle_b32 v{TMP}, v15 offset:{off}\ns_waitcnt lgkmcnt(0)\nv_max_f32 v15, v15, v{TMP}")
    k.srd_off(40, 12, WS_KM, 1024)
    k("""
    s_lshl_b32 s44, s18, 7
    s_add_u32 s44, s44, s17
    s_lshl_b32 s44, s44, 2
    v_mov_b32 v14, 0
    s_mov_b64 exec, 1
    buffer_store_dword v15, v14, s[40:43], s44 offen
    s_mov_b64 exec, -1
    s_branch kv_kernel_end
    """)
    k.label("vepi")
    k("""
    s_mul_i32 s46, s45, 640
    s_add_u32 s44, s44, s46
    v_bfe_u32 v14, v3, 2, 1
    v_mul_u32_u24 v12, 320, v14
    v_bfe_u32 v14, v3, 3, 1
    v_lshl_add_u32 v12, v14, 3, v12
    v_and_b32 v14, 3, v3
    v_lshl_add_u32 v12, v14, 1, v12
    v_lshl_add_u32 v14, v4, 6, v12
    s_cmp_eq_u32 s18, 2
    s_cbranch_scc1 kv_kernel_v0
    v_add_u32 v14, 256, v12
    s_mov_b64 exec, 0xffff
    """)
    k.label("v0")
    k(f"""
    buffer_store_short v{ACC}, v14, s[36:39], s44 offen offset:1280
    buffer_store_short_d16_hi v{ACC}, v14, s[36:39], s44 offen offset:1296
    buffer_store_short v{ACC+1}, v14, s[36:39], s44 offen offset:1312
    buffer_store_short_d16_hi v{ACC+1}, v14, s[36:39], s44 offen offset:1328
    s_mov_b64 exec, -1
    s_cmp_eq_u32 s18, 3
    s_cbranch_scc0 kv_kernel_end
    s_cmp_eq_u32 s2, 0
    s_cbranch_scc0 kv_kernel_end
    """)
    k.srd(40, 14, 1280)
    k(f"""
    v_mul_u32_u24 v8, 20, v1
    buffer_load_dwordx4 v[20:23], v8, s[40:43], 0 offen
    buffer_load_dword v24, v8, s[40:43], 0 offen offset:16
    v_mov_b32 v17, 0
    s_waitcnt vmcnt(0)
    v_dot2_f32_bf16 v17, v20, v{ONES}, v17
    v_dot2_f32_bf16 v17, v21, v{ONES}, v17
    v_dot2_f32_bf16 v17, v22, v{ONES}, v17
    v_dot2_f32_bf16 v17, v23, v{ONES}, v17
    v_dot2_f32_bf16 v17, v24, v{ONES}, v17
    s_nop 3
    """)
    for off in ("0x041F", "0x081F", "0x101F", "0x201F"):
        k(f"ds_swizzle_b32 v18, v17 offset:{off}\ns_waitcnt lgkmcnt(0)\nv_add_f32 v17, v17, v18")
    red_g(k, [17], 18)
    k.srd_off(40, 12, WS_SEL, 64)
    k("""
    v_mov_b32 v14, 0
    s_mov_b64 exec, 1
    buffer_store_dword v17, v14, s[40:43], 0 offen offset:32
    s_mov_b64 exec, -1
    """)
    k.finish(0)
    return k, "grid=(128,1,1) block=(256,1,1) lds=%d" % (20480 + 2 * 28672)

SLOT = 36864
W_OFF = 16384
XF, SRC, VA_RD, VW_RD, ST, ONES, ACC, CS, WF, TMP = 16, 16, 48, 52, 56, 76, 80, 96, 100, 108

def gemm_ids(k):
    k("""
    v_and_b32 v1, 63, v0
    v_lshrrev_b32 v2, 6, v0
    s_lshr_b32 s16, s2, 5
    s_and_b32 s17, s2, 7
    s_lshl_b32 s17, s17, 2
    s_bfe_u32 s44, s2, 0x20003
    s_add_u32 s17, s17, s44
    v_readfirstlane_b32 s18, v2
    v_and_b32 v3, 15, v1
    v_lshrrev_b32 v4, 4, v1
    """)

def loader_list(lw):
    return [("A", e) for e in range(16)][12*lw:12*lw+12] + [("W", e) for e in range(20)][max(0, 12*lw-16):max(0, 12*lw+12-16)]

def gemm_loader(k, lw, w_linear, gb, wchunk, mid=None, nmid=0):
    lst = loader_list(lw)
    k("s_lshl_b32 s45, s17, 6")
    for i, (kind, e) in enumerate(lst):
        if kind == "A":
            k(f"""
            v_add_u32 v6, {4*e}, v4
            v_and_b32 v7, 15, v6
            v_xor_b32 v7, v7, v3
            v_add_u32 v6, s45, v6
            v_mul_u32_u24 v6, 1280, v6
            v_lshl_add_u32 v{SRC+i}, v7, 4, v6
            """)
        elif w_linear:
            k(f"v_add_u32 v6, {64*e}, v1\nv_lshlrev_b32 v{SRC+i}, 4, v6")
        else:
            k(f"""
            v_add_u32 v6, {64*e}, v1
            v_mul_u32_u24 v7, 6554, v6
            v_lshrrev_b32 v7, 16, v7
            v_mul_u32_u24 v8, 10, v7
            v_sub_u32 v8, v6, v8
            v_mul_u32_u24 v7, 1280, v7
            v_lshl_add_u32 v{SRC+i}, v8, 4, v7
            """)
    def issue(c):
        slot = gb + (c % 3) * SLOT
        k(f"s_mov_b32 s46, {c*256}\ns_mov_b32 s47, {c*wchunk}")
        for i, (kind, e) in enumerate(lst):
            if kind == "A":
                k(f"s_mov_b32 m0, {slot + e*1024}\ns_nop 0\nbuffer_load_dwordx4 v{SRC+i}, s[20:23], s46 offen lds")
            else:
                k(f"s_mov_b32 m0, {slot + W_OFF + e*1024}\ns_nop 0\nbuffer_load_dwordx4 v{SRC+i}, s[24:27], s47 offen lds")
    for c in range(3):
        issue(c)
    if mid:
        mid()
    k.stamp()
    waits = [24 + nmid, 12 + nmid, 12 + nmid, 12, 0]
    for c in range(5):
        k(f"s_waitcnt vmcnt({waits[c]})\ns_barrier")
        k.stamp()
        if 1 <= c <= 2:
            issue(c + 2)
    k.stamp()

def gemm_mm(k, colsum, gb):
    k(f"""
    v_lshlrev_b32 v6, 8, v3
    v_and_b32 v7, 3, v3
    v_xor_b32 v7, v7, v4
    v_lshl_add_u32 v6, v7, 4, v6
    v_add_u32 v6, {gb}, v6
    v_and_b32 v7, 12, v3
    """)
    for ks in range(4):
        k(f"v_xor_b32 v8, {4*ks}, v7\nv_lshl_add_u32 v{VA_RD+ks}, v8, 4, v6")
    k(f"""
    v_lshrrev_b32 v12, 2, v1
    v_and_b32 v12, 3, v12
    v_lshl_add_u32 v12, v4, 3, v12
    v_and_b32 v13, 3, v1
    s_lshl_b32 s48, s18, 5
    s_add_u32 s47, s48, {gb + W_OFF}
    v_mul_u32_u24 v{VW_RD}, 160, v12
    v_lshl_add_u32 v{VW_RD}, v13, 3, v{VW_RD}
    v_add_u32 v{VW_RD}, s47, v{VW_RD}
    """)
    if colsum:
        for i in range(4):
            k(f"v_mov_b32 v{ONES+i}, 0x3f803f80")
    k.stamp()
    def reads(ks, buf):
        for h in range(2):
            k(f"ds_read_b64_tr_b16 {v2(WF+4*buf+2*h)}, v{VW_RD} offset:{ks*5120 + h*640}")
        for rf in range(4):
            k(f"ds_read_b128 {v4(XF+16*buf+4*rf)}, v{VA_RD+ks} offset:{rf*4096}")
    for c in range(5):
        k("s_barrier")
        k.stamp()
        reads(0, 0)
        for ks in range(4):
            if ks < 3:
                reads(ks + 1, (ks + 1) & 1)
                k("s_waitcnt lgkmcnt(6)")
            else:
                k("s_waitcnt lgkmcnt(0)")
                if c < 4:
                    d = SLOT if (c % 3) != 2 else -2 * SLOT
                    for r in [VA_RD + i for i in range(4)] + [VW_RD]:
                        k(f"v_add_u32 v{r}, {d & 0xffffffff}, v{r}")
            first = (c == 0 and ks == 0)
            b = ks & 1
            for rf in range(4):
                a = ACC + 4 * rf
                k(f"v_mfma_f32_16x16x32_bf16 {v4(a)}, {v4(WF+4*b)}, {v4(XF+16*b+4*rf)}, {'0' if first else v4(a)}")
            if colsum:
                k(f"v_mfma_f32_16x16x32_bf16 {v4(CS)}, {v4(WF+4*b)}, {v4(ONES)}, {'0' if first else v4(CS)}")
    k.stamp()

def gen_k2():
    k = K("attn_kernel", 168)
    GB = 53248
    QB, EXS = 163840 - 10240, 163840 - 10240 - 512
    QF1, QF2, SA, SB, O, P = 8, 12, 16, 32, 48, 64
    KF = [72, 80]; VF = [88, 96]
    AK, AK2, AV = 104, 105, 106
    T = 108
    KMR = 126
    CP, CPD = 128, 156
    THRESH = 50.0
    k("""
    s_cmp_ge_u32 s2, 256
    s_cbranch_scc1 attn_kernel_exit
    s_load_dwordx2 s[54:55], s[0:1], 72
    s_load_dwordx4 s[4:7], s[0:1], 0
    s_load_dwordx2 s[12:13], s[0:1], 96
    s_load_dwordx2 s[14:15], s[0:1], 32
    s_load_dwordx4 s[8:11], s[0:1], 56
    """)
    gemm_ids(k)
    k("s_waitcnt lgkmcnt(0)")
    k.diag_start(1)
    k.stamp()
    k.srd(20, 4, MATB)
    k("""
    s_mul_i32 s44, s16, 160
    s_add_u32 s24, s6, s44
    s_addc_u32 s25, s7, 0
    s_sub_u32 s26, 819200, s44
    s_mov_b32 s27, 0x00020000
    """)
    k.srd_off(28, 12, WS_KM, 1024)
    k.srd_off(56, 12, WS_KV, 163840)
    k(f"""
    v_lshlrev_b32 v7, 2, v1
    buffer_load_dword v{KMR}, v7, s[28:31], 0 offen
    buffer_load_dword v{KMR+1}, v7, s[28:31], 0 offen offset:256
    buffer_load_dword v{CP}, v7, s[28:31], 0 offen offset:512
    buffer_load_dword v{CP+1}, v7, s[28:31], 0 offen offset:768
    """)
    k(f"v_lshlrev_b32 v{CPD+4}, 4, v1\ns_lshl_b32 s52, s18, 10\ns_add_u32 s52, s52, 49152")
    def dma():
        k(f"s_mov_b32 m0, s52\ns_nop 0\nbuffer_load_dwordx4 v{CPD+4}, s[56:59], s52 offen lds\ns_add_u32 s52, s52, 8192")
    n0 = k.nst
    k("s_cmp_lt_u32 s18, 5\ns_cbranch_scc1 attn_kernel_mm")
    for lw in range(3):
        if lw < 2:
            k(f"s_cmp_eq_u32 s18, {5+lw}\ns_cbranch_scc0 attn_kernel_ld{lw+1}")
        def mid():
            for i in range(16):
                o = (lw * 16 + i) * 1024
                k(f"s_mov_b32 m0, {o}\ns_mov_b32 s46, {o}\nbuffer_load_dwordx4 v{CPD+4}, s[56:59], s46 offen lds")
        k.nst = n0
        gemm_loader(k, lw, False, GB, 128 * 1280, mid, 16)
        k("s_branch attn_kernel_qrd")
        if lw < 2:
            k.label(f"ld{lw+1}")
    k.label("mm")
    k.nst = n0
    k.srd_off(36, 12, WS_Q, 16384)
    k("s_lshl_b32 s46, s17, 9\nv_lshlrev_b32 v9, 3, v3")
    for rf in range(4):
        k(f"buffer_load_dwordx2 {v2(ST+2*rf)}, v9, s[36:39], s46 offen offset:{rf*128}")
    gemm_mm(k, True, GB)
    k(f"""
    v_mul_u32_u24 v10, 160, v3
    v_lshl_add_u32 v10, v4, 3, v10
    s_lshl_b32 s46, s18, 5
    s_add_u32 s46, s46, {QB}
    v_add_u32 v10, s46, v10
    s_waitcnt vmcnt(0)
    s_nop 3
    """)
    for rf in range(4):
        a = ACC + 4 * rf
        k(f"v_mul_f32 v14, {f32hex(QSCALE)}, v{ST+2*rf+1}\nv_mul_f32 v15, {f32hex(QSCALE)}, v{ST+2*rf}")
        for r in range(4):
            k(f"v_mul_f32 v{a+r}, v{a+r}, v14\nv_fma_f32 v{a+r}, -v{CS+r}, v15, v{a+r}")
        k(f"v_cvt_pk_bf16_f32 v{a}, v{a}, v{a+1}\nv_cvt_pk_bf16_f32 v{a+1}, v{a+2}, v{a+3}")
        k(f"ds_write_b64 v10, {v2(a)} offset:{rf*2560}")
    k("s_waitcnt lgkmcnt(0)")
    k.label("qrd")
    k("s_barrier")
    k.stamp()
    k(f"""
    v_and_b32 v3, 31, v1
    v_lshrrev_b32 v4, 5, v1
    v_lshrrev_b32 v6, 2, v3
    v_and_b32 v7, 3, v3
    v_mul_u32_u24 v{T+8}, 160, v6
    v_mul_u32_u24 v7, 40, v7
    v_add_u32 v{T+8}, v{T+8}, v7
    s_mul_i32 s46, s18, 1280
    s_add_u32 s46, s46, {QB}
    v_add_u32 v{T+8}, s46, v{T+8}
    v_lshl_add_u32 v{T+9}, v4, 4, v{T+8}
    ds_read_b64 {v2(QF1)}, v{T+9}
    ds_read_b64 {v2(QF1+2)}, v{T+9} offset:8
    ds_read_b64 {v2(QF2)}, v{T+8} offset:32
    v_mul_u32_u24 v5, 1280, v6
    v_add_u32 v5, v5, v7
    s_lshl_b32 s19, s17, 6
    s_lshl_b32 s46, s18, 3
    s_add_u32 s19, s19, s46
    s_mul_i32 s19, s19, 1280
    s_mul_i32 s46, s16, 160
    s_add_u32 s19, s19, s46
    v_lshlrev_b32 v{AK}, 4, v1
    v_lshlrev_b32 v{AK2}, 3, v3
    v_mul_u32_u24 v{AV}, 320, v4
    v_lshl_add_u32 v{AV}, v3, 4, v{AV}
    s_mov_b32 s40, 0x000fffff
    s_mov_b32 s41, 0x000fffff
    v_max_f32 v{T}, v{KMR}, v{KMR+1}
    v_max_f32 v{T+15}, v{CP}, v{CP+1}
    """)
    k.srd_off(32, 12, WS_O, MATB)
    for b in range(2):
        k(f"v_mov_b32 v{KF[b]+6}, 0x3f803f80\nv_mov_b32 v{KF[b]+7}, 0x00003f80")
    k(f"v_cmp_eq_u32 vcc, 20, v3\nv_mov_b32 v{T+2}, 0x3f803f80\ns_nop 1\nv_cndmask_b32 v{T+2}, 0, v{T+2}, vcc")
    for b in range(2):
        for r in range(8):
            k(f"v_mov_b32 v{VF[b]+r}, v{T+2}")
    for r in range(16):
        k(f"v_mov_b32 v{O+r}, 0")
    for r in range(4, 8):
        k(f"v_mov_b32 v{P+r}, 0")
    k(f"""
    s_lshl_b32 s45, s2, 3
    s_add_u32 s45, s45, s18
    s_lshl_b32 s45, s45, 6
    v_add_u32 v{T+8}, s45, v1
    s_mov_b32 s46, 0x12F684C
    s_mov_b32 s47, 0x3333334
    s_mov_b32 s48, 0x1999999A
    v_mov_b32 v{T+9}, 0x7fffffff
    """)
    for rnd in range(2):
        k(f"""
        v_add_u32 v{T+10}, {131072*rnd}, v{T+8}
        v_mul_hi_u32 v{T+11}, v{T+10}, s46
        v_mul_u32_u24 v{T+12}, 216, v{T+11}
        v_sub_u32 v{T+12}, v{T+10}, v{T+12}
        v_lshrrev_b32 v{T+13}, 1, v{T+12}
        v_mul_u32_u24 v{T+13}, 40960, v{T+13}
        v_lshl_add_u32 v{T+13}, v{T+11}, 5, v{T+13}
        v_and_b32 v{T+12}, 1, v{T+12}
        v_lshl_add_u32 v{T+13}, v{T+12}, 4, v{T+13}
        v_cmp_gt_u32 vcc, 138240, v{T+10}
        s_nop 1
        v_cndmask_b32 v{CPD+rnd}, v{T+9}, v{T+13}, vcc
        v_mul_hi_u32 v{T+11}, v{T+10}, s47
        v_mul_u32_u24 v{T+12}, 80, v{T+11}
        v_sub_u32 v{T+12}, v{T+10}, v{T+12}
        v_lshrrev_b32 v{T+13}, 1, v{T+12}
        v_mul_u32_u24 v{T+13}, 55296, v{T+13}
        v_lshl_add_u32 v{T+13}, v{T+11}, 5, v{T+13}
        v_and_b32 v{T+12}, 1, v{T+12}
        v_lshl_add_u32 v{T+13}, v{T+12}, 4, v{T+13}
        v_cndmask_b32 v{CPD+5+rnd}, v{T+9}, v{T+13}, vcc
        """)
    k(f"""
    v_mul_hi_u32 v{T+11}, v{T+8}, s47
    v_mul_u32_u24 v{T+12}, 80, v{T+11}
    v_sub_u32 v{T+12}, v{T+8}, v{T+12}
    v_mul_hi_u32 v{T+13}, v{T+12}, s48
    v_mul_u32_u24 v{T+14}, 10, v{T+13}
    v_sub_u32 v{T+14}, v{T+12}, v{T+14}
    v_mul_u32_u24 v{T+13}, 102400, v{T+13}
    v_mul_u32_u24 v{T+11}, 160, v{T+11}
    v_add_u32 v{T+13}, v{T+13}, v{T+11}
    v_lshl_add_u32 v{T+13}, v{T+14}, 4, v{T+13}
    v_cmp_gt_u32 vcc, 51200, v{T+8}
    s_nop 1
    v_cndmask_b32 v{CPD+2}, v{T+9}, v{T+13}, vcc
    v_lshlrev_b32 v{CPD+3}, 4, v{T+8}
    s_waitcnt lgkmcnt(0)
    v_cmp_eq_u32 vcc, 0, v4
    s_nop 1
    v_cndmask_b32 v{QF2}, 0, v{QF2}, vcc
    v_cndmask_b32 v{QF2+1}, 0, v{QF2+1}, vcc
    v_mov_b32 v{QF2+2}, 0
    v_mov_b32 v{QF2+3}, 0
    v_mov_b32 v{T+3}, 0
    """)
    if os.environ.get("DBGQ"):
        k.srd_off(36, 12, 0x3000000, MATB)
        k(f"v_lshl_add_u32 v6, v4, 4, v5\nbuffer_store_dwordx4 {v4(QF1)}, v6, s[36:39], s19 offen\ns_mov_b32 exec_hi, 0\nbuffer_store_dwordx2 {v2(QF2)}, v5, s[36:39], s19 offen offset:32\ns_mov_b32 exec_hi, -1\ns_waitcnt vmcnt(0)")
    for r in range(4):
        k(f"v_dot2_f32_bf16 v{T+3}, v{QF1+r}, v{QF1+r}, v{T+3}")
    for r in range(2):
        k(f"v_dot2_f32_bf16 v{T+3}, v{QF2+r}, v{QF2+r}, v{T+3}")
    for off in ("0x041F", "0x081F", "0x101F", "0x201F", "0x401F"):
        k(f"ds_swizzle_b32 v{T+1}, v{T} offset:{off}\nds_swizzle_b32 v{T+16}, v{T+15} offset:{off}\ns_waitcnt lgkmcnt(0)\nv_max_f32 v{T}, v{T}, v{T+1}\nv_max_f32 v{T+15}, v{T+15}, v{T+16}")
    k(f"""
    v_mov_b32 v{T+1}, v{T+15}
    v_mov_b32 v{T+2}, v{T+15}
    s_nop 1
    v_permlane32_swap_b32 v{T+1}, v{T+2}
    s_nop 1
    v_max_f32 v{T+15}, v{T+1}, v{T+2}
    v_mov_b32 v{T+1}, v{T}
    v_mov_b32 v{T+2}, v{T}
    v_mov_b32 v{T+4}, v{T+3}
    v_mov_b32 v{T+5}, v{T+3}
    s_nop 1
    v_permlane32_swap_b32 v{T+1}, v{T+2}
    v_permlane32_swap_b32 v{T+4}, v{T+5}
    s_nop 1
    v_max_f32 v{T}, v{T+1}, v{T+2}
    v_add_f32 v{T}, v{T}, v{T+15}
    v_add_f32 v{T+3}, v{T+4}, v{T+5}
    v_mul_f32 v{T+3}, v{T+3}, v{T}
    v_sqrt_f32 v{T+3}, v{T+3}
    s_nop 0
    v_mul_f32 v{T+3}, {f32hex(1.01)}, v{T+3}
    v_mov_b32 v{T+6}, {f32hex(THRESH)}
    v_cmp_nle_f32 vcc, v{T+3}, v{T+6}
    s_barrier
    s_cbranch_vccnz attn_kernel_slow
    """)
    def set_m():
        k(f"""
        v_xor_b32 v{T+3}, 0x80000000, v{T+3}
        v_and_b32 v{T+4}, 0xffff0000, v{T+3}
        v_sub_f32 v{T+5}, v{T+3}, v{T+4}
        v_and_b32 v{T+6}, 0xffff0000, v{T+5}
        v_sub_f32 v{T+5}, v{T+5}, v{T+6}
        v_lshrrev_b32 v{T+4}, 16, v{T+4}
        v_or_b32 v{T+4}, v{T+4}, v{T+6}
        v_lshrrev_b32 v{T+5}, 16, v{T+5}
        v_cmp_eq_u32 vcc, 0, v4
        s_nop 1
        v_cndmask_b32 v{QF2+2}, 0, v{T+4}, vcc
        v_cndmask_b32 v{QF2+3}, 0, v{T+5}, vcc
        """)
    def kreads(b, blk):
        k(f"ds_read_b128 {v4(KF[b])}, v{AK} offset:{blk*2560}\nds_read_b64 {v2(KF[b]+4)}, v{AK2} offset:{blk*2560+1024}")
    def vreads(b, blk):
        k(f"s_mov_b64 exec, s[40:41]\nds_read_b128 {v4(VF[b])}, v{AV} offset:{blk*2560+1280}\nds_read_b128 {v4(VF[b]+4)}, v{AV} offset:{blk*2560+1920}\ns_mov_b64 exec, -1")
    def pipe_start():
        kreads(0, 0); kreads(1, 1); vreads(0, 0)
        k("s_waitcnt lgkmcnt(4)")
        k(f"v_mfma_f32_32x32x16_bf16 {v16(SA)}, {v4(KF[0])}, {v4(QF1)}, 0")
        k(f"v_mfma_f32_32x32x16_bf16 {v16(SA)}, {v4(KF[0]+4)}, {v4(QF2)}, {v16(SA)}")
        k("s_nop 7\ns_nop 3")
    def E(Sc, a, b):
        for r in range(a, b):
            k(f"v_exp_f32 v{Sc+r}, v{Sc+r}")
    def C(Sc, a, b):
        for p in range(a, b):
            k(f"v_cvt_pk_bf16_f32 v{P+p}, v{Sc+2*p}, v{Sc+2*p+1}")
    def iteration(j, ndma):
        par = j & 1
        Sc, Sn = (SA, SB) if par == 0 else (SB, SA)
        k("s_waitcnt lgkmcnt(0)")
        E(Sc, 0, 2)
        k(f"v_mfma_f32_32x32x16_bf16 {v16(O)}, {v4(VF[1-par]+4)}, {v4(P+4)}, {v16(O)}")
        kreads(par, j + 2)
        vreads(1 - par, j + 1)
        E(Sc, 2, 5)
        k(f"v_mfma_f32_32x32x16_bf16 {v16(Sn)}, {v4(KF[1-par])}, {v4(QF1)}, 0")
        E(Sc, 5, 8); C(Sc, 0, 4); E(Sc, 8, 9)
        k(f"v_mfma_f32_32x32x16_bf16 {v16(Sn)}, {v4(KF[1-par]+4)}, {v4(QF2)}, {v16(Sn)}")
        if ndma >= 1: dma()
        E(Sc, 9, 12)
        k(f"v_mfma_f32_32x32x16_bf16 {v16(O)}, {v4(VF[par])}, {v4(P)}, {v16(O)}")
        if ndma >= 2: dma()
        E(Sc, 12, 16); C(Sc, 4, 8)
    def group(with_dma):
        for j in range(8):
            iteration(j, (2 if j < 7 else 0) if with_dma else 0)
        k(f"v_add_u32 v{AK}, 20480, v{AK}\nv_add_u32 v{AK2}, 20480, v{AK2}\nv_add_u32 v{AV}, 20480, v{AV}")
    def copy_loads():
        k.srd(36, 8, 640 * 3456)
        k(f"buffer_load_dwordx4 {v4(CP)}, v{CPD+3}, s[36:39], 0 offen\ns_mov_b32 s45, {131072*16}\nbuffer_load_dwordx4 {v4(CP+4)}, v{CPD+3}, s[36:39], s45 offen")
        k.srd(36, 10, 640 * 3456)
        k(f"buffer_load_dwordx4 {v4(CP+8)}, v{CPD+3}, s[36:39], 0 offen\nbuffer_load_dwordx4 {v4(CP+12)}, v{CPD+3}, s[36:39], s45 offen")
        k.srd(36, 14, 819200)
        k(f"buffer_load_dwordx4 {v4(CP+16)}, v{CPD+3}, s[36:39], 0 offen")
        k.srd(36, 54, 1728 * 1280)
        k(f"buffer_load_dwordx4 {v4(CP+20)}, v{CPD+3}, s[36:39], 0 offen\nbuffer_load_dwordx4 {v4(CP+24)}, v{CPD+3}, s[36:39], s45 offen")
    set_m()
    k.stamp()
    pipe_start()
    group(True)
    k.stamp()
    k("s_waitcnt vmcnt(0)\ns_barrier")
    k.stamp()
    copy_loads()
    k("s_mov_b32 s42, 7\ns_branch attn_kernel_loop")
    k.label("slow")
    for i in range(14):
        dma()
    k("s_waitcnt vmcnt(0)\ns_barrier")
    copy_loads()
    k(f"v_mov_b32 v{T+3}, 0xff800000\ns_mov_b32 s42, 64")
    k.label("maxloop")
    kreads(0, 0)
    k(f"v_add_u32 v{AK}, 2560, v{AK}\nv_add_u32 v{AK2}, 2560, v{AK2}\ns_waitcnt lgkmcnt(0)")
    k(f"v_mfma_f32_32x32x16_bf16 {v16(SA)}, {v4(KF[0])}, {v4(QF1)}, 0")
    k(f"v_mfma_f32_32x32x16_bf16 {v16(SA)}, {v4(KF[0]+4)}, {v4(QF2)}, {v16(SA)}")
    k("s_nop 15\ns_nop 3")
    for r in range(0, 16, 2):
        k(f"v_max3_f32 v{T+3}, v{SA+r}, v{SA+r+1}, v{T+3}")
    k("s_sub_u32 s42, s42, 1\ns_cmp_lg_u32 s42, 0\ns_cbranch_scc1 attn_kernel_maxloop")
    k(f"""
    v_mov_b32 v{T+4}, v{T+3}
    v_mov_b32 v{T+5}, v{T+3}
    s_nop 1
    v_permlane32_swap_b32 v{T+4}, v{T+5}
    s_nop 1
    v_max_f32 v{T+3}, v{T+4}, v{T+5}
    v_lshlrev_b32 v{AK}, 4, v1
    v_lshlrev_b32 v{AK2}, 3, v3
    """)
    set_m()
    pipe_start()
    k("s_mov_b32 s42, 8")
    k.label("loop")
    if os.environ.get("NOPRIO") is None:
        k(f"s_lshr_b32 s43, s18, 2\ns_add_u32 s43, s43, s42\ns_and_b32 s43, s43, 1\ns_cmp_eq_u32 s43, 0\ns_cbranch_scc1 attn_kernel_p0\ns_setprio 1\ns_branch attn_kernel_p1")
        k.label("p0")
        k("s_setprio 0")
        k.label("p1")
    group(False)
    k("s_sub_u32 s42, s42, 1\ns_cmp_lg_u32 s42, 0\ns_cbranch_scc1 attn_kernel_loop")
    k.stamp()
    k("s_nop 1")
    k(f"v_mfma_f32_32x32x16_bf16 {v16(O)}, {v4(VF[1]+4)}, {v4(P+4)}, {v16(O)}")
    k("s_waitcnt vmcnt(0)")
    k.srd_off(36, 12, WS_FW, NFF * 40960)
    k(f"""
    s_mov_b32 s45, 20480
    buffer_store_dwordx4 {v4(CP)}, v{CPD}, s[36:39], 0 offen
    buffer_store_dwordx4 {v4(CP+4)}, v{CPD+1}, s[36:39], 0 offen
    buffer_store_dwordx4 {v4(CP+8)}, v{CPD}, s[36:39], s45 offen
    buffer_store_dwordx4 {v4(CP+12)}, v{CPD+1}, s[36:39], s45 offen
    """)
    k.srd_off(36, 12, WS_WO, 819200)
    k(f"buffer_store_dwordx4 {v4(CP+16)}, v{CPD+2}, s[36:39], 0 offen")
    k.srd_off(36, 12, WS_WD, 40 * 55296)
    k(f"buffer_store_dwordx4 {v4(CP+20)}, v{CPD+5}, s[36:39], 0 offen\nbuffer_store_dwordx4 {v4(CP+24)}, v{CPD+6}, s[36:39], 0 offen")
    k("s_nop 7")
    k(f"""
    v_mov_b32 v{T}, v{O+8}
    v_mov_b32 v{T+1}, v{O+8}
    s_nop 1
    v_permlane32_swap_b32 v{T}, v{T+1}
    s_nop 1
    v_rcp_f32 v{T+1}, v{T+1}
    s_nop 0
    """)
    for r in range(12):
        k(f"v_mul_f32 v{O+r}, v{O+r}, v{T+1}")
    for p in range(6):
        k(f"v_cvt_pk_bf16_f32 v{P+p}, v{O+2*p}, v{O+2*p+1}")
    k(f"""
    v_lshl_add_u32 v6, v4, 3, v5
    buffer_store_dwordx2 {v2(P)}, v6, s[32:35], s19 offen
    buffer_store_dwordx2 {v2(P+2)}, v6, s[32:35], s19 offen offset:16
    s_mov_b32 exec_hi, 0
    buffer_store_dwordx2 {v2(P+4)}, v6, s[32:35], s19 offen offset:32
    """)
    k.finish(1)
    return k, "grid=(256,1,1) block=(512,1,1) lds=163840"

def gen_k3():
    k = K("oproj_kernel", 128)
    XR, WR = ST, ST + 8
    EXS = 3 * SLOT
    k("""
    s_cmp_ge_u32 s2, 256
    s_cbranch_scc1 oproj_kernel_exit
    s_load_dwordx2 s[4:5], s[0:1], 0
    s_load_dwordx2 s[12:13], s[0:1], 96
    s_load_dwordx2 s[14:15], s[0:1], 48
    """)
    gemm_ids(k)
    k("s_waitcnt lgkmcnt(0)")
    k.diag_start(2)
    k.stamp()
    k.srd_off(20, 12, WS_O, MATB)
    k(f"""
    s_mul_i32 s44, s16, 102400
    s_add_u32 s44, s44, {WS_WO}
    s_add_u32 s24, s12, s44
    s_addc_u32 s25, s13, 0
    s_mov_b32 s26, 102400
    s_mov_b32 s27, 0x00020000
    """)
    k.srd(28, 4, MATB)
    k.srd(32, 14, 1280)
    k.srd_off(36, 12, WS_H, MATB)
    k.srd_off(40, 12, WS_ST, 32768)
    n0 = k.nst
    k("""
    s_cmp_lt_u32 s18, 5
    s_cbranch_scc0 oproj_kernel_idle
    s_lshl_b32 s45, s17, 6
    v_add_u32 v5, s45, v3
    v_mul_u32_u24 v10, 1280, v5
    v_lshl_add_u32 v10, v4, 3, v10
    v_lshlrev_b32 v11, 3, v4
    s_mul_i32 s59, s16, 160
    s_lshl_b32 s46, s18, 5
    s_add_u32 s59, s59, s46
    s_mov_b32 s44, s59
    """)
    for rf in range(4):
        k(f"buffer_load_dwordx2 {v2(XR+2*rf)}, v10, s[28:31], s44 offen\ns_add_u32 s44, s44, 20480")
    k(f"buffer_load_dwordx2 {v2(WR)}, v11, s[32:35], s59 offen")
    gemm_mm(k, False, 0)
    k("s_waitcnt vmcnt(0)")
    k("s_nop 7\nv_mov_b32 v15, 0x3f803f80\ns_mov_b32 s44, s59")
    for rf in range(4):
        a = ACC + 4 * rf
        S = TMP + 4 * rf
        k(f"v_cvt_pk_bf16_f32 v{a}, v{a}, v{a+1}\nv_cvt_pk_bf16_f32 v{a+1}, v{a+2}, v{a+3}")
        k(f"v_mov_b32 v{S}, 0\nv_mov_b32 v{S+1}, 0\nv_mov_b32 v{S+2}, 0\nv_mov_b32 v{S+3}, 0")
        for h in range(2):
            k(f"""
            v_lshlrev_b32 v12, 16, v{a+h}
            v_and_b32 v13, 0xffff0000, v{a+h}
            v_lshlrev_b32 v6, 16, v{XR+2*rf+h}
            v_and_b32 v7, 0xffff0000, v{XR+2*rf+h}
            v_add_f32 v12, v12, v6
            v_add_f32 v13, v13, v7
            v_cvt_pk_bf16_f32 v{a+h}, v12, v13
            """)
            k(f"v_dot2_f32_bf16 v{S}, v{a+h}, v15, v{S}\nv_dot2_f32_bf16 v{S+1}, v{a+h}, v{a+h}, v{S+1}\nv_dot2_f32_bf16 v{S+2}, v{a+h}, v{WR+h}, v{S+2}")
        k(f"buffer_store_dwordx2 {v2(a)}, v10, s[36:39], s44 offen\ns_add_u32 s44, s44, 20480")
    k("s_nop 3")
    red_g(k, [TMP + 4 * rf + i for rf in range(4) for i in range(3)], 16)
    k(f"""
    v_lshlrev_b32 v14, 4, v3
    s_lshl_b32 s46, s18, 10
    s_add_u32 s46, s46, {EXS}
    v_add_u32 v14, s46, v14
    s_mov_b64 exec, 0xffff
    """)
    for rf in range(4):
        k(f"ds_write_b128 v14, {v4(TMP+4*rf)} offset:{rf*256}")
    k("s_mov_b64 exec, -1\ns_waitcnt lgkmcnt(0)\ns_barrier\ns_branch oproj_kernel_end")
    k.label("idle")
    for lw in range(3):
        if lw < 2:
            k(f"s_cmp_eq_u32 s18, {5+lw}\ns_cbranch_scc0 oproj_kernel_ld{lw+1}")
        k.nst = n0
        gemm_loader(k, lw, True, 0, 20480)
        if lw < 2:
            k("s_barrier\ns_branch oproj_kernel_end")
            k.label(f"ld{lw+1}")
    k(f"""
    s_barrier
    s_cmp_eq_u32 s18, 7
    s_cbranch_scc0 oproj_kernel_end
    v_lshlrev_b32 v14, 2, v1
    v_add_u32 v9, {EXS}, v14
    """)
    for w in range(5):
        for q in range(4):
            k(f"ds_read_b32 v{16+4*w+q}, v9 offset:{w*1024+q*256}")
    k("s_lshl_b32 s44, s17, 10\ns_waitcnt lgkmcnt(0)")
    for q in range(4):
        k(f"v_add_f32 v{16+q}, v{16+q}, v{20+q}\nv_add_f32 v{24+q}, v{24+q}, v{28+q}\nv_add_f32 v{16+q}, v{16+q}, v{24+q}\nv_add_f32 v{16+q}, v{16+q}, v{32+q}")
    for q in range(4):
        k(f"buffer_atomic_add_f32 v{16+q}, v14, s[40:43], s44 offen offset:{q*256}")
    k.finish(2)
    return k, "grid=(256,1,1) block=(512,1,1) lds=%d" % (3 * SLOT + 5120)

def row_stats(k, s0, s1, s2, mean, rstd, r=None, wsum=None):
    k(f"""
    v_mul_f32 v{mean}, {f32hex(1/640)}, v{s0}
    v_mul_f32 v{rstd}, {f32hex(1/640)}, v{s1}
    v_fma_f32 v{rstd}, -v{mean}, v{mean}, v{rstd}
    v_max_f32 v{rstd}, 0, v{rstd}
    v_add_f32 v{rstd}, {f32hex(1e-5)}, v{rstd}
    v_rsq_f32 v{rstd}, v{rstd}
    """)
    if r is not None:
        k(f"v_fma_f32 v{r}, -v{mean}, v{wsum}, v{s2}\nv_mul_f32 v{r}, v{r}, v{rstd}")

NFB = 40
def gen_k4():
    k = K("ffn_kernel", 128)
    NTOT = NFF + NFB + 128
    SS = 88
    k(f"""
    s_cmp_ge_u32 s2, {NTOT}
    s_cbranch_scc1 ffn_kernel_exit
    s_load_dwordx4 s[8:11], s[0:1], 80
    s_load_dwordx2 s[12:13], s[0:1], 96
    s_waitcnt lgkmcnt(0)
    """)
    k.diag_start(3)
    k.stamp()
    k.srd_off(20, 12, WS_H, MATB)
    k.srd_off(24, 12, WS_ST, 32768)
    k.srd_off(40, 12, WS_SEL, 64)
    k.srd(28, 8, MATB)
    k.srd(48, 10, 256)
    k.srd_off(44, 12, WS_A, 1728 * 4)
    k("v_lshlrev_b32 v1, 4, v0")
    for i in range(8):
        k(f"v_add_u32 v2, {4096*i}, v1\nbuffer_load_dwordx3 v[{SS+4*i}:{SS+2+4*i}], v2, s[24:27], 0 offen")
    k("v_mov_b32 v2, 0\nbuffer_load_dword v125, v2, s[40:43], 0 offen offset:32")
    def argmax(nyounger):
        k(f"s_waitcnt vmcnt({nyounger})")
        k("v_mov_b32 v7, 0")
        for i in range(8):
            b = SS + 4 * i
            row_stats(k, b, b + 1, b + 2, 8, 9, 10, 125)
            k(f"""
            v_ashrrev_i32 v11, 31, v10
            v_or_b32 v11, 0x80000000, v11
            v_xor_b32 v11, v11, v10
            v_and_b32 v11, 0xfffff800, v11
            v_sub_u32 v12, {2047 - 256*i}, v0
            v_or_b32 v11, v11, v12
            v_max_u32 v7, v7, v11
            """)
        for ror in (8, 4, 2, 1):
            k(f"s_nop 1\nv_max_u32_dpp v7, v7, v7 row_ror:{ror} row_mask:0xf bank_mask:0xf")
        k("""
        v_lshrrev_b32 v8, 4, v0
        v_lshlrev_b32 v8, 2, v8
        ds_write_b32 v8, v7
        s_waitcnt lgkmcnt(0)
        s_barrier
        v_mov_b32 v8, 0
        ds_read_b128 v[8:11], v8
        v_mov_b32 v12, 0
        ds_read_b128 v[12:15], v12 offset:16
        v_mov_b32 v2, 0
        ds_read_b128 v[2:5], v2 offset:32
        v_mov_b32 v120, 0
        ds_read_b128 v[120:123], v120 offset:48
        s_waitcnt lgkmcnt(0)
        v_max3_u32 v7, v8, v9, v10
        v_max3_u32 v7, v11, v12, v7
        v_max3_u32 v7, v13, v14, v7
        v_max3_u32 v7, v15, v2, v7
        v_max3_u32 v7, v3, v4, v7
        v_max3_u32 v7, v5, v120, v7
        v_max3_u32 v7, v121, v122, v7
        v_max_u32 v7, v123, v7
        v_and_b32 v7, 0x7ff, v7
        v_sub_u32 v7, 2047, v7
        s_nop 0
        v_readfirstlane_b32 s18, v7
        s_nop 3
        s_lshl_b32 s19, s18, 4
        s_mul_i32 s50, s18, 1280
        """.replace("s_mul_i32 s50, s18, 1280", "s_mul_i32 s53, s18, 1280"))
    def gemv_reduce(AC, nacc):
        for ror in (8, 4, 2):
            k("s_nop 1")
            for r in range(nacc):
                k(f"v_add_f32_dpp v{AC+r}, v{AC+r}, v{AC+r} row_ror:{ror} row_mask:0xf bank_mask:0xf")
        k(f"""
        v_lshrrev_b32 v12, 4, v0
        v_lshlrev_b32 v12, 7, v12
        v_and_b32 v13, 1, v0
        v_lshl_add_u32 v12, v13, 6, v12
        s_mov_b32 s52, 0x00030003
        s_mov_b32 exec_lo, s52
        s_mov_b32 exec_hi, s52
        """)
        for q in range(nacc // 4):
            k(f"ds_write_b128 v12, {v4(AC+4*q)} offset:{64+16*q}")
        k("s_mov_b64 exec, -1\ns_waitcnt lgkmcnt(0)\ns_barrier")
        k("""
        v_and_b32 v13, 7, v0
        v_bfe_u32 v12, v0, 3, 1
        v_lshlrev_b32 v12, 6, v12
        v_lshl_add_u32 v12, v13, 2, v12
        """)
    k(f"s_cmp_lt_u32 s2, {NFF}\ns_cbranch_scc1 ffn_kernel_ffa\ns_cmp_lt_u32 s2, {NFF+NFB}\ns_cbranch_scc1 ffn_kernel_ffb")
    k(f"""
    s_sub_u32 s16, s2, {NFF+NFB}
    s_add_u32 s17, s16, {(NFF+NFB) % 8}
    s_and_b32 s17, s17, 7
    s_lshl_b32 s17, s17, 4
    s_lshr_b32 s16, s16, 3
    s_add_u32 s16, s16, s17
    s_mul_i32 s17, s16, 20480
    s_lshl_b32 s51, s16, 8
    s_lshl_b32 s16, s16, 4
    """)
    for i in range(5):
        k(f"v_add_u32 v{60+i}, {4096*i}, v1\nbuffer_load_dwordx4 {v4(16+4*i)}, v{60+i}, s[20:23], s17 offen")
    for i in range(5):
        k(f"""
        v_add_u32 v{66+i}, {256*i}, v0
        v_mul_u32_u24 v{66+i}, 3277, v{66+i}
        v_lshrrev_b32 v{66+i}, 18, v{66+i}
        v_lshlrev_b32 v72, 4, v{66+i}
        buffer_load_dwordx2 {v2(40+2*i)}, v72, s[24:27], s51 offen
        """)
    argmax(10)
    k("s_sub_u32 s18, s18, s16\nv_mov_b32 v73, 0x40000000\ns_waitcnt vmcnt(0)")
    for i in range(5):
        row_stats(k, 40 + 2 * i, 41 + 2 * i, None, 52, 53)
        k(f"v_cmp_eq_u32 vcc, s18, v{66+i}\nv_mul_f32 v52, v52, v53\ns_nop 0")
        k(f"v_cndmask_b32 v{60+i}, v{60+i}, v73, vcc")
        for d in range(4):
            r = 16 + 4 * i + d
            k(f"""
            v_lshlrev_b32 v54, 16, v{r}
            v_and_b32 v55, 0xffff0000, v{r}
            v_fma_f32 v56, v54, v53, -v52
            v_fma_f32 v57, v55, v53, -v52
            v_cvt_pk_bf16_f32 v56, v56, v57
            v_lshlrev_b32 v57, 16, v56
            v_and_b32 v56, 0xffff0000, v56
            v_add_f32 v54, v54, v57
            v_add_f32 v55, v55, v56
            v_cvt_pk_bf16_f32 v{r}, v54, v55
            """)
        k(f"buffer_store_dwordx4 {v4(16+4*i)}, v{60+i}, s[28:31], s17 offen")
    k("s_branch ffn_kernel_end")
    k.label("ffa")
    G, U, HX, AC = 16, 36, 56, 64
    k.srd_off(32, 12, WS_FW, NFF * 40960)
    k("s_mul_i32 s16, s2, 40960")
    for i in range(5):
        k(f"s_add_u32 s17, s16, {i*4096}\nbuffer_load_dwordx4 {v4(G+4*i)}, v1, s[32:35], s17 offen\ns_add_u32 s17, s16, {20480+i*4096}\nbuffer_load_dwordx4 {v4(U+4*i)}, v1, s[32:35], s17 offen")
    k.stamp()
    argmax(10)
    k.stamp()
    k(f"v_mov_b32 v2, 0\nbuffer_load_dwordx3 v[{SS}:{SS+2}], v2, s[24:27], s19 offen\nv_and_b32 v8, 0xfe, v0")
    for i in range(5):
        k(f"buffer_load_ushort v{HX+i}, v8, s[20:23], s53 offen offset:{256*i}")
    k("s_waitcnt vmcnt(5)")
    row_stats(k, SS, SS + 1, SS + 2, 8, 9)
    k("s_nop 0\nv_mul_f32 v11, v8, v9\ns_waitcnt vmcnt(0)")
    for i in range(5):
        k(f"v_lshlrev_b32 v{HX+i}, 16, v{HX+i}\nv_fma_f32 v{HX+i}, v{HX+i}, v9, -v11\nv_cvt_pk_bf16_f32 v{HX+i}, v{HX+i}, v{HX+i}\nv_lshlrev_b32 v{HX+i}, 16, v{HX+i}")
    k.stamp()
    for r in range(16):
        k(f"v_mov_b32 v{AC+r}, 0")
    for i in range(5):
        for (src, acc) in ((G, AC), (U, AC + 8)):
            for d in range(4):
                s_ = src + 4 * i + d
                k(f"v_lshlrev_b32 v12, 16, v{s_}\nv_and_b32 v13, 0xffff0000, v{s_}\nv_fmac_f32 v{acc+2*d}, v12, v{HX+i}\nv_fmac_f32 v{acc+2*d+1}, v13, v{HX+i}")
    k.stamp()
    gemv_reduce(AC, 16)
    k("s_cmp_lt_u32 s2, 0x7fffffff\nv_cmp_gt_u32 vcc, 64, v0\ns_cbranch_vccz ffn_kernel_end")
    for rr in range(16):
        k(f"ds_read_b32 v{16+rr}, v12 offset:{64+128*rr}\nds_read_b32 v{32+rr}, v12 offset:{96+128*rr}")
    k("s_waitcnt lgkmcnt(0)")
    for st in (8, 4, 2, 1):
        for rr in range(st):
            k(f"v_add_f32 v{16+rr}, v{16+rr}, v{16+rr+st}\nv_add_f32 v{32+rr}, v{32+rr}, v{32+rr+st}")
    k(f"""
    v_cvt_pk_bf16_f32 v16, v16, v32
    v_and_b32 v20, 0xffff0000, v16
    v_lshlrev_b32 v16, 16, v16
    v_mul_f32 v17, {f32hex(-1.4426950408889634)}, v16
    v_exp_f32 v17, v17
    s_nop 0
    v_add_f32 v17, 1.0, v17
    v_rcp_f32 v17, v17
    s_nop 0
    v_mul_f32 v16, v16, v17
    v_cvt_pk_bf16_f32 v16, v16, v16
    v_lshlrev_b32 v16, 16, v16
    v_mul_f32 v16, v16, v20
    v_cvt_pk_bf16_f32 v16, v16, v16
    v_lshlrev_b32 v16, 16, v16
    v_lshlrev_b32 v12, 2, v0
    s_lshl_b32 s16, s2, 6
    s_mov_b64 exec, 0xffff
    buffer_store_dword v16, v12, s[44:47], s16 offen sc1
    s_mov_b64 exec, -1
    s_branch ffn_kernel_end
    """)
    k.label("ffb")
    D, AV_, AC = 16, 72, 104
    k.srd_off(32, 12, WS_WD, 40 * 55296)
    k(f"s_sub_u32 s16, s2, {NFF}\ns_mul_i32 s17, s16, 55296\nv_cmp_gt_u32 vcc, 128, v0\nv_mov_b32 v2, 0x40000000\ns_nop 1\nv_cndmask_b32 v6, v2, v1, vcc")
    for i in range(14):
        k(f"buffer_load_dwordx4 {v4(D+4*i)}, v{6 if i == 13 else 1}, s[32:35], s17 offen\ns_add_u32 s17, s17, 4096")
    argmax(14)
    k(f"v_mov_b32 v2, 0\nbuffer_load_dwordx3 v[{SS}:{SS+2}], v2, s[24:27], s19 offen")
    k("v_and_b32 v3, 15, v0\nv_lshlrev_b32 v3, 1, v3\ns_lshl_b32 s17, s16, 5\ns_add_u32 s53, s53, s17\nbuffer_load_ushort v124, v3, s[20:23], s53 offen")
    k("s_waitcnt vmcnt(1)")
    row_stats(k, SS, SS + 1, SS + 2, 8, 9, 10, 125)
    k(f"""
    s_nop 0
    v_cvt_pk_bf16_f32 v10, v10, v10
    v_lshlrev_b32 v10, 16, v10
    v_mul_f32 v11, {f32hex(-1.4426950408889634)}, v10
    v_exp_f32 v11, v11
    s_nop 0
    v_add_f32 v11, 1.0, v11
    v_rcp_f32 v11, v11
    s_nop 0
    v_cvt_pk_bf16_f32 v11, v11, v11
    v_lshlrev_b32 v11, 16, v11
    s_mov_b32 s17, 0
    """)
    k.stamp()
    k("v_lshrrev_b32 v4, 1, v0\nv_lshlrev_b32 v4, 2, v4")
    k.label("poll")
    for i in range(14):
        k(f"s_mov_b32 s16, {512*i}\nbuffer_load_dword v{AV_+i}, v4, s[44:47], s16 offen sc1")
    k("s_waitcnt vmcnt(0)")
    k(f"v_and_b32 v5, v{AV_}, v{AV_+1}")
    k(f"v_max_u32 v5, v{AV_}, v{AV_+1}")
    for i in range(2, 14, 2):
        k(f"v_max3_u32 v5, v{AV_+i}, v{AV_+i+1}, v5")
    k(f"""
    v_cmp_eq_u32 vcc, -1, v5
    s_add_u32 s17, s17, 1
    s_cbranch_vccz ffn_kernel_go
    s_cmp_lt_u32 s17, 0x100000
    s_cbranch_scc0 ffn_kernel_go
    s_sleep 2
    s_branch ffn_kernel_poll
    """)
    k.label("go")
    k.stamp()
    for r in range(8):
        k(f"v_mov_b32 v{AC+r}, 0")
    for i in range(14):
        for d in range(4):
            s_ = D + 4 * i + d
            k(f"v_lshlrev_b32 v12, 16, v{s_}\nv_and_b32 v13, 0xffff0000, v{s_}\nv_fmac_f32 v{AC+2*d}, v12, v{AV_+i}\nv_fmac_f32 v{AC+2*d+1}, v13, v{AV_+i}")
    gemv_reduce(AC, 8)
    k("v_cmp_gt_u32 vcc, 64, v0\ns_cbranch_vccz ffn_kernel_end")
    for rr in range(16):
        k(f"ds_read_b32 v{16+rr}, v12 offset:{64+128*rr}")
    k("s_waitcnt lgkmcnt(0)")
    for st in (8, 4, 2, 1):
        for rr in range(st):
            k(f"v_add_f32 v{16+rr}, v{16+rr}, v{16+rr+st}")
    k("""
    v_cvt_pk_bf16_f32 v16, v16, v16
    v_lshlrev_b32 v16, 16, v16
    v_mul_f32 v16, v16, v11
    v_cvt_pk_bf16_f32 v16, v16, v16
    v_lshlrev_b32 v16, 16, v16
    v_lshlrev_b32 v124, 16, v124
    v_sub_f32 v10, v124, v8
    v_mul_f32 v10, v10, v9
    v_cvt_pk_bf16_f32 v10, v10, v10
    v_lshlrev_b32 v10, 16, v10
    v_add_f32 v10, v10, v16
    v_cvt_pk_bf16_f32 v10, v10, v10
    v_lshlrev_b32 v10, 16, v10
    v_add_f32 v10, v10, v124
    v_cvt_pk_bf16_f32 v10, v10, v10
    s_mov_b64 exec, 0xffff
    buffer_store_short v10, v3, s[28:31], s53 offen
    s_mov_b64 exec, -1
    """)
    k.finish(3)
    return k, f"grid=({NTOT},1,1) block=(256,1,1) lds=4096"

def main():
    ks = [gen_k1(), gen_k2(), gen_k3(), gen_k4()]
    out = "; generated by dev/gen7.py (hand-written generator)\n"
    for k, l in ks:
        out += f"; @launch kernel={k.name} {l}\n"
    out += '.amdgcn_target "amdgcn-amd-amdhsa--gfx950"\n.text\n'
    for k, l in ks:
        out += k.text()
    out += '.section .rodata,"a"\n'
    for k, l in ks:
        out += ".p2align 6\n" + k.desc()
    path = sys.argv[1] if len(sys.argv) > 1 else f"cdna_kernels/{NAME}.s"
    open(path, "w").write(out)
    print("wrote", path, len(out))

main()
```

```python
import sys, struct, os
STAMP = os.environ.get("STAMP", "0") == "1"
DIAG = os.environ.get("DIAG", "0") == "1"
NAME = "sequential_preLN__grouped_kv_mqa__moe_arch_mod__prompt"
WS_Q, WS_KV, WS_O, WS_H, WS_ST, WS_KM, WS_YP, WS_SEL = 0, 0x400000, 0x800000, 0xC00000, 0x1000000, 0x1100000, 0x1200000, 0x1300000
WS_FW, WS_WO, WS_WD, WS_A = 0x1400000, 0x1900000, 0x1A00000, 0x1D00000
MATB = 2048 * 1280
QSCALE = (20 ** -0.5) * 1.4426950408889634
NFF = 108

def f32hex(x):
    return "0x%08x" % struct.unpack("<I", struct.pack("<f", x))[0]

class K:
    def __init__(self, name, vgpr, sgpr=96):
        self.name, self.vgpr, self.sgpr = name, vgpr, sgpr
        self.lines = []
        self.nst = 0
    def __call__(self, s):
        for l in s.strip().split("\n"):
            if l.strip():
                self.lines.append("    " + l.strip())
    def label(self, s):
        self.lines.append(f"{self.name}_{s}:")
    def srd(self, d, b, size):
        self(f"s_mov_b32 s{d}, s{b}\ns_mov_b32 s{d+1}, s{b+1}\ns_mov_b32 s{d+2}, {size}\ns_mov_b32 s{d+3}, 0x00020000")
    def srd_off(self, d, b, off, size):
        self(f"s_add_u32 s{d}, s{b}, {off}\ns_addc_u32 s{d+1}, s{b+1}, 0\ns_mov_b32 s{d+2}, {size}\ns_mov_b32 s{d+3}, 0x00020000")
    def stamp(self, real=False):
        if not STAMP: return
        i = self.nst; self.nst += 1
        self(f"{'s_memrealtime' if real else 's_memtime'} s[{60+2*i}:{61+2*i}]")
    def diag_start(self, kid):
        if not DIAG: return
        self(f"s_load_dwordx2 s[84:85], s[0:1], 88\ns_memrealtime s[86:87]\ns_waitcnt lgkmcnt(0)\ns_add_u32 s84, s84, {512*(3-kid)}\ns_addc_u32 s85, s85, 0")
    def finish(self, kid, wsreg=12):
        self.label("end")
        self.stamp()
        if DIAG:
            self(f"""
            s_memrealtime s[88:89]
            s_waitcnt lgkmcnt(0) vmcnt(0)
            s_and_b32 s90, s2, 7
            s_cmp_eq_u32 s90, 3
            s_cbranch_scc0 {self.name}_exit
            s_mov_b64 exec, 1
            s_mov_b32 s92, s84
            s_mov_b32 s93, s85
            s_mov_b32 s94, 256
            s_mov_b32 s95, 0x00020000
            v_mov_b32 v1, 0
            v_mov_b32 v2, s88
            buffer_atomic_umax v2, v1, s[92:95], 0 offen offset:{8*kid+4} sc1
            v_not_b32 v3, s86
            buffer_atomic_umax v3, v1, s[92:95], 0 offen offset:{8*kid} sc1
            """)
        if STAMP:
            self(f"s_waitcnt lgkmcnt(0)\ns_mov_b64 exec, 1")
            self.srd_off(92, wsreg, 0x2000000 + kid * 0x100000, 0x100000)
            self("v_lshrrev_b32 v1, 6, v0\ns_lshl_b32 s90, s2, 4\nv_add_u32 v1, s90, v1\nv_lshlrev_b32 v1, 6, v1")
            for i in range(self.nst):
                self(f"v_mov_b32 v2, s{60+2*i}\nbuffer_store_dword v2, v1, s[92:95], 0 offen offset:{4*i}")
        self.label("exit")
        self("s_endpgm")
    def text(self):
        return (f".globl {self.name}\n.p2align 8\n.type {self.name},@function\n{self.name}:\n" + "\n".join(self.lines) + "\n")
    def desc(self):
        acc = (self.vgpr + 3) // 4 * 4
        return (f".amdhsa_kernel {self.name}\n  .amdhsa_next_free_vgpr {self.vgpr}\n  .amdhsa_next_free_sgpr {self.sgpr}\n"
                f"  .amdhsa_accum_offset {acc}\n  .amdhsa_group_segment_fixed_size 0\n  .amdhsa_kernarg_size 104\n"
                f"  .amdhsa_user_sgpr_count 2\n  .amdhsa_user_sgpr_kernarg_segment_ptr 1\n  .amdhsa_system_sgpr_workgroup_id_x 1\n"
                f".end_amdhsa_kernel\n")

def v4(b): return f"v[{b}:{b+3}]"
def v2(b): return f"v[{b}:{b+1}]"
def v16(b): return f"v[{b}:{b+15}]"

def red_g(k, regs, tmp, op="add"):
    ins = "v_add_f32" if op == "add" else "v_max_f32"
    for i, r in enumerate(regs):
        k(f"ds_swizzle_b32 v{tmp+i}, v{r} offset:0x401F")
    k("s_waitcnt lgkmcnt(0)")
    for i, r in enumerate(regs):
        k(f"{ins} v{r}, v{r}, v{tmp+i}\nv_mov_b32 v{tmp+i}, v{r}")
    k("s_nop 1")
    for i, r in enumerate(regs):
        k(f"v_permlane32_swap_b32 v{tmp+i}, v{r}")
    k("s_nop 1")
    for i, r in enumerate(regs):
        k(f"{ins} v{r}, v{r}, v{tmp+i}")

def ln_fin(k, m, r):
    k(f"""
    v_mul_f32 v{m}, {f32hex(1/640)}, v{m}
    v_mul_f32 v{r}, {f32hex(1/640)}, v{r}
    v_fma_f32 v{r}, -v{m}, v{m}, v{r}
    v_max_f32 v{r}, 0, v{r}
    v_add_f32 v{r}, {f32hex(1e-5)}, v{r}
    v_rsq_f32 v{r}, v{r}
    s_nop 0
    v_mul_f32 v{m}, v{m}, v{r}
    """)

def gen_k1():
    k = K("kv_kernel", 96)
    WK_OFF, WV_OFF = 20480, 20480 + 28672
    XF, WF, ACC, CS, ONES, ST, TMP = 16, 24, 32, 36, 40, 44, 52
    k("""
    s_cmp_ge_u32 s2, 128
    s_cbranch_scc1 kv_kernel_exit
    s_load_dwordx2 s[4:5], s[0:1], 0
    s_load_dwordx4 s[8:11], s[0:1], 16
    s_load_dwordx2 s[12:13], s[0:1], 96
    s_load_dwordx2 s[14:15], s[0:1], 48
    v_and_b32 v1, 63, v0
    v_lshrrev_b32 v2, 6, v0
    s_and_b32 s17, s2, 7
    s_lshl_b32 s17, s17, 4
    s_lshr_b32 s44, s2, 3
    s_add_u32 s17, s17, s44
    v_readfirstlane_b32 s18, v2
    v_and_b32 v3, 15, v1
    v_lshrrev_b32 v4, 4, v1
    s_waitcnt lgkmcnt(0)
    """)
    k.diag_start(0)
    k.stamp()
    k.srd(20, 4, MATB)
    k.srd(24, 8, 25600)
    k.srd(28, 10, 25600)
    k("s_mul_i32 s45, s17, 20480\ns_mul_i32 s46, s18, 320\ns_mul_i32 s48, s18, 5120")
    for j in range(5):
        k(f"""
        v_add_u32 v6, s46, v1
        v_add_u32 v6, {64*j}, v6
        v_mul_u32_u24 v7, 3277, v6
        v_lshrrev_b32 v7, 18, v7
        v_mul_u32_u24 v8, 80, v7
        v_sub_u32 v8, v6, v8
        v_xor_b32 v8, v8, v7
        v_mul_u32_u24 v7, 1280, v7
        v_lshl_add_u32 v7, v8, 4, v7
        s_mov_b32 m0, s48
        s_add_u32 s48, s48, 1024
        buffer_load_dwordx4 v7, s[20:23], s45 offen lds
        """)
    k(f"v_lshlrev_b32 v7, 4, v1\ns_lshl_b32 s47, s18, 10\ns_add_u32 s48, s47, {WK_OFF}")
    for j in range(7):
        k(f"s_mov_b32 m0, s48\ns_add_u32 s49, s48, 28672\nbuffer_load_dwordx4 v7, s[24:27], s47 offen lds\ns_mov_b32 m0, s49\ns_add_u32 s48, s48, 4096\nbuffer_load_dwordx4 v7, s[28:31], s47 offen lds\ns_add_u32 s47, s47, 4096")
    k(f"""
    v_mul_u32_u24 v9, 1280, v3
    v_and_b32 v6, 3, v3
    v_xor_b32 v6, v6, v4
    v_lshl_add_u32 v9, v6, 4, v9
    v_and_b32 v10, 12, v3
    v_lshrrev_b32 v12, 2, v1
    v_and_b32 v12, 3, v12
    v_lshl_add_u32 v12, v4, 3, v12
    v_and_b32 v13, 3, v1
    v_mul_u32_u24 v11, 40, v12
    v_lshl_add_u32 v11, v13, 3, v11
    s_lshr_b32 s46, s18, 1
    s_mul_i32 s46, s46, 28672
    s_and_b32 s47, s18, 1
    s_lshl_b32 s47, s47, 5
    s_add_u32 s46, s46, s47
    s_add_u32 s46, s46, {WK_OFF}
    v_add_u32 v11, s46, v11
    """)
    for q in range(4):
        k(f"v_xor_b32 v6, {4*q}, v10\nv_lshl_add_u32 v{TMP+8+q}, v6, 4, v9")
    for i in range(4):
        k(f"v_mov_b32 v{ONES+i}, 0x3f803f80\nv_mov_b32 v{ST+i}, 0")
    k.srd_off(36, 12, WS_KV, 163840)
    k.stamp()
    k("s_waitcnt vmcnt(0)\ns_barrier")
    k.stamp()
    def reads(ks, b):
        k(f"ds_read_b128 {v4(XF+4*b)}, v{TMP+8+(ks&3)} offset:{(ks>>2)*256}")
        for h in range(2):
            k(f"ds_read_b64_tr_b16 {v2(WF+4*b+2*h)}, v11 offset:{ks*1280+h*160}")
    reads(0, 0)
    for ks in range(20):
        if ks < 19:
            reads(ks + 1, (ks + 1) & 1)
            k("s_waitcnt lgkmcnt(3)")
        else:
            k("s_waitcnt lgkmcnt(0)")
        b = ks & 1
        k(f"v_mfma_f32_16x16x32_bf16 {v4(ACC)}, {v4(WF+4*b)}, {v4(XF+4*b)}, {'0' if ks == 0 else v4(ACC)}")
        k(f"v_mfma_f32_16x16x32_bf16 {v4(CS)}, {v4(WF+4*b)}, {v4(ONES)}, {'0' if ks == 0 else v4(CS)}")
        for d in range(4):
            k(f"v_dot2_f32_bf16 v{ST+(d&1)}, v{XF+4*b+d}, v{ONES}, v{ST+(d&1)}\nv_dot2_f32_bf16 v{ST+2+(d&1)}, v{XF+4*b+d}, v{XF+4*b+d}, v{ST+2+(d&1)}")
    k.stamp()
    k(f"s_nop 7\nv_add_f32 v{ST}, v{ST}, v{ST+1}\nv_add_f32 v{ST+1}, v{ST+2}, v{ST+3}")
    red_g(k, [ST, ST + 1], TMP)
    ln_fin(k, ST, ST + 1)
    k.srd_off(40, 12, WS_Q, 16384)
    k(f"""
    s_cmp_eq_u32 s18, 3
    s_cbranch_scc0 kv_kernel_nost
    s_lshl_b32 s46, s17, 7
    v_lshlrev_b32 v14, 3, v3
    s_mov_b64 exec, 0xffff
    buffer_store_dwordx2 {v2(ST)}, v14, s[40:43], s46 offen
    s_mov_b64 exec, -1
    """)
    k.label("nost")
    for r in range(4):
        k(f"v_mul_f32 v{ACC+r}, v{ACC+r}, v{ST+1}\nv_fma_f32 v{ACC+r}, -v{CS+r}, v{ST}, v{ACC+r}")
    k(f"v_cvt_pk_bf16_f32 v{ACC}, v{ACC}, v{ACC+1}\nv_cvt_pk_bf16_f32 v{ACC+1}, v{ACC+2}, v{ACC+3}")
    k("""
    s_lshr_b32 s44, s17, 1
    s_mul_i32 s44, s44, 2560
    s_and_b32 s45, s17, 1
    s_cmp_ge_u32 s18, 2
    s_cbranch_scc1 kv_kernel_vepi
    v_mov_b32 v15, 0
    s_cmp_eq_u32 s18, 0
    s_cbranch_scc0 kv_kernel_k1
    """)
    k(f"""
    s_lshl_b32 s46, s45, 8
    s_add_u32 s44, s44, s46
    v_lshrrev_b32 v14, 1, v4
    v_lshlrev_b32 v14, 9, v14
    v_lshl_add_u32 v14, v3, 4, v14
    v_and_b32 v13, 1, v4
    v_lshl_add_u32 v14, v13, 3, v14
    buffer_store_dwordx2 {v2(ACC)}, v14, s[36:39], s44 offen
    v_dot2_f32_bf16 v15, v{ACC}, v{ACC}, v15
    v_dot2_f32_bf16 v15, v{ACC+1}, v{ACC+1}, v15
    s_nop 3
    """)
    red_g(k, [15], TMP)
    k("s_branch kv_kernel_kmax")
    k.label("k1")
    k(f"""
    s_lshl_b32 s46, s45, 7
    s_add_u32 s44, s44, s46
    v_lshlrev_b32 v14, 3, v3
    s_mov_b64 exec, 0xffff
    buffer_store_dwordx2 {v2(ACC)}, v14, s[36:39], s44 offen offset:1024
    v_dot2_f32_bf16 v15, v{ACC}, v{ACC}, v15
    v_dot2_f32_bf16 v15, v{ACC+1}, v{ACC+1}, v15
    """)
    k.srd_off(40, 12, WS_A, 1728 * 4)
    k("""
    s_mov_b64 exec, -1
    v_mov_b32 v20, -1
    v_mov_b32 v21, -1
    v_mov_b32 v22, -1
    v_mov_b32 v23, -1
    s_lshl_b32 s46, s2, 10
    v_lshlrev_b32 v14, 4, v1
    buffer_store_dwordx4 v[20:23], v14, s[40:43], s46 offen
    s_mov_b64 exec, 0xffff
    s_nop 1
    """)
    k.srd_off(40, 12, WS_ST, 32768)
    k("""
    v_mov_b32 v20, 0
    v_mov_b32 v21, 0
    v_mov_b32 v22, 0
    v_mov_b32 v23, 0
    s_lshl_b32 s46, s17, 8
    v_lshlrev_b32 v14, 4, v3
    buffer_store_dwordx4 v[20:23], v14, s[40:43], s46 offen
    s_mov_b64 exec, -1
    """)
    k.label("kmax")
    for off in ("0x041F", "0x081F", "0x101F", "0x201F"):
        k(f"ds_swizzle_b32 v{TMP}, v15 offset:{off}\ns_waitcnt lgkmcnt(0)\nv_max_f32 v15, v15, v{TMP}")
    k.srd_off(40, 12, WS_KM, 1024)
    k("""
    s_lshl_b32 s44, s18, 7
    s_add_u32 s44, s44, s17
    s_lshl_b32 s44, s44, 2
    v_mov_b32 v14, 0
    s_mov_b64 exec, 1
    buffer_store_dword v15, v14, s[40:43], s44 offen
    s_mov_b64 exec, -1
    s_branch kv_kernel_end
    """)
    k.label("vepi")
    k("""
    s_mul_i32 s46, s45, 640
    s_add_u32 s44, s44, s46
    v_bfe_u32 v14, v3, 2, 1
    v_mul_u32_u24 v12, 320, v14
    v_bfe_u32 v14, v3, 3, 1
    v_lshl_add_u32 v12, v14, 3, v12
    v_and_b32 v14, 3, v3
    v_lshl_add_u32 v12, v14, 1, v12
    v_lshl_add_u32 v14, v4, 6, v12
    s_cmp_eq_u32 s18, 2
    s_cbranch_scc1 kv_kernel_v0
    v_add_u32 v14, 256, v12
    s_mov_b64 exec, 0xffff
    """)
    k.label("v0")
    k(f"""
    buffer_store_short v{ACC}, v14, s[36:39], s44 offen offset:1280
    buffer_store_short_d16_hi v{ACC}, v14, s[36:39], s44 offen offset:1296
    buffer_store_short v{ACC+1}, v14, s[36:39], s44 offen offset:1312
    buffer_store_short_d16_hi v{ACC+1}, v14, s[36:39], s44 offen offset:1328
    s_mov_b64 exec, -1
    s_cmp_eq_u32 s18, 3
    s_cbranch_scc0 kv_kernel_end
    s_cmp_eq_u32 s2, 0
    s_cbranch_scc0 kv_kernel_end
    """)
    k.srd(40, 14, 1280)
    k(f"""
    v_mul_u32_u24 v8, 20, v1
    buffer_load_dwordx4 v[20:23], v8, s[40:43], 0 offen
    buffer_load_dword v24, v8, s[40:43], 0 offen offset:16
    v_mov_b32 v17, 0
    s_waitcnt vmcnt(0)
    v_dot2_f32_bf16 v17, v20, v{ONES}, v17
    v_dot2_f32_bf16 v17, v21, v{ONES}, v17
    v_dot2_f32_bf16 v17, v22, v{ONES}, v17
    v_dot2_f32_bf16 v17, v23, v{ONES}, v17
    v_dot2_f32_bf16 v17, v24, v{ONES}, v17
    s_nop 3
    """)
    for off in ("0x041F", "0x081F", "0x101F", "0x201F"):
        k(f"ds_swizzle_b32 v18, v17 offset:{off}\ns_waitcnt lgkmcnt(0)\nv_add_f32 v17, v17, v18")
    red_g(k, [17], 18)
    k.srd_off(40, 12, WS_SEL, 64)
    k("""
    v_mov_b32 v14, 0
    s_mov_b64 exec, 1
    buffer_store_dword v17, v14, s[40:43], 0 offen offset:32
    s_mov_b64 exec, -1
    """)
    k.finish(0)
    return k, "grid=(128,1,1) block=(256,1,1) lds=%d" % (20480 + 2 * 28672)

SLOT = 36864
W_OFF = 16384
XF, SRC, VA_RD, VW_RD, ST, ONES, ACC, CS, WF, TMP = 16, 16, 48, 52, 56, 76, 80, 96, 100, 108

def gemm_ids(k):
    k("""
    v_and_b32 v1, 63, v0
    v_lshrrev_b32 v2, 6, v0
    s_lshr_b32 s16, s2, 5
    s_and_b32 s17, s2, 7
    s_lshl_b32 s17, s17, 2
    s_bfe_u32 s44, s2, 0x20003
    s_add_u32 s17, s17, s44
    v_readfirstlane_b32 s18, v2
    v_and_b32 v3, 15, v1
    v_lshrrev_b32 v4, 4, v1
    """)

def loader_list(lw):
    return [("A", e) for e in range(16)][12*lw:12*lw+12] + [("W", e) for e in range(20)][max(0, 12*lw-16):max(0, 12*lw+12-16)]

def gemm_loader(k, lw, w_linear, gb, wchunk, mid=None, nmid=0):
    lst = loader_list(lw)
    k("s_lshl_b32 s45, s17, 6")
    for i, (kind, e) in enumerate(lst):
        if kind == "A":
            k(f"""
            v_add_u32 v6, {4*e}, v4
            v_and_b32 v7, 15, v6
            v_xor_b32 v7, v7, v3
            v_add_u32 v6, s45, v6
            v_mul_u32_u24 v6, 1280, v6
            v_lshl_add_u32 v{SRC+i}, v7, 4, v6
            """)
        elif w_linear:
            k(f"v_add_u32 v6, {64*e}, v1\nv_lshlrev_b32 v{SRC+i}, 4, v6")
        else:
            k(f"""
            v_add_u32 v6, {64*e}, v1
            v_mul_u32_u24 v7, 6554, v6
            v_lshrrev_b32 v7, 16, v7
            v_mul_u32_u24 v8, 10, v7
            v_sub_u32 v8, v6, v8
            v_mul_u32_u24 v7, 1280, v7
            v_lshl_add_u32 v{SRC+i}, v8, 4, v7
            """)
    def issue(c):
        slot = gb + (c % 3) * SLOT
        k(f"s_mov_b32 s46, {c*256}\ns_mov_b32 s47, {c*wchunk}")
        for i, (kind, e) in enumerate(lst):
            if kind == "A":
                k(f"s_mov_b32 m0, {slot + e*1024}\ns_nop 0\nbuffer_load_dwordx4 v{SRC+i}, s[20:23], s46 offen lds")
            else:
                k(f"s_mov_b32 m0, {slot + W_OFF + e*1024}\ns_nop 0\nbuffer_load_dwordx4 v{SRC+i}, s[24:27], s47 offen lds")
    for c in range(3):
        issue(c)
    if mid:
        mid()
    k.stamp()
    waits = [24 + nmid, 12 + nmid, 12 + nmid, 12, 0]
    for c in range(5):
        k(f"s_waitcnt vmcnt({waits[c]})\ns_barrier")
        k.stamp()
        if 1 <= c <= 2:
            issue(c + 2)
    k.stamp()

def gemm_mm(k, colsum, gb):
    k(f"""
    v_lshlrev_b32 v6, 8, v3
    v_and_b32 v7, 3, v3
    v_xor_b32 v7, v7, v4
    v_lshl_add_u32 v6, v7, 4, v6
    v_add_u32 v6, {gb}, v6
    v_and_b32 v7, 12, v3
    """)
    for ks in range(4):
        k(f"v_xor_b32 v8, {4*ks}, v7\nv_lshl_add_u32 v{VA_RD+ks}, v8, 4, v6")
    k(f"""
    v_lshrrev_b32 v12, 2, v1
    v_and_b32 v12, 3, v12
    v_lshl_add_u32 v12, v4, 3, v12
    v_and_b32 v13, 3, v1
    s_lshl_b32 s48, s18, 5
    s_add_u32 s47, s48, {gb + W_OFF}
    v_mul_u32_u24 v{VW_RD}, 160, v12
    v_lshl_add_u32 v{VW_RD}, v13, 3, v{VW_RD}
    v_add_u32 v{VW_RD}, s47, v{VW_RD}
    """)
    if colsum:
        for i in range(4):
            k(f"v_mov_b32 v{ONES+i}, 0x3f803f80")
    k.stamp()
    def reads(ks, buf):
        for h in range(2):
            k(f"ds_read_b64_tr_b16 {v2(WF+4*buf+2*h)}, v{VW_RD} offset:{ks*5120 + h*640}")
        for rf in range(4):
            k(f"ds_read_b128 {v4(XF+16*buf+4*rf)}, v{VA_RD+ks} offset:{rf*4096}")
    for c in range(5):
        k("s_barrier")
        k.stamp()
        reads(0, 0)
        for ks in range(4):
            if ks < 3:
                reads(ks + 1, (ks + 1) & 1)
                k("s_waitcnt lgkmcnt(6)")
            else:
                k("s_waitcnt lgkmcnt(0)")
                if c < 4:
                    d = SLOT if (c % 3) != 2 else -2 * SLOT
                    for r in [VA_RD + i for i in range(4)] + [VW_RD]:
                        k(f"v_add_u32 v{r}, {d & 0xffffffff}, v{r}")
            first = (c == 0 and ks == 0)
            b = ks & 1
            for rf in range(4):
                a = ACC + 4 * rf
                k(f"v_mfma_f32_16x16x32_bf16 {v4(a)}, {v4(WF+4*b)}, {v4(XF+16*b+4*rf)}, {'0' if first else v4(a)}")
            if colsum:
                k(f"v_mfma_f32_16x16x32_bf16 {v4(CS)}, {v4(WF+4*b)}, {v4(ONES)}, {'0' if first else v4(CS)}")
    k.stamp()

def gen_k2():
    k = K("attn_kernel", 168)
    GB = 53248
    QB, EXS = 163840 - 10240, 163840 - 10240 - 512
    QF1, QF2, SA, SB, O, P = 8, 12, 16, 32, 48, 64
    KF = [72, 80]; VF = [88, 96]
    AK, AK2, AV = 104, 105, 106
    T = 108
    KMR = 126
    CP, CPD = 128, 156
    THRESH = 50.0
    k("""
    s_cmp_ge_u32 s2, 256
    s_cbranch_scc1 attn_kernel_exit
    s_load_dwordx2 s[54:55], s[0:1], 72
    s_load_dwordx4 s[4:7], s[0:1], 0
    s_load_dwordx2 s[12:13], s[0:1], 96
    s_load_dwordx2 s[14:15], s[0:1], 32
    s_load_dwordx4 s[8:11], s[0:1], 56
    """)
    gemm_ids(k)
    k("s_waitcnt lgkmcnt(0)")
    k.diag_start(1)
    k.stamp()
    k.srd(20, 4, MATB)
    k("""
    s_mul_i32 s44, s16, 160
    s_add_u32 s24, s6, s44
    s_addc_u32 s25, s7, 0
    s_sub_u32 s26, 819200, s44
    s_mov_b32 s27, 0x00020000
    """)
    k.srd_off(28, 12, WS_KM, 1024)
    k.srd_off(56, 12, WS_KV, 163840)
    k(f"""
    v_lshlrev_b32 v7, 2, v1
    buffer_load_dword v{KMR}, v7, s[28:31], 0 offen
    buffer_load_dword v{KMR+1}, v7, s[28:31], 0 offen offset:256
    buffer_load_dword v{CP}, v7, s[28:31], 0 offen offset:512
    buffer_load_dword v{CP+1}, v7, s[28:31], 0 offen offset:768
    """)
    k(f"v_lshlrev_b32 v{CPD+4}, 4, v1\ns_lshl_b32 s52, s18, 10\ns_add_u32 s52, s52, 49152")
    def dma():
        k(f"s_mov_b32 m0, s52\ns_nop 0\nbuffer_load_dwordx4 v{CPD+4}, s[56:59], s52 offen lds\ns_add_u32 s52, s52, 8192")
    n0 = k.nst
    k("s_cmp_lt_u32 s18, 5\ns_cbranch_scc1 attn_kernel_mm")
    for lw in range(3):
        if lw < 2:
            k(f"s_cmp_eq_u32 s18, {5+lw}\ns_cbranch_scc0 attn_kernel_ld{lw+1}")
        def mid():
            for i in range(16):
                o = (lw * 16 + i) * 1024
                k(f"s_mov_b32 m0, {o}\ns_mov_b32 s46, {o}\nbuffer_load_dwordx4 v{CPD+4}, s[56:59], s46 offen lds")
        k.nst = n0
        gemm_loader(k, lw, False, GB, 128 * 1280, mid, 16)
        k("s_branch attn_kernel_qrd")
        if lw < 2:
            k.label(f"ld{lw+1}")
    k.label("mm")
    k.nst = n0
    k.srd_off(36, 12, WS_Q, 16384)
    k("s_lshl_b32 s46, s17, 9\nv_lshlrev_b32 v9, 3, v3")
    for rf in range(4):
        k(f"buffer_load_dwordx2 {v2(ST+2*rf)}, v9, s[36:39], s46 offen offset:{rf*128}")
    gemm_mm(k, True, GB)
    k(f"""
    v_mul_u32_u24 v10, 160, v3
    v_lshl_add_u32 v10, v4, 3, v10
    s_lshl_b32 s46, s18, 5
    s_add_u32 s46, s46, {QB}
    v_add_u32 v10, s46, v10
    s_waitcnt vmcnt(0)
    s_nop 3
    """)
    for rf in range(4):
        a = ACC + 4 * rf
        k(f"v_mul_f32 v14, {f32hex(QSCALE)}, v{ST+2*rf+1}\nv_mul_f32 v15, {f32hex(QSCALE)}, v{ST+2*rf}")
        for r in range(4):
            k(f"v_mul_f32 v{a+r}, v{a+r}, v14\nv_fma_f32 v{a+r}, -v{CS+r}, v15, v{a+r}")
        k(f"v_cvt_pk_bf16_f32 v{a}, v{a}, v{a+1}\nv_cvt_pk_bf16_f32 v{a+1}, v{a+2}, v{a+3}")
        k(f"ds_write_b64 v10, {v2(a)} offset:{rf*2560}")
    k("s_waitcnt lgkmcnt(0)")
    k.label("qrd")
    k("s_barrier")
    k.stamp()
    k(f"""
    v_and_b32 v3, 31, v1
    v_lshrrev_b32 v4, 5, v1
    v_lshrrev_b32 v6, 2, v3
    v_and_b32 v7, 3, v3
    v_mul_u32_u24 v{T+8}, 160, v6
    v_mul_u32_u24 v7, 40, v7
    v_add_u32 v{T+8}, v{T+8}, v7
    s_mul_i32 s46, s18, 1280
    s_add_u32 s46, s46, {QB}
    v_add_u32 v{T+8}, s46, v{T+8}
    v_lshl_add_u32 v{T+9}, v4, 4, v{T+8}
    ds_read_b64 {v2(QF1)}, v{T+9}
    ds_read_b64 {v2(QF1+2)}, v{T+9} offset:8
    ds_read_b64 {v2(QF2)}, v{T+8} offset:32
    v_mul_u32_u24 v5, 1280, v6
    v_add_u32 v5, v5, v7
    s_lshl_b32 s19, s17, 6
    s_lshl_b32 s46, s18, 3
    s_add_u32 s19, s19, s46
    s_mul_i32 s19, s19, 1280
    s_mul_i32 s46, s16, 160
    s_add_u32 s19, s19, s46
    v_lshlrev_b32 v{AK}, 4, v1
    v_lshlrev_b32 v{AK2}, 3, v3
    v_mul_u32_u24 v{AV}, 320, v4
    v_lshl_add_u32 v{AV}, v3, 4, v{AV}
    s_mov_b32 s40, 0x000fffff
    s_mov_b32 s41, 0x000fffff
    v_max_f32 v{T}, v{KMR}, v{KMR+1}
    v_max_f32 v{T+15}, v{CP}, v{CP+1}
    """)
    k.srd_off(32, 12, WS_O, MATB)
    for b in range(2):
        k(f"v_mov_b32 v{KF[b]+6}, 0x3f803f80\nv_mov_b32 v{KF[b]+7}, 0x00003f80")
    k(f"v_cmp_eq_u32 vcc, 20, v3\nv_mov_b32 v{T+2}, 0x3f803f80\ns_nop 1\nv_cndmask_b32 v{T+2}, 0, v{T+2}, vcc")
    for b in range(2):
        for r in range(8):
            k(f"v_mov_b32 v{VF[b]+r}, v{T+2}")
    for r in range(16):
        k(f"v_mov_b32 v{O+r}, 0")
    for r in range(4, 8):
        k(f"v_mov_b32 v{P+r}, 0")
    k(f"""
    s_lshl_b32 s45, s2, 3
    s_add_u32 s45, s45, s18
    s_lshl_b32 s45, s45, 6
    v_add_u32 v{T+8}, s45, v1
    s_mov_b32 s46, 0x12F684C
    s_mov_b32 s47, 0x3333334
    s_mov_b32 s48, 0x1999999A
    v_mov_b32 v{T+9}, 0x7fffffff
    """)
    for rnd in range(2):
        k(f"""
        v_add_u32 v{T+10}, {131072*rnd}, v{T+8}
        v_mul_hi_u32 v{T+11}, v{T+10}, s46
        v_mul_u32_u24 v{T+12}, 216, v{T+11}
        v_sub_u32 v{T+12}, v{T+10}, v{T+12}
        v_lshrrev_b32 v{T+13}, 1, v{T+12}
        v_mul_u32_u24 v{T+13}, 40960, v{T+13}
        v_lshl_add_u32 v{T+13}, v{T+11}, 5, v{T+13}
        v_and_b32 v{T+12}, 1, v{T+12}
        v_lshl_add_u32 v{T+13}, v{T+12}, 4, v{T+13}
        v_cmp_gt_u32 vcc, 138240, v{T+10}
        s_nop 1
        v_cndmask_b32 v{CPD+rnd}, v{T+9}, v{T+13}, vcc
        v_mul_hi_u32 v{T+11}, v{T+10}, s47
        v_mul_u32_u24 v{T+12}, 80, v{T+11}
        v_sub_u32 v{T+12}, v{T+10}, v{T+12}
        v_lshrrev_b32 v{T+13}, 1, v{T+12}
        v_mul_u32_u24 v{T+13}, 55296, v{T+13}
        v_lshl_add_u32 v{T+13}, v{T+11}, 5, v{T+13}
        v_and_b32 v{T+12}, 1, v{T+12}
        v_lshl_add_u32 v{T+13}, v{T+12}, 4, v{T+13}
        v_cndmask_b32 v{CPD+5+rnd}, v{T+9}, v{T+13}, vcc
        """)
    k(f"""
    v_mul_hi_u32 v{T+11}, v{T+8}, s47
    v_mul_u32_u24 v{T+12}, 80, v{T+11}
    v_sub_u32 v{T+12}, v{T+8}, v{T+12}
    v_mul_hi_u32 v{T+13}, v{T+12}, s48
    v_mul_u32_u24 v{T+14}, 10, v{T+13}
    v_sub_u32 v{T+14}, v{T+12}, v{T+14}
    v_mul_u32_u24 v{T+13}, 102400, v{T+13}
    v_mul_u32_u24 v{T+11}, 160, v{T+11}
    v_add_u32 v{T+13}, v{T+13}, v{T+11}
    v_lshl_add_u32 v{T+13}, v{T+14}, 4, v{T+13}
    v_cmp_gt_u32 vcc, 51200, v{T+8}
    s_nop 1
    v_cndmask_b32 v{CPD+2}, v{T+9}, v{T+13}, vcc
    v_lshlrev_b32 v{CPD+3}, 4, v{T+8}
    s_waitcnt lgkmcnt(0)
    v_cmp_eq_u32 vcc, 0, v4
    s_nop 1
    v_cndmask_b32 v{QF2}, 0, v{QF2}, vcc
    v_cndmask_b32 v{QF2+1}, 0, v{QF2+1}, vcc
    v_mov_b32 v{QF2+2}, 0
    v_mov_b32 v{QF2+3}, 0
    v_mov_b32 v{T+3}, 0
    """)
    if os.environ.get("DBGQ"):
        k.srd_off(36, 12, 0x3000000, MATB)
        k(f"v_lshl_add_u32 v6, v4, 4, v5\nbuffer_store_dwordx4 {v4(QF1)}, v6, s[36:39], s19 offen\ns_mov_b32 exec_hi, 0\nbuffer_store_dwordx2 {v2(QF2)}, v5, s[36:39], s19 offen offset:32\ns_mov_b32 exec_hi, -1\ns_waitcnt vmcnt(0)")
    for r in range(4):
        k(f"v_dot2_f32_bf16 v{T+3}, v{QF1+r}, v{QF1+r}, v{T+3}")
    for r in range(2):
        k(f"v_dot2_f32_bf16 v{T+3}, v{QF2+r}, v{QF2+r}, v{T+3}")
    for off in ("0x041F", "0x081F", "0x101F", "0x201F", "0x401F"):
        k(f"ds_swizzle_b32 v{T+1}, v{T} offset:{off}\nds_swizzle_b32 v{T+16}, v{T+15} offset:{off}\ns_waitcnt lgkmcnt(0)\nv_max_f32 v{T}, v{T}, v{T+1}\nv_max_f32 v{T+15}, v{T+15}, v{T+16}")
    k(f"""
    v_mov_b32 v{T+1}, v{T+15}
    v_mov_b32 v{T+2}, v{T+15}
    s_nop 1
    v_permlane32_swap_b32 v{T+1}, v{T+2}
    s_nop 1
    v_max_f32 v{T+15}, v{T+1}, v{T+2}
    v_mov_b32 v{T+1}, v{T}
    v_mov_b32 v{T+2}, v{T}
    v_mov_b32 v{T+4}, v{T+3}
    v_mov_b32 v{T+5}, v{T+3}
    s_nop 1
    v_permlane32_swap_b32 v{T+1}, v{T+2}
    v_permlane32_swap_b32 v{T+4}, v{T+5}
    s_nop 1
    v_max_f32 v{T}, v{T+1}, v{T+2}
    v_add_f32 v{T}, v{T}, v{T+15}
    v_add_f32 v{T+3}, v{T+4}, v{T+5}
    v_mul_f32 v{T+3}, v{T+3}, v{T}
    v_sqrt_f32 v{T+3}, v{T+3}
    s_nop 0
    v_mul_f32 v{T+3}, {f32hex(1.01)}, v{T+3}
    v_mov_b32 v{T+6}, {f32hex(THRESH)}
    v_cmp_nle_f32 vcc, v{T+3}, v{T+6}
    s_barrier
    s_cbranch_vccnz attn_kernel_slow
    """)
    def set_m():
        k(f"""
        v_xor_b32 v{T+3}, 0x80000000, v{T+3}
        v_and_b32 v{T+4}, 0xffff0000, v{T+3}
        v_sub_f32 v{T+5}, v{T+3}, v{T+4}
        v_and_b32 v{T+6}, 0xffff0000, v{T+5}
        v_sub_f32 v{T+5}, v{T+5}, v{T+6}
        v_lshrrev_b32 v{T+4}, 16, v{T+4}
        v_or_b32 v{T+4}, v{T+4}, v{T+6}
        v_lshrrev_b32 v{T+5}, 16, v{T+5}
        v_cmp_eq_u32 vcc, 0, v4
        s_nop 1
        v_cndmask_b32 v{QF2+2}, 0, v{T+4}, vcc
        v_cndmask_b32 v{QF2+3}, 0, v{T+5}, vcc
        """)
    def kreads(b, blk):
        k(f"ds_read_b128 {v4(KF[b])}, v{AK} offset:{blk*2560}\nds_read_b64 {v2(KF[b]+4)}, v{AK2} offset:{blk*2560+1024}")
    def vreads(b, blk):
        k(f"s_mov_b64 exec, s[40:41]\nds_read_b128 {v4(VF[b])}, v{AV} offset:{blk*2560+1280}\nds_read_b128 {v4(VF[b]+4)}, v{AV} offset:{blk*2560+1920}\ns_mov_b64 exec, -1")
    def pipe_start():
        kreads(0, 0); kreads(1, 1); vreads(0, 0)
        k("s_waitcnt lgkmcnt(4)")
        k(f"v_mfma_f32_32x32x16_bf16 {v16(SA)}, {v4(KF[0])}, {v4(QF1)}, 0")
        k(f"v_mfma_f32_32x32x16_bf16 {v16(SA)}, {v4(KF[0]+4)}, {v4(QF2)}, {v16(SA)}")
        k("s_nop 7\ns_nop 3")
    def E(Sc, a, b):
        for r in range(a, b):
            k(f"v_exp_f32 v{Sc+r}, v{Sc+r}")
    def C(Sc, a, b):
        for p in range(a, b):
            k(f"v_cvt_pk_bf16_f32 v{P+p}, v{Sc+2*p}, v{Sc+2*p+1}")
    def iteration(j, ndma):
        par = j & 1
        Sc, Sn = (SA, SB) if par == 0 else (SB, SA)
        k("s_waitcnt lgkmcnt(0)")
        E(Sc, 0, 2)
        k(f"v_mfma_f32_32x32x16_bf16 {v16(O)}, {v4(VF[1-par]+4)}, {v4(P+4)}, {v16(O)}")
        kreads(par, j + 2)
        vreads(1 - par, j + 1)
        E(Sc, 2, 5)
        k(f"v_mfma_f32_32x32x16_bf16 {v16(Sn)}, {v4(KF[1-par])}, {v4(QF1)}, 0")
        E(Sc, 5, 8); C(Sc, 0, 4); E(Sc, 8, 9)
        k(f"v_mfma_f32_32x32x16_bf16 {v16(Sn)}, {v4(KF[1-par]+4)}, {v4(QF2)}, {v16(Sn)}")
        if ndma >= 1: dma()
        E(Sc, 9, 12)
        k(f"v_mfma_f32_32x32x16_bf16 {v16(O)}, {v4(VF[par])}, {v4(P)}, {v16(O)}")
        if ndma >= 2: dma()
        E(Sc, 12, 16); C(Sc, 4, 8)
    def group(with_dma):
        for j in range(8):
            iteration(j, (2 if j < 7 else 0) if with_dma else 0)
        k(f"v_add_u32 v{AK}, 20480, v{AK}\nv_add_u32 v{AK2}, 20480, v{AK2}\nv_add_u32 v{AV}, 20480, v{AV}")
    def copy_loads():
        k.srd(36, 8, 640 * 3456)
        k(f"buffer_load_dwordx4 {v4(CP)}, v{CPD+3}, s[36:39], 0 offen\ns_mov_b32 s45, {131072*16}\nbuffer_load_dwordx4 {v4(CP+4)}, v{CPD+3}, s[36:39], s45 offen")
        k.srd(36, 10, 640 * 3456)
        k(f"buffer_load_dwordx4 {v4(CP+8)}, v{CPD+3}, s[36:39], 0 offen\nbuffer_load_dwordx4 {v4(CP+12)}, v{CPD+3}, s[36:39], s45 offen")
        k.srd(36, 14, 819200)
        k(f"buffer_load_dwordx4 {v4(CP+16)}, v{CPD+3}, s[36:39], 0 offen")
        k.srd(36, 54, 1728 * 1280)
        k(f"buffer_load_dwordx4 {v4(CP+20)}, v{CPD+3}, s[36:39], 0 offen\nbuffer_load_dwordx4 {v4(CP+24)}, v{CPD+3}, s[36:39], s45 offen")
    set_m()
    k.stamp()
    pipe_start()
    group(True)
    k.stamp()
    k("s_waitcnt vmcnt(0)\ns_barrier")
    k.stamp()
    copy_loads()
    k("s_mov_b32 s42, 7\ns_branch attn_kernel_loop")
    k.label("slow")
    for i in range(14):
        dma()
    k("s_waitcnt vmcnt(0)\ns_barrier")
    copy_loads()
    k(f"v_mov_b32 v{T+3}, 0xff800000\ns_mov_b32 s42, 64")
    k.label("maxloop")
    kreads(0, 0)
    k(f"v_add_u32 v{AK}, 2560, v{AK}\nv_add_u32 v{AK2}, 2560, v{AK2}\ns_waitcnt lgkmcnt(0)")
    k(f"v_mfma_f32_32x32x16_bf16 {v16(SA)}, {v4(KF[0])}, {v4(QF1)}, 0")
    k(f"v_mfma_f32_32x32x16_bf16 {v16(SA)}, {v4(KF[0]+4)}, {v4(QF2)}, {v16(SA)}")
    k("s_nop 15\ns_nop 3")
    for r in range(0, 16, 2):
        k(f"v_max3_f32 v{T+3}, v{SA+r}, v{SA+r+1}, v{T+3}")
    k("s_sub_u32 s42, s42, 1\ns_cmp_lg_u32 s42, 0\ns_cbranch_scc1 attn_kernel_maxloop")
    k(f"""
    v_mov_b32 v{T+4}, v{T+3}
    v_mov_b32 v{T+5}, v{T+3}
    s_nop 1
    v_permlane32_swap_b32 v{T+4}, v{T+5}
    s_nop 1
    v_max_f32 v{T+3}, v{T+4}, v{T+5}
    v_lshlrev_b32 v{AK}, 4, v1
    v_lshlrev_b32 v{AK2}, 3, v3
    """)
    set_m()
    pipe_start()
    k("s_mov_b32 s42, 8")
    k.label("loop")
    if os.environ.get("PRIO") is not None:
        k(f"s_lshr_b32 s43, s18, 2\ns_add_u32 s43, s43, s42\ns_and_b32 s43, s43, 1\ns_cmp_eq_u32 s43, 0\ns_cbranch_scc1 attn_kernel_p0\ns_setprio 1\ns_branch attn_kernel_p1")
        k.label("p0")
        k("s_setprio 0")
        k.label("p1")
    group(False)
    k("s_cmp_eq_u32 s42, 5\ns_cbranch_scc0 attn_kernel_nost")
    k("s_waitcnt vmcnt(0)")
    k.srd_off(36, 12, WS_FW, NFF * 40960)
    k(f"""
    s_mov_b32 s45, 20480
    buffer_store_dwordx4 {v4(CP)}, v{CPD}, s[36:39], 0 offen
    buffer_store_dwordx4 {v4(CP+4)}, v{CPD+1}, s[36:39], 0 offen
    buffer_store_dwordx4 {v4(CP+8)}, v{CPD}, s[36:39], s45 offen
    buffer_store_dwordx4 {v4(CP+12)}, v{CPD+1}, s[36:39], s45 offen
    """)
    k.srd_off(36, 12, WS_WO, 819200)
    k(f"buffer_store_dwordx4 {v4(CP+16)}, v{CPD+2}, s[36:39], 0 offen")
    k.srd_off(36, 12, WS_WD, 40 * 55296)
    k(f"buffer_store_dwordx4 {v4(CP+20)}, v{CPD+5}, s[36:39], 0 offen\nbuffer_store_dwordx4 {v4(CP+24)}, v{CPD+6}, s[36:39], 0 offen")
    k.label("nost")
    k("s_sub_u32 s42, s42, 1\ns_cmp_lg_u32 s42, 0\ns_cbranch_scc1 attn_kernel_loop")
    k.stamp()
    k("s_nop 1")
    k(f"v_mfma_f32_32x32x16_bf16 {v16(O)}, {v4(VF[1]+4)}, {v4(P+4)}, {v16(O)}")
    k("s_nop 15\ns_nop 3")
    k(f"""
    v_mov_b32 v{T}, v{O+8}
    v_mov_b32 v{T+1}, v{O+8}
    s_nop 1
    v_permlane32_swap_b32 v{T}, v{T+1}
    s_nop 1
    v_rcp_f32 v{T+1}, v{T+1}
    s_nop 0
    """)
    for r in range(12):
        k(f"v_mul_f32 v{O+r}, v{O+r}, v{T+1}")
    for p in range(6):
        k(f"v_cvt_pk_bf16_f32 v{P+p}, v{O+2*p}, v{O+2*p+1}")
    k(f"""
    v_lshl_add_u32 v6, v4, 3, v5
    buffer_store_dwordx2 {v2(P)}, v6, s[32:35], s19 offen
    buffer_store_dwordx2 {v2(P+2)}, v6, s[32:35], s19 offen offset:16
    s_mov_b32 exec_hi, 0
    buffer_store_dwordx2 {v2(P+4)}, v6, s[32:35], s19 offen offset:32
    """)
    k.finish(1)
    return k, "grid=(256,1,1) block=(512,1,1) lds=163840"

def gen_k3():
    k = K("oproj_kernel", 128)
    XR, WR = ST, ST + 8
    EXS = 3 * SLOT
    k("""
    s_cmp_ge_u32 s2, 256
    s_cbranch_scc1 oproj_kernel_exit
    s_load_dwordx2 s[4:5], s[0:1], 0
    s_load_dwordx2 s[12:13], s[0:1], 96
    s_load_dwordx2 s[14:15], s[0:1], 48
    """)
    gemm_ids(k)
    k("s_waitcnt lgkmcnt(0)")
    k.diag_start(2)
    k.stamp()
    k.srd_off(20, 12, WS_O, MATB)
    k(f"""
    s_mul_i32 s44, s16, 102400
    s_add_u32 s44, s44, {WS_WO}
    s_add_u32 s24, s12, s44
    s_addc_u32 s25, s13, 0
    s_mov_b32 s26, 102400
    s_mov_b32 s27, 0x00020000
    """)
    k.srd(28, 4, MATB)
    k.srd(32, 14, 1280)
    k.srd_off(36, 12, WS_H, MATB)
    k.srd_off(40, 12, WS_ST, 32768)
    n0 = k.nst
    k("""
    s_cmp_lt_u32 s18, 5
    s_cbranch_scc0 oproj_kernel_idle
    s_lshl_b32 s45, s17, 6
    v_add_u32 v5, s45, v3
    v_mul_u32_u24 v10, 1280, v5
    v_lshl_add_u32 v10, v4, 3, v10
    v_lshlrev_b32 v11, 3, v4
    s_mul_i32 s59, s16, 160
    s_lshl_b32 s46, s18, 5
    s_add_u32 s59, s59, s46
    s_mov_b32 s44, s59
    """)
    for rf in range(4):
        k(f"buffer_load_dwordx2 {v2(XR+2*rf)}, v10, s[28:31], s44 offen\ns_add_u32 s44, s44, 20480")
    k(f"buffer_load_dwordx2 {v2(WR)}, v11, s[32:35], s59 offen")
    gemm_mm(k, False, 0)
    k("s_waitcnt vmcnt(0)")
    k("s_nop 7\nv_mov_b32 v15, 0x3f803f80\ns_mov_b32 s44, s59")
    for rf in range(4):
        a = ACC + 4 * rf
        S = TMP + 4 * rf
        k(f"v_cvt_pk_bf16_f32 v{a}, v{a}, v{a+1}\nv_cvt_pk_bf16_f32 v{a+1}, v{a+2}, v{a+3}")
        k(f"v_mov_b32 v{S}, 0\nv_mov_b32 v{S+1}, 0\nv_mov_b32 v{S+2}, 0\nv_mov_b32 v{S+3}, 0")
        for h in range(2):
            k(f"""
            v_lshlrev_b32 v12, 16, v{a+h}
            v_and_b32 v13, 0xffff0000, v{a+h}
            v_lshlrev_b32 v6, 16, v{XR+2*rf+h}
            v_and_b32 v7, 0xffff0000, v{XR+2*rf+h}
            v_add_f32 v12, v12, v6
            v_add_f32 v13, v13, v7
            v_cvt_pk_bf16_f32 v{a+h}, v12, v13
            """)
            k(f"v_dot2_f32_bf16 v{S}, v{a+h}, v15, v{S}\nv_dot2_f32_bf16 v{S+1}, v{a+h}, v{a+h}, v{S+1}\nv_dot2_f32_bf16 v{S+2}, v{a+h}, v{WR+h}, v{S+2}")
        k(f"buffer_store_dwordx2 {v2(a)}, v10, s[36:39], s44 offen\ns_add_u32 s44, s44, 20480")
    k("s_nop 3")
    red_g(k, [TMP + 4 * rf + i for rf in range(4) for i in range(3)], 16)
    k(f"""
    v_lshlrev_b32 v14, 4, v3
    s_lshl_b32 s46, s18, 10
    s_add_u32 s46, s46, {EXS}
    v_add_u32 v14, s46, v14
    s_mov_b64 exec, 0xffff
    """)
    for rf in range(4):
        k(f"ds_write_b128 v14, {v4(TMP+4*rf)} offset:{rf*256}")
    k("s_mov_b64 exec, -1\ns_waitcnt lgkmcnt(0)\ns_barrier\ns_branch oproj_kernel_end")
    k.label("idle")
    for lw in range(3):
        if lw < 2:
            k(f"s_cmp_eq_u32 s18, {5+lw}\ns_cbranch_scc0 oproj_kernel_ld{lw+1}")
        k.nst = n0
        gemm_loader(k, lw, True, 0, 20480)
        if lw < 2:
            k("s_barrier\ns_branch oproj_kernel_end")
            k.label(f"ld{lw+1}")
    k(f"""
    s_barrier
    s_cmp_eq_u32 s18, 7
    s_cbranch_scc0 oproj_kernel_end
    v_lshlrev_b32 v14, 2, v1
    v_add_u32 v9, {EXS}, v14
    """)
    for w in range(5):
        for q in range(4):
            k(f"ds_read_b32 v{16+4*w+q}, v9 offset:{w*1024+q*256}")
    k("s_lshl_b32 s44, s17, 10\ns_waitcnt lgkmcnt(0)")
    for q in range(4):
        k(f"v_add_f32 v{16+q}, v{16+q}, v{20+q}\nv_add_f32 v{24+q}, v{24+q}, v{28+q}\nv_add_f32 v{16+q}, v{16+q}, v{24+q}\nv_add_f32 v{16+q}, v{16+q}, v{32+q}")
    for q in range(4):
        k(f"buffer_atomic_add_f32 v{16+q}, v14, s[40:43], s44 offen offset:{q*256}")
    k.finish(2)
    return k, "grid=(256,1,1) block=(512,1,1) lds=%d" % (3 * SLOT + 5120)

def row_stats(k, s0, s1, s2, mean, rstd, r=None, wsum=None):
    k(f"""
    v_mul_f32 v{mean}, {f32hex(1/640)}, v{s0}
    v_mul_f32 v{rstd}, {f32hex(1/640)}, v{s1}
    v_fma_f32 v{rstd}, -v{mean}, v{mean}, v{rstd}
    v_max_f32 v{rstd}, 0, v{rstd}
    v_add_f32 v{rstd}, {f32hex(1e-5)}, v{rstd}
    v_rsq_f32 v{rstd}, v{rstd}
    """)
    if r is not None:
        k(f"v_fma_f32 v{r}, -v{mean}, v{wsum}, v{s2}\nv_mul_f32 v{r}, v{r}, v{rstd}")

NFB = 40
def gen_k4():
    k = K("ffn_kernel", 128)
    NTOT = NFF + NFB + 128
    SS = 88
    k(f"""
    s_cmp_ge_u32 s2, {NTOT}
    s_cbranch_scc1 ffn_kernel_exit
    s_load_dwordx4 s[8:11], s[0:1], 80
    s_load_dwordx2 s[12:13], s[0:1], 96
    s_waitcnt lgkmcnt(0)
    """)
    k.diag_start(3)
    k.stamp()
    k.srd_off(20, 12, WS_H, MATB)
    k.srd_off(24, 12, WS_ST, 32768)
    k.srd_off(40, 12, WS_SEL, 64)
    k.srd(28, 8, MATB)
    k.srd(48, 10, 256)
    k.srd_off(44, 12, WS_A, 1728 * 4)
    k("v_lshlrev_b32 v1, 4, v0")
    for i in range(8):
        k(f"v_add_u32 v2, {4096*i}, v1\nbuffer_load_dwordx3 v[{SS+4*i}:{SS+2+4*i}], v2, s[24:27], 0 offen")
    k("v_mov_b32 v2, 0\nbuffer_load_dword v125, v2, s[40:43], 0 offen offset:32")
    def argmax(nyounger):
        k(f"s_waitcnt vmcnt({nyounger})")
        k("v_mov_b32 v7, 0")
        for i in range(8):
            b = SS + 4 * i
            row_stats(k, b, b + 1, b + 2, 8, 9, 10, 125)
            k(f"""
            v_ashrrev_i32 v11, 31, v10
            v_or_b32 v11, 0x80000000, v11
            v_xor_b32 v11, v11, v10
            v_and_b32 v11, 0xfffff800, v11
            v_sub_u32 v12, {2047 - 256*i}, v0
            v_or_b32 v11, v11, v12
            v_max_u32 v7, v7, v11
            """)
        for ror in (8, 4, 2, 1):
            k(f"s_nop 1\nv_max_u32_dpp v7, v7, v7 row_ror:{ror} row_mask:0xf bank_mask:0xf")
        k("""
        v_lshrrev_b32 v8, 4, v0
        v_lshlrev_b32 v8, 2, v8
        ds_write_b32 v8, v7
        s_waitcnt lgkmcnt(0)
        s_barrier
        v_mov_b32 v8, 0
        ds_read_b128 v[8:11], v8
        v_mov_b32 v12, 0
        ds_read_b128 v[12:15], v12 offset:16
        v_mov_b32 v2, 0
        ds_read_b128 v[2:5], v2 offset:32
        v_mov_b32 v120, 0
        ds_read_b128 v[120:123], v120 offset:48
        s_waitcnt lgkmcnt(0)
        v_max3_u32 v7, v8, v9, v10
        v_max3_u32 v7, v11, v12, v7
        v_max3_u32 v7, v13, v14, v7
        v_max3_u32 v7, v15, v2, v7
        v_max3_u32 v7, v3, v4, v7
        v_max3_u32 v7, v5, v120, v7
        v_max3_u32 v7, v121, v122, v7
        v_max_u32 v7, v123, v7
        v_and_b32 v7, 0x7ff, v7
        v_sub_u32 v7, 2047, v7
        s_nop 0
        v_readfirstlane_b32 s18, v7
        s_nop 3
        s_lshl_b32 s19, s18, 4
        s_mul_i32 s50, s18, 1280
        """.replace("s_mul_i32 s50, s18, 1280", "s_mul_i32 s53, s18, 1280"))
    def gemv_reduce(AC, nacc):
        for ror in (8, 4, 2):
            k("s_nop 1")
            for r in range(nacc):
                k(f"v_add_f32_dpp v{AC+r}, v{AC+r}, v{AC+r} row_ror:{ror} row_mask:0xf bank_mask:0xf")
        k(f"""
        v_lshrrev_b32 v12, 4, v0
        v_lshlrev_b32 v12, 7, v12
        v_and_b32 v13, 1, v0
        v_lshl_add_u32 v12, v13, 6, v12
        s_mov_b32 s52, 0x00030003
        s_mov_b32 exec_lo, s52
        s_mov_b32 exec_hi, s52
        """)
        for q in range(nacc // 4):
            k(f"ds_write_b128 v12, {v4(AC+4*q)} offset:{64+16*q}")
        k("s_mov_b64 exec, -1\ns_waitcnt lgkmcnt(0)\ns_barrier")
        k("""
        v_and_b32 v13, 7, v0
        v_bfe_u32 v12, v0, 3, 1
        v_lshlrev_b32 v12, 6, v12
        v_lshl_add_u32 v12, v13, 2, v12
        """)
    k(f"s_cmp_lt_u32 s2, {NFF}\ns_cbranch_scc1 ffn_kernel_ffa\ns_cmp_lt_u32 s2, {NFF+NFB}\ns_cbranch_scc1 ffn_kernel_ffb")
    k(f"""
    s_sub_u32 s16, s2, {NFF+NFB}
    s_add_u32 s17, s16, {(NFF+NFB) % 8}
    s_and_b32 s17, s17, 7
    s_lshl_b32 s17, s17, 4
    s_lshr_b32 s16, s16, 3
    s_add_u32 s16, s16, s17
    s_mul_i32 s17, s16, 20480
    s_lshl_b32 s51, s16, 8
    s_lshl_b32 s16, s16, 4
    """)
    for i in range(5):
        k(f"v_add_u32 v{60+i}, {4096*i}, v1\nbuffer_load_dwordx4 {v4(16+4*i)}, v{60+i}, s[20:23], s17 offen")
    for i in range(5):
        k(f"""
        v_add_u32 v{66+i}, {256*i}, v0
        v_mul_u32_u24 v{66+i}, 3277, v{66+i}
        v_lshrrev_b32 v{66+i}, 18, v{66+i}
        v_lshlrev_b32 v72, 4, v{66+i}
        buffer_load_dwordx2 {v2(40+2*i)}, v72, s[24:27], s51 offen
        """)
    argmax(10)
    k("s_sub_u32 s18, s18, s16\nv_mov_b32 v73, 0x40000000\ns_waitcnt vmcnt(0)")
    for i in range(5):
        row_stats(k, 40 + 2 * i, 41 + 2 * i, None, 52, 53)
        k(f"v_cmp_eq_u32 vcc, s18, v{66+i}\nv_mul_f32 v52, v52, v53\ns_nop 0")
        k(f"v_cndmask_b32 v{60+i}, v{60+i}, v73, vcc")
        for d in range(4):
            r = 16 + 4 * i + d
            k(f"""
            v_lshlrev_b32 v54, 16, v{r}
            v_and_b32 v55, 0xffff0000, v{r}
            v_fma_f32 v56, v54, v53, -v52
            v_fma_f32 v57, v55, v53, -v52
            v_cvt_pk_bf16_f32 v56, v56, v57
            v_lshlrev_b32 v57, 16, v56
            v_and_b32 v56, 0xffff0000, v56
            v_add_f32 v54, v54, v57
            v_add_f32 v55, v55, v56
            v_cvt_pk_bf16_f32 v{r}, v54, v55
            """)
        k(f"buffer_store_dwordx4 {v4(16+4*i)}, v{60+i}, s[28:31], s17 offen")
    k("s_branch ffn_kernel_end")
    k.label("ffa")
    G, U, HX, AC = 16, 36, 56, 64
    k.srd_off(32, 12, WS_FW, NFF * 40960)
    k("s_mul_i32 s16, s2, 40960")
    for i in range(5):
        k(f"s_add_u32 s17, s16, {i*4096}\nbuffer_load_dwordx4 {v4(G+4*i)}, v1, s[32:35], s17 offen\ns_add_u32 s17, s16, {20480+i*4096}\nbuffer_load_dwordx4 {v4(U+4*i)}, v1, s[32:35], s17 offen")
    k.stamp()
    argmax(10)
    k.stamp()
    k(f"v_mov_b32 v2, 0\nbuffer_load_dwordx3 v[{SS}:{SS+2}], v2, s[24:27], s19 offen\nv_and_b32 v8, 0xfe, v0")
    for i in range(5):
        k(f"buffer_load_ushort v{HX+i}, v8, s[20:23], s53 offen offset:{256*i}")
    k("s_waitcnt vmcnt(5)")
    row_stats(k, SS, SS + 1, SS + 2, 8, 9)
    k("s_nop 0\nv_mul_f32 v11, v8, v9\ns_waitcnt vmcnt(0)")
    for i in range(5):
        k(f"v_lshlrev_b32 v{HX+i}, 16, v{HX+i}\nv_fma_f32 v{HX+i}, v{HX+i}, v9, -v11\nv_cvt_pk_bf16_f32 v{HX+i}, v{HX+i}, v{HX+i}\nv_lshlrev_b32 v{HX+i}, 16, v{HX+i}")
    k.stamp()
    for r in range(16):
        k(f"v_mov_b32 v{AC+r}, 0")
    for i in range(5):
        for (src, acc) in ((G, AC), (U, AC + 8)):
            for d in range(4):
                s_ = src + 4 * i + d
                k(f"v_lshlrev_b32 v12, 16, v{s_}\nv_and_b32 v13, 0xffff0000, v{s_}\nv_fmac_f32 v{acc+2*d}, v12, v{HX+i}\nv_fmac_f32 v{acc+2*d+1}, v13, v{HX+i}")
    k.stamp()
    gemv_reduce(AC, 16)
    k("s_cmp_lt_u32 s2, 0x7fffffff\nv_cmp_gt_u32 vcc, 64, v0\ns_cbranch_vccz ffn_kernel_end")
    for rr in range(16):
        k(f"ds_read_b32 v{16+rr}, v12 offset:{64+128*rr}\nds_read_b32 v{32+rr}, v12 offset:{96+128*rr}")
    k("s_waitcnt lgkmcnt(0)")
    for st in (8, 4, 2, 1):
        for rr in range(st):
            k(f"v_add_f32 v{16+rr}, v{16+rr}, v{16+rr+st}\nv_add_f32 v{32+rr}, v{32+rr}, v{32+rr+st}")
    k(f"""
    v_cvt_pk_bf16_f32 v16, v16, v32
    v_and_b32 v20, 0xffff0000, v16
    v_lshlrev_b32 v16, 16, v16
    v_mul_f32 v17, {f32hex(-1.4426950408889634)}, v16
    v_exp_f32 v17, v17
    s_nop 0
    v_add_f32 v17, 1.0, v17
    v_rcp_f32 v17, v17
    s_nop 0
    v_mul_f32 v16, v16, v17
    v_cvt_pk_bf16_f32 v16, v16, v16
    v_lshlrev_b32 v16, 16, v16
    v_mul_f32 v16, v16, v20
    v_cvt_pk_bf16_f32 v16, v16, v16
    v_lshlrev_b32 v16, 16, v16
    v_lshlrev_b32 v12, 2, v0
    s_lshl_b32 s16, s2, 6
    s_mov_b64 exec, 0xffff
    buffer_store_dword v16, v12, s[44:47], s16 offen sc1
    s_mov_b64 exec, -1
    s_branch ffn_kernel_end
    """)
    k.label("ffb")
    D, AV_, AC = 16, 72, 104
    k.srd_off(32, 12, WS_WD, 40 * 55296)
    k(f"s_sub_u32 s16, s2, {NFF}\ns_mul_i32 s17, s16, 55296\nv_cmp_gt_u32 vcc, 128, v0\nv_mov_b32 v2, 0x40000000\ns_nop 1\nv_cndmask_b32 v6, v2, v1, vcc")
    for i in range(14):
        k(f"buffer_load_dwordx4 {v4(D+4*i)}, v{6 if i == 13 else 1}, s[32:35], s17 offen\ns_add_u32 s17, s17, 4096")
    argmax(14)
    k(f"v_mov_b32 v2, 0\nbuffer_load_dwordx3 v[{SS}:{SS+2}], v2, s[24:27], s19 offen")
    k("v_and_b32 v3, 15, v0\nv_lshlrev_b32 v3, 1, v3\ns_lshl_b32 s17, s16, 5\ns_add_u32 s53, s53, s17\nbuffer_load_ushort v124, v3, s[20:23], s53 offen")
    k("s_waitcnt vmcnt(1)")
    row_stats(k, SS, SS + 1, SS + 2, 8, 9, 10, 125)
    k(f"""
    s_nop 0
    v_cvt_pk_bf16_f32 v10, v10, v10
    v_lshlrev_b32 v10, 16, v10
    v_mul_f32 v11, {f32hex(-1.4426950408889634)}, v10
    v_exp_f32 v11, v11
    s_nop 0
    v_add_f32 v11, 1.0, v11
    v_rcp_f32 v11, v11
    s_nop 0
    v_cvt_pk_bf16_f32 v11, v11, v11
    v_lshlrev_b32 v11, 16, v11
    s_mov_b32 s17, 0
    """)
    k.stamp()
    k("v_lshrrev_b32 v4, 1, v0\nv_lshlrev_b32 v4, 2, v4")
    k.label("poll")
    for i in range(14):
        k(f"s_mov_b32 s16, {512*i}\nbuffer_load_dword v{AV_+i}, v4, s[44:47], s16 offen sc1")
    k("s_waitcnt vmcnt(0)")
    k(f"v_and_b32 v5, v{AV_}, v{AV_+1}")
    k(f"v_max_u32 v5, v{AV_}, v{AV_+1}")
    for i in range(2, 14, 2):
        k(f"v_max3_u32 v5, v{AV_+i}, v{AV_+i+1}, v5")
    k(f"""
    v_cmp_eq_u32 vcc, -1, v5
    s_add_u32 s17, s17, 1
    s_cbranch_vccz ffn_kernel_go
    s_cmp_lt_u32 s17, 0x100000
    s_cbranch_scc0 ffn_kernel_go
    s_sleep 2
    s_branch ffn_kernel_poll
    """)
    k.label("go")
    k.stamp()
    for r in range(8):
        k(f"v_mov_b32 v{AC+r}, 0")
    for i in range(14):
        for d in range(4):
            s_ = D + 4 * i + d
            k(f"v_lshlrev_b32 v12, 16, v{s_}\nv_and_b32 v13, 0xffff0000, v{s_}\nv_fmac_f32 v{AC+2*d}, v12, v{AV_+i}\nv_fmac_f32 v{AC+2*d+1}, v13, v{AV_+i}")
    gemv_reduce(AC, 8)
    k("v_cmp_gt_u32 vcc, 64, v0\ns_cbranch_vccz ffn_kernel_end")
    for rr in range(16):
        k(f"ds_read_b32 v{16+rr}, v12 offset:{64+128*rr}")
    k("s_waitcnt lgkmcnt(0)")
    for st in (8, 4, 2, 1):
        for rr in range(st):
            k(f"v_add_f32 v{16+rr}, v{16+rr}, v{16+rr+st}")
    k("""
    v_cvt_pk_bf16_f32 v16, v16, v16
    v_lshlrev_b32 v16, 16, v16
    v_mul_f32 v16, v16, v11
    v_cvt_pk_bf16_f32 v16, v16, v16
    v_lshlrev_b32 v16, 16, v16
    v_lshlrev_b32 v124, 16, v124
    v_sub_f32 v10, v124, v8
    v_mul_f32 v10, v10, v9
    v_cvt_pk_bf16_f32 v10, v10, v10
    v_lshlrev_b32 v10, 16, v10
    v_add_f32 v10, v10, v16
    v_cvt_pk_bf16_f32 v10, v10, v10
    v_lshlrev_b32 v10, 16, v10
    v_add_f32 v10, v10, v124
    v_cvt_pk_bf16_f32 v10, v10, v10
    s_mov_b64 exec, 0xffff
    buffer_store_short v10, v3, s[28:31], s53 offen
    s_mov_b64 exec, -1
    """)
    k.finish(3)
    return k, f"grid=({NTOT},1,1) block=(256,1,1) lds=4096"

def main():
    ks = [gen_k1(), gen_k2(), gen_k3(), gen_k4()]
    out = "; generated by dev/gen7.py (hand-written generator)\n"
    for k, l in ks:
        out += f"; @launch kernel={k.name} {l}\n"
    out += '.amdgcn_target "amdgcn-amd-amdhsa--gfx950"\n.text\n'
    for k, l in ks:
        out += k.text()
    out += '.section .rodata,"a"\n'
    for k, l in ks:
        out += ".p2align 6\n" + k.desc()
    path = sys.argv[1] if len(sys.argv) > 1 else f"cdna_kernels/{NAME}.s"
    open(path, "w").write(out)
    print("wrote", path, len(out))

main()
```

```python
import sys, struct, os
STAMP = os.environ.get("STAMP", "0") == "1"
DIAG = os.environ.get("DIAG", "0") == "1"
NAME = "sequential_preLN__grouped_kv_mqa__moe_arch_mod__prompt"
WS_Q, WS_KV, WS_O, WS_H, WS_ST, WS_KM, WS_YP, WS_SEL = 0, 0x400000, 0x800000, 0xC00000, 0x1000000, 0x1100000, 0x1200000, 0x1300000
WS_FW, WS_WO, WS_WD, WS_A, WS_WQ = 0x1400000, 0x1900000, 0x1A00000, 0x1D00000, 0x1E00000
MATB = 2048 * 1280
QSCALE = (20 ** -0.5) * 1.4426950408889634
NFF = 108

def f32hex(x):
    return "0x%08x" % struct.unpack("<I", struct.pack("<f", x))[0]

class K:
    def __init__(self, name, vgpr, sgpr=96):
        self.name, self.vgpr, self.sgpr = name, vgpr, sgpr
        self.lines = []
        self.nst = 0
    def __call__(self, s):
        for l in s.strip().split("\n"):
            if l.strip():
                self.lines.append("    " + l.strip())
    def label(self, s):
        self.lines.append(f"{self.name}_{s}:")
    def srd(self, d, b, size):
        self(f"s_mov_b32 s{d}, s{b}\ns_mov_b32 s{d+1}, s{b+1}\ns_mov_b32 s{d+2}, {size}\ns_mov_b32 s{d+3}, 0x00020000")
    def srd_off(self, d, b, off, size):
        self(f"s_add_u32 s{d}, s{b}, {off}\ns_addc_u32 s{d+1}, s{b+1}, 0\ns_mov_b32 s{d+2}, {size}\ns_mov_b32 s{d+3}, 0x00020000")
    def stamp(self, real=False):
        if not STAMP: return
        i = self.nst; self.nst += 1
        self(f"{'s_memrealtime' if real else 's_memtime'} s[{60+2*i}:{61+2*i}]")
    def diag_start(self, kid):
        if not DIAG: return
        self(f"s_load_dwordx2 s[84:85], s[0:1], 88\ns_memrealtime s[86:87]\ns_waitcnt lgkmcnt(0)\ns_add_u32 s84, s84, {512*(3-kid)}\ns_addc_u32 s85, s85, 0")
    def finish(self, kid, wsreg=12):
        self.label("end")
        self.stamp()
        if DIAG:
            self(f"""
            s_memrealtime s[88:89]
            s_waitcnt lgkmcnt(0) vmcnt(0)
            s_and_b32 s90, s2, 7
            s_cmp_eq_u32 s90, 3
            s_cbranch_scc0 {self.name}_exit
            s_mov_b64 exec, 1
            s_mov_b32 s92, s84
            s_mov_b32 s93, s85
            s_mov_b32 s94, 256
            s_mov_b32 s95, 0x00020000
            v_mov_b32 v1, 0
            v_mov_b32 v2, s88
            buffer_atomic_umax v2, v1, s[92:95], 0 offen offset:{8*kid+4} sc1
            v_not_b32 v3, s86
            buffer_atomic_umax v3, v1, s[92:95], 0 offen offset:{8*kid} sc1
            """)
        if STAMP:
            self(f"s_waitcnt lgkmcnt(0)\ns_mov_b64 exec, 1")
            self.srd_off(92, wsreg, 0x2000000 + kid * 0x100000, 0x100000)
            self("v_lshrrev_b32 v1, 6, v0\ns_lshl_b32 s90, s2, 4\nv_add_u32 v1, s90, v1\nv_lshlrev_b32 v1, 6, v1")
            for i in range(self.nst):
                self(f"v_mov_b32 v2, s{60+2*i}\nbuffer_store_dword v2, v1, s[92:95], 0 offen offset:{4*i}")
        self.label("exit")
        self("s_endpgm")
    def text(self):
        return (f".globl {self.name}\n.p2align 8\n.type {self.name},@function\n{self.name}:\n" + "\n".join(self.lines) + "\n")
    def desc(self):
        acc = (self.vgpr + 3) // 4 * 4
        return (f".amdhsa_kernel {self.name}\n  .amdhsa_next_free_vgpr {self.vgpr}\n  .amdhsa_next_free_sgpr {self.sgpr}\n"
                f"  .amdhsa_accum_offset {acc}\n  .amdhsa_group_segment_fixed_size 0\n  .amdhsa_kernarg_size 104\n"
                f"  .amdhsa_user_sgpr_count 2\n  .amdhsa_user_sgpr_kernarg_segment_ptr 1\n  .amdhsa_system_sgpr_workgroup_id_x 1\n"
                f".end_amdhsa_kernel\n")

def v4(b): return f"v[{b}:{b+3}]"
def v2(b): return f"v[{b}:{b+1}]"
def v16(b): return f"v[{b}:{b+15}]"

def red_g(k, regs, tmp, op="add"):
    ins = "v_add_f32" if op == "add" else "v_max_f32"
    for i, r in enumerate(regs):
        k(f"ds_swizzle_b32 v{tmp+i}, v{r} offset:0x401F")
    k("s_waitcnt lgkmcnt(0)")
    for i, r in enumerate(regs):
        k(f"{ins} v{r}, v{r}, v{tmp+i}\nv_mov_b32 v{tmp+i}, v{r}")
    k("s_nop 1")
    for i, r in enumerate(regs):
        k(f"v_permlane32_swap_b32 v{tmp+i}, v{r}")
    k("s_nop 1")
    for i, r in enumerate(regs):
        k(f"{ins} v{r}, v{r}, v{tmp+i}")

def ln_fin(k, m, r):
    k(f"""
    v_mul_f32 v{m}, {f32hex(1/640)}, v{m}
    v_mul_f32 v{r}, {f32hex(1/640)}, v{r}
    v_fma_f32 v{r}, -v{m}, v{m}, v{r}
    v_max_f32 v{r}, 0, v{r}
    v_add_f32 v{r}, {f32hex(1e-5)}, v{r}
    v_rsq_f32 v{r}, v{r}
    s_nop 0
    v_mul_f32 v{m}, v{m}, v{r}
    """)

def gen_k1():
    k = K("kv_kernel", 96)
    WK_OFF, WV_OFF = 20480, 20480 + 28672
    XF, WF, ACC, CS, ONES, ST, TMP = 16, 24, 32, 36, 40, 44, 52
    k("""
    s_cmp_ge_u32 s2, 382
    s_cbranch_scc1 kv_kernel_exit
    s_cmp_ge_u32 s2, 128
    s_cbranch_scc1 kv_kernel_cpy
    s_load_dwordx2 s[4:5], s[0:1], 0
    s_load_dwordx4 s[8:11], s[0:1], 16
    s_load_dwordx2 s[12:13], s[0:1], 96
    s_load_dwordx2 s[14:15], s[0:1], 48
    v_and_b32 v1, 63, v0
    v_lshrrev_b32 v2, 6, v0
    s_and_b32 s17, s2, 7
    s_lshl_b32 s17, s17, 4
    s_lshr_b32 s44, s2, 3
    s_add_u32 s17, s17, s44
    v_readfirstlane_b32 s18, v2
    v_and_b32 v3, 15, v1
    v_lshrrev_b32 v4, 4, v1
    s_waitcnt lgkmcnt(0)
    """)
    k.diag_start(0)
    k.stamp()
    k.srd(20, 4, MATB)
    k.srd(24, 8, 25600)
    k.srd(28, 10, 25600)
    k("s_mul_i32 s45, s17, 20480\ns_mul_i32 s46, s18, 320\ns_mul_i32 s48, s18, 5120")
    for j in range(5):
        k(f"""
        v_add_u32 v6, s46, v1
        v_add_u32 v6, {64*j}, v6
        v_mul_u32_u24 v7, 3277, v6
        v_lshrrev_b32 v7, 18, v7
        v_mul_u32_u24 v8, 80, v7
        v_sub_u32 v8, v6, v8
        v_xor_b32 v8, v8, v7
        v_mul_u32_u24 v7, 1280, v7
        v_lshl_add_u32 v7, v8, 4, v7
        s_mov_b32 m0, s48
        s_add_u32 s48, s48, 1024
        buffer_load_dwordx4 v7, s[20:23], s45 offen lds
        """)
    k(f"v_lshlrev_b32 v7, 4, v1\ns_lshl_b32 s47, s18, 10\ns_add_u32 s48, s47, {WK_OFF}")
    for j in range(7):
        k(f"s_mov_b32 m0, s48\ns_add_u32 s49, s48, 28672\nbuffer_load_dwordx4 v7, s[24:27], s47 offen lds\ns_mov_b32 m0, s49\ns_add_u32 s48, s48, 4096\nbuffer_load_dwordx4 v7, s[28:31], s47 offen lds\ns_add_u32 s47, s47, 4096")
    k(f"""
    v_mul_u32_u24 v9, 1280, v3
    v_and_b32 v6, 3, v3
    v_xor_b32 v6, v6, v4
    v_lshl_add_u32 v9, v6, 4, v9
    v_and_b32 v10, 12, v3
    v_lshrrev_b32 v12, 2, v1
    v_and_b32 v12, 3, v12
    v_lshl_add_u32 v12, v4, 3, v12
    v_and_b32 v13, 3, v1
    v_mul_u32_u24 v11, 40, v12
    v_lshl_add_u32 v11, v13, 3, v11
    s_lshr_b32 s46, s18, 1
    s_mul_i32 s46, s46, 28672
    s_and_b32 s47, s18, 1
    s_lshl_b32 s47, s47, 5
    s_add_u32 s46, s46, s47
    s_add_u32 s46, s46, {WK_OFF}
    v_add_u32 v11, s46, v11
    """)
    for q in range(4):
        k(f"v_xor_b32 v6, {4*q}, v10\nv_lshl_add_u32 v{TMP+8+q}, v6, 4, v9")
    for i in range(4):
        k(f"v_mov_b32 v{ONES+i}, 0x3f803f80\nv_mov_b32 v{ST+i}, 0")
    k.srd_off(36, 12, WS_KV, 163840)
    k.stamp()
    k("s_waitcnt vmcnt(0)\ns_barrier")
    k.stamp()
    def reads(ks, b):
        k(f"ds_read_b128 {v4(XF+4*b)}, v{TMP+8+(ks&3)} offset:{(ks>>2)*256}")
        for h in range(2):
            k(f"ds_read_b64_tr_b16 {v2(WF+4*b+2*h)}, v11 offset:{ks*1280+h*160}")
    reads(0, 0)
    for ks in range(20):
        if ks < 19:
            reads(ks + 1, (ks + 1) & 1)
            k("s_waitcnt lgkmcnt(3)")
        else:
            k("s_waitcnt lgkmcnt(0)")
        b = ks & 1
        k(f"v_mfma_f32_16x16x32_bf16 {v4(ACC)}, {v4(WF+4*b)}, {v4(XF+4*b)}, {'0' if ks == 0 else v4(ACC)}")
        k(f"v_mfma_f32_16x16x32_bf16 {v4(CS)}, {v4(WF+4*b)}, {v4(ONES)}, {'0' if ks == 0 else v4(CS)}")
        for d in range(4):
            k(f"v_dot2_f32_bf16 v{ST+(d&1)}, v{XF+4*b+d}, v{ONES}, v{ST+(d&1)}\nv_dot2_f32_bf16 v{ST+2+(d&1)}, v{XF+4*b+d}, v{XF+4*b+d}, v{ST+2+(d&1)}")
    k.stamp()
    k(f"s_nop 7\nv_add_f32 v{ST}, v{ST}, v{ST+1}\nv_add_f32 v{ST+1}, v{ST+2}, v{ST+3}")
    red_g(k, [ST, ST + 1], TMP)
    ln_fin(k, ST, ST + 1)
    k.srd_off(40, 12, WS_Q, 16384)
    k(f"""
    s_cmp_eq_u32 s18, 3
    s_cbranch_scc0 kv_kernel_nost
    s_lshl_b32 s46, s17, 7
    v_lshlrev_b32 v14, 3, v3
    s_mov_b64 exec, 0xffff
    buffer_store_dwordx2 {v2(ST)}, v14, s[40:43], s46 offen
    s_mov_b64 exec, -1
    """)
    k.label("nost")
    for r in range(4):
        k(f"v_mul_f32 v{ACC+r}, v{ACC+r}, v{ST+1}\nv_fma_f32 v{ACC+r}, -v{CS+r}, v{ST}, v{ACC+r}")
    k(f"v_cvt_pk_bf16_f32 v{ACC}, v{ACC}, v{ACC+1}\nv_cvt_pk_bf16_f32 v{ACC+1}, v{ACC+2}, v{ACC+3}")
    k("""
    s_lshr_b32 s44, s17, 1
    s_mul_i32 s44, s44, 2560
    s_and_b32 s45, s17, 1
    s_cmp_ge_u32 s18, 2
    s_cbranch_scc1 kv_kernel_vepi
    v_mov_b32 v15, 0
    s_cmp_eq_u32 s18, 0
    s_cbranch_scc0 kv_kernel_k1
    """)
    k(f"""
    s_lshl_b32 s46, s45, 8
    s_add_u32 s44, s44, s46
    v_lshrrev_b32 v14, 1, v4
    v_lshlrev_b32 v14, 9, v14
    v_lshl_add_u32 v14, v3, 4, v14
    v_and_b32 v13, 1, v4
    v_lshl_add_u32 v14, v13, 3, v14
    buffer_store_dwordx2 {v2(ACC)}, v14, s[36:39], s44 offen
    v_dot2_f32_bf16 v15, v{ACC}, v{ACC}, v15
    v_dot2_f32_bf16 v15, v{ACC+1}, v{ACC+1}, v15
    s_nop 3
    """)
    red_g(k, [15], TMP)
    k("s_branch kv_kernel_kmax")
    k.label("k1")
    k(f"""
    s_lshl_b32 s46, s45, 7
    s_add_u32 s44, s44, s46
    v_lshlrev_b32 v14, 3, v3
    s_mov_b64 exec, 0xffff
    buffer_store_dwordx2 {v2(ACC)}, v14, s[36:39], s44 offen offset:1024
    v_dot2_f32_bf16 v15, v{ACC}, v{ACC}, v15
    v_dot2_f32_bf16 v15, v{ACC+1}, v{ACC+1}, v15
    """)
    k.srd_off(40, 12, WS_A, 1728 * 4)
    k("""
    s_mov_b64 exec, -1
    v_mov_b32 v20, -1
    v_mov_b32 v21, -1
    v_mov_b32 v22, -1
    v_mov_b32 v23, -1
    s_lshl_b32 s46, s2, 10
    v_lshlrev_b32 v14, 4, v1
    buffer_store_dwordx4 v[20:23], v14, s[40:43], s46 offen
    s_mov_b64 exec, 0xffff
    s_nop 1
    """)
    k.srd_off(40, 12, WS_ST, 32768)
    k("""
    v_mov_b32 v20, 0
    v_mov_b32 v21, 0
    v_mov_b32 v22, 0
    v_mov_b32 v23, 0
    s_lshl_b32 s46, s17, 8
    v_lshlrev_b32 v14, 4, v3
    buffer_store_dwordx4 v[20:23], v14, s[40:43], s46 offen
    s_mov_b64 exec, -1
    """)
    k.label("kmax")
    for off in ("0x041F", "0x081F", "0x101F", "0x201F"):
        k(f"ds_swizzle_b32 v{TMP}, v15 offset:{off}\ns_waitcnt lgkmcnt(0)\nv_max_f32 v15, v15, v{TMP}")
    k.srd_off(40, 12, WS_KM, 1024)
    k("""
    s_lshl_b32 s44, s18, 7
    s_add_u32 s44, s44, s17
    s_lshl_b32 s44, s44, 2
    v_mov_b32 v14, 0
    s_mov_b64 exec, 1
    buffer_store_dword v15, v14, s[40:43], s44 offen
    s_mov_b64 exec, -1
    s_branch kv_kernel_end
    """)
    k.label("vepi")
    k("""
    s_mul_i32 s46, s45, 640
    s_add_u32 s44, s44, s46
    v_bfe_u32 v14, v3, 2, 1
    v_mul_u32_u24 v12, 320, v14
    v_bfe_u32 v14, v3, 3, 1
    v_lshl_add_u32 v12, v14, 3, v12
    v_and_b32 v14, 3, v3
    v_lshl_add_u32 v12, v14, 1, v12
    v_lshl_add_u32 v14, v4, 6, v12
    s_cmp_eq_u32 s18, 2
    s_cbranch_scc1 kv_kernel_v0
    v_add_u32 v14, 256, v12
    s_mov_b64 exec, 0xffff
    """)
    k.label("v0")
    k(f"""
    buffer_store_short v{ACC}, v14, s[36:39], s44 offen offset:1280
    buffer_store_short_d16_hi v{ACC}, v14, s[36:39], s44 offen offset:1296
    buffer_store_short v{ACC+1}, v14, s[36:39], s44 offen offset:1312
    buffer_store_short_d16_hi v{ACC+1}, v14, s[36:39], s44 offen offset:1328
    s_mov_b64 exec, -1
    s_cmp_eq_u32 s18, 3
    s_cbranch_scc0 kv_kernel_end
    s_cmp_eq_u32 s2, 0
    s_cbranch_scc0 kv_kernel_end
    """)
    k.srd(40, 14, 1280)
    k(f"""
    v_mul_u32_u24 v8, 20, v1
    buffer_load_dwordx4 v[20:23], v8, s[40:43], 0 offen
    buffer_load_dword v24, v8, s[40:43], 0 offen offset:16
    v_mov_b32 v17, 0
    s_waitcnt vmcnt(0)
    v_dot2_f32_bf16 v17, v20, v{ONES}, v17
    v_dot2_f32_bf16 v17, v21, v{ONES}, v17
    v_dot2_f32_bf16 v17, v22, v{ONES}, v17
    v_dot2_f32_bf16 v17, v23, v{ONES}, v17
    v_dot2_f32_bf16 v17, v24, v{ONES}, v17
    s_nop 3
    """)
    for off in ("0x041F", "0x081F", "0x101F", "0x201F"):
        k(f"ds_swizzle_b32 v18, v17 offset:{off}\ns_waitcnt lgkmcnt(0)\nv_add_f32 v17, v17, v18")
    red_g(k, [17], 18)
    k.srd_off(40, 12, WS_SEL, 64)
    k("""
    v_mov_b32 v14, 0
    s_mov_b64 exec, 1
    buffer_store_dword v17, v14, s[40:43], 0 offen offset:32
    s_mov_b64 exec, -1
    """)
    k("s_branch kv_kernel_end")
    k.label("cpy")
    k("""
    s_load_dwordx2 s[12:13], s[0:1], 96
    s_sub_u32 s16, s2, 128
    s_mov_b32 s46, 0x12F684C
    s_mov_b32 s47, 0x3333334
    s_mov_b32 s48, 0x1999999A
    v_mov_b32 v14, 0x7fffffff
    """)
    def job(label, nxt, lo, n, karg, srcbytes, dst_off, dst_bytes, kind, dadd=0):
        k.label(label)
        if nxt:
            k(f"s_cmp_ge_u32 s16, {lo+n}\ns_cbranch_scc1 kv_kernel_{nxt}")
        k(f"""
        s_load_dwordx2 s[4:5], s[0:1], {karg}
        s_sub_u32 s17, s16, {lo}
        s_lshl_b32 s17, s17, 11
        v_add_u32 v1, s17, v0
        s_waitcnt lgkmcnt(0)
        """)
        k.srd(20, 4, srcbytes)
        k.srd_off(24, 12, dst_off, dst_bytes)
        for i in range(8):
            k(f"v_add_u32 v{2+i}, {256*i}, v1\nv_lshlrev_b32 v10, 4, v{2+i}\nbuffer_load_dwordx4 {v4(16+4*i)}, v10, s[20:23], 0 offen")
        npieces = srcbytes // 16
        for i in range(8):
            p = 2 + i
            if kind == "tile":
                k(f"""
                v_mul_hi_u32 v10, v{p}, s47
                v_mul_u32_u24 v11, 80, v10
                v_sub_u32 v11, v{p}, v11
                v_mul_hi_u32 v12, v11, s48
                v_mul_u32_u24 v13, 10, v12
                v_sub_u32 v13, v11, v13
                v_mul_u32_u24 v12, 102400, v12
                v_mul_u32_u24 v10, 160, v10
                v_add_u32 v12, v12, v10
                v_lshl_add_u32 v12, v13, 4, v12
                """)
            else:
                mag, per, sl = ("s46", 216, 40960) if kind == "gu" else ("s47", 80, 55296)
                k(f"""
                v_mul_hi_u32 v10, v{p}, {mag}
                v_mul_u32_u24 v11, {per}, v10
                v_sub_u32 v11, v{p}, v11
                v_lshrrev_b32 v12, 1, v11
                v_mul_u32_u24 v12, {sl}, v12
                v_lshl_add_u32 v12, v10, 5, v12
                v_and_b32 v11, 1, v11
                v_lshl_add_u32 v12, v11, 4, v12
                v_add_u32 v12, {dadd}, v12
                """)
            k(f"v_cmp_gt_u32 vcc, {npieces}, v{p}\ns_nop 1\nv_cndmask_b32 v{p}, v14, v12, vcc")
        for i in range(8):
            k(f"s_waitcnt vmcnt({7-i})\nbuffer_store_dwordx4 {v4(16+4*i)}, v{2+i}, s[24:27], 0 offen")
        k("s_endpgm")
    job("j0", "j1", 0, 25, 8, 819200, WS_WQ, 819200, "tile")
    job("j1", "j2", 25, 25, 32, 819200, WS_WO, 819200, "tile")
    job("j2", "j3", 50, 68, 56, 640 * 3456, WS_FW, NFF * 40960, "gu", 0)
    job("j3", "j4", 118, 68, 64, 640 * 3456, WS_FW, NFF * 40960, "gu", 20480)
    job("j4", None, 186, 68, 72, 1728 * 1280, WS_WD, 40 * 55296, "dn", 0)
    k.finish(0)
    return k, "grid=(382,1,1) block=(256,1,1) lds=%d" % (20480 + 2 * 28672)

SLOT = 36864
W_OFF = 16384
XF, SRC, VA_RD, VW_RD, ST, ONES, ACC, CS, WF, TMP = 16, 16, 48, 52, 56, 76, 80, 96, 100, 108

def gemm_ids(k):
    k("""
    v_and_b32 v1, 63, v0
    v_lshrrev_b32 v2, 6, v0
    s_lshr_b32 s16, s2, 5
    s_and_b32 s17, s2, 7
    s_lshl_b32 s17, s17, 2
    s_bfe_u32 s44, s2, 0x20003
    s_add_u32 s17, s17, s44
    v_readfirstlane_b32 s18, v2
    v_and_b32 v3, 15, v1
    v_lshrrev_b32 v4, 4, v1
    """)

def loader_list(lw):
    return [("A", e) for e in range(16)][12*lw:12*lw+12] + [("W", e) for e in range(20)][max(0, 12*lw-16):max(0, 12*lw+12-16)]

def gemm_loader(k, lw, w_linear, gb, wchunk, mid=None, nmid=0):
    lst = loader_list(lw)
    k("s_lshl_b32 s45, s17, 6")
    for i, (kind, e) in enumerate(lst):
        if kind == "A":
            k(f"""
            v_add_u32 v6, {4*e}, v4
            v_and_b32 v7, 15, v6
            v_xor_b32 v7, v7, v3
            v_add_u32 v6, s45, v6
            v_mul_u32_u24 v6, 1280, v6
            v_lshl_add_u32 v{SRC+i}, v7, 4, v6
            """)
        elif w_linear:
            k(f"v_add_u32 v6, {64*e}, v1\nv_lshlrev_b32 v{SRC+i}, 4, v6")
        else:
            k(f"""
            v_add_u32 v6, {64*e}, v1
            v_mul_u32_u24 v7, 6554, v6
            v_lshrrev_b32 v7, 16, v7
            v_mul_u32_u24 v8, 10, v7
            v_sub_u32 v8, v6, v8
            v_mul_u32_u24 v7, 1280, v7
            v_lshl_add_u32 v{SRC+i}, v8, 4, v7
            """)
    def issue(c):
        slot = gb + (c % 3) * SLOT
        k(f"s_mov_b32 s46, {c*256}\ns_mov_b32 s47, {c*wchunk}")
        for i, (kind, e) in enumerate(lst):
            if kind == "A":
                k(f"s_mov_b32 m0, {slot + e*1024}\ns_nop 0\nbuffer_load_dwordx4 v{SRC+i}, s[20:23], s46 offen lds")
            else:
                k(f"s_mov_b32 m0, {slot + W_OFF + e*1024}\ns_nop 0\nbuffer_load_dwordx4 v{SRC+i}, s[24:27], s47 offen lds")
    for c in range(3):
        issue(c)
    if mid:
        mid()
    k.stamp()
    waits = [24 + nmid, 12 + nmid, 12 + nmid, 12, 0]
    for c in range(5):
        k(f"s_waitcnt vmcnt({waits[c]})\ns_barrier")
        k.stamp()
        if 1 <= c <= 2:
            issue(c + 2)
    k.stamp()

def gemm_mm(k, colsum, gb):
    k(f"""
    v_lshlrev_b32 v6, 8, v3
    v_and_b32 v7, 3, v3
    v_xor_b32 v7, v7, v4
    v_lshl_add_u32 v6, v7, 4, v6
    v_add_u32 v6, {gb}, v6
    v_and_b32 v7, 12, v3
    """)
    for ks in range(4):
        k(f"v_xor_b32 v8, {4*ks}, v7\nv_lshl_add_u32 v{VA_RD+ks}, v8, 4, v6")
    k(f"""
    v_lshrrev_b32 v12, 2, v1
    v_and_b32 v12, 3, v12
    v_lshl_add_u32 v12, v4, 3, v12
    v_and_b32 v13, 3, v1
    s_lshl_b32 s48, s18, 5
    s_add_u32 s47, s48, {gb + W_OFF}
    v_mul_u32_u24 v{VW_RD}, 160, v12
    v_lshl_add_u32 v{VW_RD}, v13, 3, v{VW_RD}
    v_add_u32 v{VW_RD}, s47, v{VW_RD}
    """)
    if colsum:
        for i in range(4):
            k(f"v_mov_b32 v{ONES+i}, 0x3f803f80")
    k.stamp()
    def reads(ks, buf):
        for h in range(2):
            k(f"ds_read_b64_tr_b16 {v2(WF+4*buf+2*h)}, v{VW_RD} offset:{ks*5120 + h*640}")
        for rf in range(4):
            k(f"ds_read_b128 {v4(XF+16*buf+4*rf)}, v{VA_RD+ks} offset:{rf*4096}")
    for c in range(5):
        k("s_barrier")
        k.stamp()
        reads(0, 0)
        for ks in range(4):
            if ks < 3:
                reads(ks + 1, (ks + 1) & 1)
                k("s_waitcnt lgkmcnt(6)")
            else:
                k("s_waitcnt lgkmcnt(0)")
                if c < 4:
                    d = SLOT if (c % 3) != 2 else -2 * SLOT
                    for r in [VA_RD + i for i in range(4)] + [VW_RD]:
                        k(f"v_add_u32 v{r}, {d & 0xffffffff}, v{r}")
            first = (c == 0 and ks == 0)
            b = ks & 1
            for rf in range(4):
                a = ACC + 4 * rf
                k(f"v_mfma_f32_16x16x32_bf16 {v4(a)}, {v4(WF+4*b)}, {v4(XF+16*b+4*rf)}, {'0' if first else v4(a)}")
            if colsum:
                k(f"v_mfma_f32_16x16x32_bf16 {v4(CS)}, {v4(WF+4*b)}, {v4(ONES)}, {'0' if first else v4(CS)}")
    k.stamp()

def gen_k2():
    k = K("attn_kernel", 144)
    GB = 53248
    QB = 163840 - 10240
    QF1, QF2, SA, SB, O, P = 8, 12, 16, 32, 48, 64
    KF = [72, 80]; VF = [88, 96]
    AK, AK2, AV, VO = 136, 137, 138, 139
    T = 108
    QA, KX = 125, 127
    CP, CPD = 128, 128
    THRESH = 50.0
    k("""
    s_cmp_ge_u32 s2, 256
    s_cbranch_scc1 attn_kernel_exit
    s_load_dwordx2 s[4:5], s[0:1], 0
    s_load_dwordx2 s[12:13], s[0:1], 96
    s_load_dwordx2 s[14:15], s[0:1], 32
    s_load_dwordx4 s[8:11], s[0:1], 56
    """)
    gemm_ids(k)
    k("s_waitcnt lgkmcnt(0)")
    k.diag_start(1)
    k.stamp()
    k.srd(20, 4, MATB)
    k(f"""
    s_mul_i32 s44, s16, 102400
    s_add_u32 s44, s44, {WS_WQ}
    s_add_u32 s24, s12, s44
    s_addc_u32 s25, s13, 0
    s_mov_b32 s26, 102400
    s_mov_b32 s27, 0x00020000
    """)
    k.srd_off(28, 12, WS_KM, 1024)
    k.srd_off(56, 12, WS_KV, 163840)
    k(f"""
    v_lshlrev_b32 v7, 2, v1
    buffer_load_dword v{CP}, v7, s[28:31], 0 offen
    buffer_load_dword v{CP+1}, v7, s[28:31], 0 offen offset:256
    buffer_load_dword v{CP+2}, v7, s[28:31], 0 offen offset:512
    buffer_load_dword v{CP+3}, v7, s[28:31], 0 offen offset:768
    """)
    k(f"v_lshlrev_b32 v{CPD+4}, 4, v1\ns_lshl_b32 s52, s18, 10\ns_add_u32 s52, s52, 49152")
    def dma():
        k(f"s_mov_b32 m0, s52\ns_nop 0\nbuffer_load_dwordx4 v{CPD+4}, s[56:59], s52 offen lds\ns_add_u32 s52, s52, 8192")
    def pre(nyounger):
        k(f"""
        v_and_b32 v{T}, 31, v1
        v_lshrrev_b32 v{T+1}, 5, v1
        v_lshrrev_b32 v{T+2}, 2, v{T}
        v_and_b32 v{T+3}, 3, v{T}
        v_mul_u32_u24 v{QA}, 160, v{T+2}
        v_mul_u32_u24 v{T+3}, 40, v{T+3}
        v_add_u32 v{QA}, v{QA}, v{T+3}
        s_mul_i32 s46, s18, 1280
        s_add_u32 s46, s46, {QB}
        v_add_u32 v{QA}, s46, v{QA}
        v_lshl_add_u32 v{QA+1}, v{T+1}, 4, v{QA}
        v_mul_u32_u24 v{VO}, 1280, v{T+2}
        v_add_u32 v{VO}, v{VO}, v{T+3}
        v_lshl_add_u32 v{VO}, v{T+1}, 3, v{VO}
        s_lshl_b32 s19, s17, 6
        s_lshl_b32 s46, s18, 3
        s_add_u32 s19, s19, s46
        s_mul_i32 s19, s19, 1280
        s_mul_i32 s46, s16, 160
        s_add_u32 s19, s19, s46
        v_lshlrev_b32 v{AK}, 4, v1
        v_lshlrev_b32 v{AK2}, 3, v{T}
        v_mul_u32_u24 v{AV}, 320, v{T+1}
        v_lshl_add_u32 v{AV}, v{T}, 4, v{AV}
        s_mov_b32 s40, 0x000fffff
        s_mov_b32 s41, 0x000fffff
        s_waitcnt vmcnt({nyounger})
        v_max_f32 v{T}, v{CP}, v{CP+1}
        v_max_f32 v{T+1}, v{CP+2}, v{CP+3}
        """)
        for ror in (8, 4, 2, 1):
            k(f"s_nop 1\nv_max_f32_dpp v{T}, v{T}, v{T} row_ror:{ror} row_mask:0xf bank_mask:0xf\nv_max_f32_dpp v{T+1}, v{T+1}, v{T+1} row_ror:{ror} row_mask:0xf bank_mask:0xf")
        red_g(k, [T, T + 1], T + 2, "max")
        k(f"v_add_f32 v{KX}, v{T}, v{T+1}")
        k.srd_off(32, 12, WS_O, MATB)
    n0 = k.nst
    k("s_cmp_lt_u32 s18, 5\ns_cbranch_scc1 attn_kernel_mm")
    for lw in range(3):
        if lw < 2:
            k(f"s_cmp_eq_u32 s18, {5+lw}\ns_cbranch_scc0 attn_kernel_ld{lw+1}")
        def mid():
            for i in range(16):
                o = (lw * 16 + i) * 1024
                k(f"s_mov_b32 m0, {o}\ns_mov_b32 s46, {o}\nbuffer_load_dwordx4 v{CPD+4}, s[56:59], s46 offen lds")
        k.nst = n0
        gemm_loader(k, lw, True, GB, 20480, mid, 16)
        k("s_branch attn_kernel_ldone")
        if lw < 2:
            k.label(f"ld{lw+1}")
    k.label("ldone")
    pre(0)
    k("s_branch attn_kernel_qrd")
    k.label("mm")
    k.nst = n0
    k.srd_off(36, 12, WS_Q, 16384)
    k("s_lshl_b32 s46, s17, 9\nv_lshlrev_b32 v9, 3, v3")
    for rf in range(4):
        k(f"buffer_load_dwordx2 {v2(ST+2*rf)}, v9, s[36:39], s46 offen offset:{rf*128}")
    pre(4)
    gemm_mm(k, True, GB)
    k(f"""
    v_mul_u32_u24 v10, 160, v3
    v_lshl_add_u32 v10, v4, 3, v10
    s_lshl_b32 s46, s18, 5
    s_add_u32 s46, s46, {QB}
    v_add_u32 v10, s46, v10
    s_waitcnt vmcnt(0)
    s_nop 3
    """)
    for rf in range(4):
        a = ACC + 4 * rf
        k(f"v_mul_f32 v14, {f32hex(QSCALE)}, v{ST+2*rf+1}\nv_mul_f32 v15, {f32hex(QSCALE)}, v{ST+2*rf}")
        for r in range(4):
            k(f"v_mul_f32 v{a+r}, v{a+r}, v14\nv_fma_f32 v{a+r}, -v{CS+r}, v15, v{a+r}")
        k(f"v_cvt_pk_bf16_f32 v{a}, v{a}, v{a+1}\nv_cvt_pk_bf16_f32 v{a+1}, v{a+2}, v{a+3}")
        k(f"ds_write_b64 v10, {v2(a)} offset:{rf*2560}")
    k("s_waitcnt lgkmcnt(0)")
    k.label("qrd")
    k("s_barrier")
    k.stamp()
    k(f"""
    ds_read_b64 {v2(QF1)}, v{QA+1}
    ds_read_b64 {v2(QF1+2)}, v{QA+1} offset:8
    ds_read_b64 {v2(QF2)}, v{QA} offset:32
    v_and_b32 v3, 31, v1
    v_lshrrev_b32 v4, 5, v1
    """)
    for b in range(2):
        k(f"v_mov_b32 v{KF[b]+6}, 0x3f803f80\nv_mov_b32 v{KF[b]+7}, 0x00003f80")
    k(f"v_cmp_eq_u32 vcc, 20, v3\nv_mov_b32 v{T+2}, 0x3f803f80\ns_nop 1\nv_cndmask_b32 v{T+2}, 0, v{T+2}, vcc")
    for b in range(2):
        for r in range(8):
            k(f"v_mov_b32 v{VF[b]+r}, v{T+2}")
    for r in range(16):
        k(f"v_mov_b32 v{O+r}, 0")
    for r in range(4, 8):
        k(f"v_mov_b32 v{P+r}, 0")
    k(f"""
    v_cmp_eq_u32 vcc, 0, v4
    s_waitcnt lgkmcnt(0)
    v_cndmask_b32 v{QF2}, 0, v{QF2}, vcc
    v_cndmask_b32 v{QF2+1}, 0, v{QF2+1}, vcc
    v_mov_b32 v{QF2+2}, 0
    v_mov_b32 v{QF2+3}, 0
    v_mov_b32 v{T+3}, 0
    """)
    for r in range(4):
        k(f"v_dot2_f32_bf16 v{T+3}, v{QF1+r}, v{QF1+r}, v{T+3}")
    for r in range(2):
        k(f"v_dot2_f32_bf16 v{T+3}, v{QF2+r}, v{QF2+r}, v{T+3}")
    k(f"""
    s_nop 3
    v_mov_b32 v{T+4}, v{T+3}
    v_mov_b32 v{T+5}, v{T+3}
    s_nop 1
    v_permlane32_swap_b32 v{T+4}, v{T+5}
    s_nop 1
    v_add_f32 v{T+3}, v{T+4}, v{T+5}
    v_mul_f32 v{T+3}, v{T+3}, v{KX}
    v_sqrt_f32 v{T+3}, v{T+3}
    s_nop 0
    v_mul_f32 v{T+3}, {f32hex(1.01)}, v{T+3}
    v_mov_b32 v{T+6}, {f32hex(THRESH)}
    v_cmp_nle_f32 vcc, v{T+3}, v{T+6}
    s_barrier
    s_cbranch_vccnz attn_kernel_slow
    """)
    def set_m():
        k(f"""
        v_xor_b32 v{T+3}, 0x80000000, v{T+3}
        v_and_b32 v{T+4}, 0xffff0000, v{T+3}
        v_sub_f32 v{T+5}, v{T+3}, v{T+4}
        v_and_b32 v{T+6}, 0xffff0000, v{T+5}
        v_sub_f32 v{T+5}, v{T+5}, v{T+6}
        v_lshrrev_b32 v{T+4}, 16, v{T+4}
        v_or_b32 v{T+4}, v{T+4}, v{T+6}
        v_lshrrev_b32 v{T+5}, 16, v{T+5}
        v_cmp_eq_u32 vcc, 0, v4
        s_nop 1
        v_cndmask_b32 v{QF2+2}, 0, v{T+4}, vcc
        v_cndmask_b32 v{QF2+3}, 0, v{T+5}, vcc
        """)
    def kreads(b, blk):
        k(f"ds_read_b128 {v4(KF[b])}, v{AK} offset:{blk*2560}\nds_read_b64 {v2(KF[b]+4)}, v{AK2} offset:{blk*2560+1024}")
    def vreads(b, blk):
        k(f"s_mov_b64 exec, s[40:41]\nds_read_b128 {v4(VF[b])}, v{AV} offset:{blk*2560+1280}\nds_read_b128 {v4(VF[b]+4)}, v{AV} offset:{blk*2560+1920}\ns_mov_b64 exec, -1")
    def pipe_start():
        kreads(0, 0); kreads(1, 1); vreads(0, 0)
        k("s_waitcnt lgkmcnt(4)")
        k(f"v_mfma_f32_32x32x16_bf16 {v16(SA)}, {v4(KF[0])}, {v4(QF1)}, 0")
        k(f"v_mfma_f32_32x32x16_bf16 {v16(SA)}, {v4(KF[0]+4)}, {v4(QF2)}, {v16(SA)}")
        k("s_nop 7\ns_nop 3")
    def E(Sc, a, b):
        for r in range(a, b):
            k(f"v_exp_f32 v{Sc+r}, v{Sc+r}")
    def C(Sc, a, b):
        for p in range(a, b):
            k(f"v_cvt_pk_bf16_f32 v{P+p}, v{Sc+2*p}, v{Sc+2*p+1}")
    def iteration(j, ndma):
        par = j & 1
        Sc, Sn = (SA, SB) if par == 0 else (SB, SA)
        k("s_waitcnt lgkmcnt(0)")
        E(Sc, 0, 2)
        k(f"v_mfma_f32_32x32x16_bf16 {v16(O)}, {v4(VF[1-par]+4)}, {v4(P+4)}, {v16(O)}")
        kreads(par, j + 2)
        vreads(1 - par, j + 1)
        E(Sc, 2, 5)
        k(f"v_mfma_f32_32x32x16_bf16 {v16(Sn)}, {v4(KF[1-par])}, {v4(QF1)}, 0")
        E(Sc, 5, 8); C(Sc, 0, 4); E(Sc, 8, 9)
        k(f"v_mfma_f32_32x32x16_bf16 {v16(Sn)}, {v4(KF[1-par]+4)}, {v4(QF2)}, {v16(Sn)}")
        if ndma >= 1: dma()
        E(Sc, 9, 12)
        k(f"v_mfma_f32_32x32x16_bf16 {v16(O)}, {v4(VF[par])}, {v4(P)}, {v16(O)}")
        if ndma >= 2: dma()
        E(Sc, 12, 16); C(Sc, 4, 8)
    def group(with_dma):
        for j in range(8):
            iteration(j, (2 if j < 7 else 0) if with_dma else 0)
        k(f"v_add_u32 v{AK}, 20480, v{AK}\nv_add_u32 v{AK2}, 20480, v{AK2}\nv_add_u32 v{AV}, 20480, v{AV}")
    def copy_loads():
        pass
    set_m()
    k.stamp()
    pipe_start()
    group(True)
    k.stamp()
    k("s_waitcnt vmcnt(0)\ns_barrier")
    k.stamp()
    copy_loads()
    k("s_mov_b32 s42, 7\ns_branch attn_kernel_loop")
    k.label("slow")
    for i in range(14):
        dma()
    k("s_waitcnt vmcnt(0)\ns_barrier")
    copy_loads()
    k(f"v_mov_b32 v{T+3}, 0xff800000\ns_mov_b32 s42, 64")
    k.label("maxloop")
    kreads(0, 0)
    k(f"v_add_u32 v{AK}, 2560, v{AK}\nv_add_u32 v{AK2}, 2560, v{AK2}\ns_waitcnt lgkmcnt(0)")
    k(f"v_mfma_f32_32x32x16_bf16 {v16(SA)}, {v4(KF[0])}, {v4(QF1)}, 0")
    k(f"v_mfma_f32_32x32x16_bf16 {v16(SA)}, {v4(KF[0]+4)}, {v4(QF2)}, {v16(SA)}")
    k("s_nop 15\ns_nop 3")
    for r in range(0, 16, 2):
        k(f"v_max3_f32 v{T+3}, v{SA+r}, v{SA+r+1}, v{T+3}")
    k("s_sub_u32 s42, s42, 1\ns_cmp_lg_u32 s42, 0\ns_cbranch_scc1 attn_kernel_maxloop")
    k(f"""
    v_mov_b32 v{T+4}, v{T+3}
    v_mov_b32 v{T+5}, v{T+3}
    s_nop 1
    v_permlane32_swap_b32 v{T+4}, v{T+5}
    s_nop 1
    v_max_f32 v{T+3}, v{T+4}, v{T+5}
    v_lshlrev_b32 v{AK}, 4, v1
    v_lshlrev_b32 v{AK2}, 3, v3
    """)
    set_m()
    pipe_start()
    k("s_mov_b32 s42, 8")
    k.label("loop")
    if os.environ.get("PRIO") is not None:
        k(f"s_lshr_b32 s43, s18, 2\ns_add_u32 s43, s43, s42\ns_and_b32 s43, s43, 1\ns_cmp_eq_u32 s43, 0\ns_cbranch_scc1 attn_kernel_p0\ns_setprio 1\ns_branch attn_kernel_p1")
        k.label("p0")
        k("s_setprio 0")
        k.label("p1")
    group(False)
    k("s_sub_u32 s42, s42, 1\ns_cmp_lg_u32 s42, 0\ns_cbranch_scc1 attn_kernel_loop")
    k.stamp()
    k("s_nop 1")
    k(f"v_mfma_f32_32x32x16_bf16 {v16(O)}, {v4(VF[1]+4)}, {v4(P+4)}, {v16(O)}")
    k("s_nop 15\ns_nop 3")
    k(f"""
    v_mov_b32 v{T}, v{O+8}
    v_mov_b32 v{T+1}, v{O+8}
    s_nop 1
    v_permlane32_swap_b32 v{T}, v{T+1}
    s_nop 1
    v_rcp_f32 v{T+1}, v{T+1}
    s_nop 0
    """)
    for r in range(12):
        k(f"v_mul_f32 v{O+r}, v{O+r}, v{T+1}")
    for p in range(6):
        k(f"v_cvt_pk_bf16_f32 v{P+p}, v{O+2*p}, v{O+2*p+1}")
    k(f"""
    buffer_store_dwordx2 {v2(P)}, v{VO}, s[32:35], s19 offen
    buffer_store_dwordx2 {v2(P+2)}, v{VO}, s[32:35], s19 offen offset:16
    s_mov_b32 exec_hi, 0
    buffer_store_dwordx2 {v2(P+4)}, v{VO}, s[32:35], s19 offen offset:32
    """)
    k.finish(1)
    return k, "grid=(256,1,1) block=(512,1,1) lds=163840"

def gen_k3():
    k = K("oproj_kernel", 128)
    XR, WR = ST, ST + 8
    EXS = 3 * SLOT
    k("""
    s_cmp_ge_u32 s2, 256
    s_cbranch_scc1 oproj_kernel_exit
    s_load_dwordx2 s[4:5], s[0:1], 0
    s_load_dwordx2 s[12:13], s[0:1], 96
    s_load_dwordx2 s[14:15], s[0:1], 48
    """)
    gemm_ids(k)
    k("s_waitcnt lgkmcnt(0)")
    k.diag_start(2)
    k.stamp()
    k.srd_off(20, 12, WS_O, MATB)
    k(f"""
    s_mul_i32 s44, s16, 102400
    s_add_u32 s44, s44, {WS_WO}
    s_add_u32 s24, s12, s44
    s_addc_u32 s25, s13, 0
    s_mov_b32 s26, 102400
    s_mov_b32 s27, 0x00020000
    """)
    k.srd(28, 4, MATB)
    k.srd(32, 14, 1280)
    k.srd_off(36, 12, WS_H, MATB)
    k.srd_off(40, 12, WS_ST, 32768)
    n0 = k.nst
    k("""
    s_cmp_lt_u32 s18, 5
    s_cbranch_scc0 oproj_kernel_idle
    s_lshl_b32 s45, s17, 6
    v_add_u32 v5, s45, v3
    v_mul_u32_u24 v10, 1280, v5
    v_lshl_add_u32 v10, v4, 3, v10
    v_lshlrev_b32 v11, 3, v4
    s_mul_i32 s59, s16, 160
    s_lshl_b32 s46, s18, 5
    s_add_u32 s59, s59, s46
    s_mov_b32 s44, s59
    """)
    for rf in range(4):
        k(f"buffer_load_dwordx2 {v2(XR+2*rf)}, v10, s[28:31], s44 offen\ns_add_u32 s44, s44, 20480")
    k(f"buffer_load_dwordx2 {v2(WR)}, v11, s[32:35], s59 offen")
    gemm_mm(k, False, 0)
    k("s_waitcnt vmcnt(0)")
    k("s_nop 7\nv_mov_b32 v15, 0x3f803f80\ns_mov_b32 s44, s59")
    for rf in range(4):
        a = ACC + 4 * rf
        S = TMP + 4 * rf
        k(f"v_cvt_pk_bf16_f32 v{a}, v{a}, v{a+1}\nv_cvt_pk_bf16_f32 v{a+1}, v{a+2}, v{a+3}")
        k(f"v_mov_b32 v{S}, 0\nv_mov_b32 v{S+1}, 0\nv_mov_b32 v{S+2}, 0\nv_mov_b32 v{S+3}, 0")
        for h in range(2):
            k(f"""
            v_lshlrev_b32 v12, 16, v{a+h}
            v_and_b32 v13, 0xffff0000, v{a+h}
            v_lshlrev_b32 v6, 16, v{XR+2*rf+h}
            v_and_b32 v7, 0xffff0000, v{XR+2*rf+h}
            v_add_f32 v12, v12, v6
            v_add_f32 v13, v13, v7
            v_cvt_pk_bf16_f32 v{a+h}, v12, v13
            """)
            k(f"v_dot2_f32_bf16 v{S}, v{a+h}, v15, v{S}\nv_dot2_f32_bf16 v{S+1}, v{a+h}, v{a+h}, v{S+1}\nv_dot2_f32_bf16 v{S+2}, v{a+h}, v{WR+h}, v{S+2}")
        k(f"buffer_store_dwordx2 {v2(a)}, v10, s[36:39], s44 offen\ns_add_u32 s44, s44, 20480")
    k("s_nop 3")
    red_g(k, [TMP + 4 * rf + i for rf in range(4) for i in range(3)], 16)
    k("""
    v_lshlrev_b32 v14, 4, v3
    v_lshl_add_u32 v14, v4, 2, v14
    s_lshl_b32 s44, s17, 10
    v_cmp_eq_u32 vcc, 1, v4
    v_cmp_eq_u32 s[46:47], 2, v4
    v_cmp_eq_u32 s[48:49], 3, v4
    s_nop 1
    """)
    for rf in range(4):
        S = TMP + 4 * rf
        k(f"v_cndmask_b32 v{S}, v{S}, v{S+1}, vcc\nv_cndmask_b32 v{S}, v{S}, v{S+2}, s[46:47]\nv_cndmask_b32 v{S}, v{S}, v{S+3}, s[48:49]")
        k(f"buffer_atomic_add_f32 v{S}, v14, s[40:43], s44 offen offset:{rf*256}")
    k("s_branch oproj_kernel_end")
    k.label("idle")
    for lw in range(3):
        if lw < 2:
            k(f"s_cmp_eq_u32 s18, {5+lw}\ns_cbranch_scc0 oproj_kernel_ld{lw+1}")
        k.nst = n0
        gemm_loader(k, lw, True, 0, 20480)
        if lw < 2:
            k("s_branch oproj_kernel_end")
            k.label(f"ld{lw+1}")
    k.finish(2)
    return k, "grid=(256,1,1) block=(512,1,1) lds=%d" % (3 * SLOT)

def row_stats(k, s0, s1, s2, mean, rstd, r=None, wsum=None):
    k(f"""
    v_mul_f32 v{mean}, {f32hex(1/640)}, v{s0}
    v_mul_f32 v{rstd}, {f32hex(1/640)}, v{s1}
    v_fma_f32 v{rstd}, -v{mean}, v{mean}, v{rstd}
    v_max_f32 v{rstd}, 0, v{rstd}
    v_add_f32 v{rstd}, {f32hex(1e-5)}, v{rstd}
    v_rsq_f32 v{rstd}, v{rstd}
    """)
    if r is not None:
        k(f"v_fma_f32 v{r}, -v{mean}, v{wsum}, v{s2}\nv_mul_f32 v{r}, v{r}, v{rstd}")

NFB = 40
def gen_k4():
    k = K("ffn_kernel", 128)
    NTOT = NFF + NFB + 128
    SS = 88
    k(f"""
    s_cmp_ge_u32 s2, {NTOT}
    s_cbranch_scc1 ffn_kernel_exit
    s_load_dwordx4 s[8:11], s[0:1], 80
    s_load_dwordx2 s[12:13], s[0:1], 96
    s_waitcnt lgkmcnt(0)
    """)
    k.diag_start(3)
    k.stamp()
    k.srd_off(20, 12, WS_H, MATB)
    k.srd_off(24, 12, WS_ST, 32768)
    k.srd_off(40, 12, WS_SEL, 64)
    k.srd(28, 8, MATB)
    k.srd(48, 10, 256)
    k.srd_off(44, 12, WS_A, 1728 * 4)
    k("v_lshlrev_b32 v1, 4, v0")
    for i in range(8):
        k(f"v_add_u32 v2, {4096*i}, v1\nbuffer_load_dwordx3 v[{SS+4*i}:{SS+2+4*i}], v2, s[24:27], 0 offen")
    k("v_mov_b32 v2, 0\nbuffer_load_dword v125, v2, s[40:43], 0 offen offset:32")
    def argmax(nyounger):
        k(f"s_waitcnt vmcnt({nyounger})")
        k("v_mov_b32 v7, 0")
        for i in range(8):
            b = SS + 4 * i
            row_stats(k, b, b + 1, b + 2, 8, 9, 10, 125)
            k(f"""
            v_ashrrev_i32 v11, 31, v10
            v_or_b32 v11, 0x80000000, v11
            v_xor_b32 v11, v11, v10
            v_and_b32 v11, 0xfffff800, v11
            v_sub_u32 v12, {2047 - 256*i}, v0
            v_or_b32 v11, v11, v12
            v_max_u32 v7, v7, v11
            """)
        for ror in (8, 4, 2, 1):
            k(f"s_nop 1\nv_max_u32_dpp v7, v7, v7 row_ror:{ror} row_mask:0xf bank_mask:0xf")
        k("""
        v_lshrrev_b32 v8, 4, v0
        v_lshlrev_b32 v8, 2, v8
        ds_write_b32 v8, v7
        s_waitcnt lgkmcnt(0)
        s_barrier
        v_mov_b32 v8, 0
        ds_read_b128 v[8:11], v8
        v_mov_b32 v12, 0
        ds_read_b128 v[12:15], v12 offset:16
        v_mov_b32 v2, 0
        ds_read_b128 v[2:5], v2 offset:32
        v_mov_b32 v120, 0
        ds_read_b128 v[120:123], v120 offset:48
        s_waitcnt lgkmcnt(0)
        v_max3_u32 v7, v8, v9, v10
        v_max3_u32 v7, v11, v12, v7
        v_max3_u32 v7, v13, v14, v7
        v_max3_u32 v7, v15, v2, v7
        v_max3_u32 v7, v3, v4, v7
        v_max3_u32 v7, v5, v120, v7
        v_max3_u32 v7, v121, v122, v7
        v_max_u32 v7, v123, v7
        v_and_b32 v7, 0x7ff, v7
        v_sub_u32 v7, 2047, v7
        s_nop 0
        v_readfirstlane_b32 s18, v7
        s_nop 3
        s_lshl_b32 s19, s18, 4
        s_mul_i32 s50, s18, 1280
        """.replace("s_mul_i32 s50, s18, 1280", "s_mul_i32 s53, s18, 1280"))
    def gemv_reduce(AC, nacc):
        for ror in (8, 4, 2):
            k("s_nop 1")
            for r in range(nacc):
                k(f"v_add_f32_dpp v{AC+r}, v{AC+r}, v{AC+r} row_ror:{ror} row_mask:0xf bank_mask:0xf")
        k(f"""
        v_lshrrev_b32 v12, 4, v0
        v_lshlrev_b32 v12, 7, v12
        v_and_b32 v13, 1, v0
        v_lshl_add_u32 v12, v13, 6, v12
        s_mov_b32 s52, 0x00030003
        s_mov_b32 exec_lo, s52
        s_mov_b32 exec_hi, s52
        """)
        for q in range(nacc // 4):
            k(f"ds_write_b128 v12, {v4(AC+4*q)} offset:{64+16*q}")
        k("s_mov_b64 exec, -1\ns_waitcnt lgkmcnt(0)\ns_barrier")
        k("""
        v_and_b32 v13, 7, v0
        v_bfe_u32 v12, v0, 3, 1
        v_lshlrev_b32 v12, 6, v12
        v_lshl_add_u32 v12, v13, 2, v12
        """)
    k(f"s_cmp_lt_u32 s2, {NFF}\ns_cbranch_scc1 ffn_kernel_ffa\ns_cmp_lt_u32 s2, {NFF+NFB}\ns_cbranch_scc1 ffn_kernel_ffb")
    k(f"""
    s_sub_u32 s16, s2, {NFF+NFB}
    s_add_u32 s17, s16, {(NFF+NFB) % 8}
    s_and_b32 s17, s17, 7
    s_lshl_b32 s17, s17, 4
    s_lshr_b32 s16, s16, 3
    s_add_u32 s16, s16, s17
    s_mul_i32 s17, s16, 20480
    s_lshl_b32 s51, s16, 8
    s_lshl_b32 s16, s16, 4
    """)
    for i in range(5):
        k(f"v_add_u32 v{60+i}, {4096*i}, v1\nbuffer_load_dwordx4 {v4(16+4*i)}, v{60+i}, s[20:23], s17 offen")
    for i in range(5):
        k(f"""
        v_add_u32 v{66+i}, {256*i}, v0
        v_mul_u32_u24 v{66+i}, 3277, v{66+i}
        v_lshrrev_b32 v{66+i}, 18, v{66+i}
        v_lshlrev_b32 v72, 4, v{66+i}
        buffer_load_dwordx2 {v2(40+2*i)}, v72, s[24:27], s51 offen
        """)
    argmax(10)
    k("s_sub_u32 s18, s18, s16\nv_mov_b32 v73, 0x40000000\ns_waitcnt vmcnt(0)")
    for i in range(5):
        row_stats(k, 40 + 2 * i, 41 + 2 * i, None, 52, 53)
        k(f"v_cmp_eq_u32 vcc, s18, v{66+i}\nv_mul_f32 v52, v52, v53\ns_nop 0")
        k(f"v_cndmask_b32 v{60+i}, v{60+i}, v73, vcc")
        for d in range(4):
            r = 16 + 4 * i + d
            k(f"""
            v_lshlrev_b32 v54, 16, v{r}
            v_and_b32 v55, 0xffff0000, v{r}
            v_fma_f32 v56, v54, v53, -v52
            v_fma_f32 v57, v55, v53, -v52
            v_cvt_pk_bf16_f32 v56, v56, v57
            v_lshlrev_b32 v57, 16, v56
            v_and_b32 v56, 0xffff0000, v56
            v_add_f32 v54, v54, v57
            v_add_f32 v55, v55, v56
            v_cvt_pk_bf16_f32 v{r}, v54, v55
            """)
        k(f"buffer_store_dwordx4 {v4(16+4*i)}, v{60+i}, s[28:31], s17 offen")
    k("s_branch ffn_kernel_end")
    k.label("ffa")
    G, U, HX, AC = 16, 36, 56, 64
    k.srd_off(32, 12, WS_FW, NFF * 40960)
    k("s_mul_i32 s16, s2, 40960")
    for i in range(5):
        k(f"s_add_u32 s17, s16, {i*4096}\nbuffer_load_dwordx4 {v4(G+4*i)}, v1, s[32:35], s17 offen\ns_add_u32 s17, s16, {20480+i*4096}\nbuffer_load_dwordx4 {v4(U+4*i)}, v1, s[32:35], s17 offen")
    k.stamp()
    argmax(10)
    k.stamp()
    k(f"v_mov_b32 v2, 0\nbuffer_load_dwordx3 v[{SS}:{SS+2}], v2, s[24:27], s19 offen\nv_and_b32 v8, 0xfe, v0")
    for i in range(5):
        k(f"buffer_load_ushort v{HX+i}, v8, s[20:23], s53 offen offset:{256*i}")
    k("s_waitcnt vmcnt(5)")
    row_stats(k, SS, SS + 1, SS + 2, 8, 9)
    k("s_nop 0\nv_mul_f32 v11, v8, v9\ns_waitcnt vmcnt(0)")
    for i in range(5):
        k(f"v_lshlrev_b32 v{HX+i}, 16, v{HX+i}\nv_fma_f32 v{HX+i}, v{HX+i}, v9, -v11\nv_cvt_pk_bf16_f32 v{HX+i}, v{HX+i}, v{HX+i}\nv_lshlrev_b32 v{HX+i}, 16, v{HX+i}")
    k.stamp()
    for r in range(16):
        k(f"v_mov_b32 v{AC+r}, 0")
    for i in range(5):
        for (src, acc) in ((G, AC), (U, AC + 8)):
            for d in range(4):
                s_ = src + 4 * i + d
                k(f"v_lshlrev_b32 v12, 16, v{s_}\nv_and_b32 v13, 0xffff0000, v{s_}\nv_fmac_f32 v{acc+2*d}, v12, v{HX+i}\nv_fmac_f32 v{acc+2*d+1}, v13, v{HX+i}")
    k.stamp()
    gemv_reduce(AC, 16)
    k("s_cmp_lt_u32 s2, 0x7fffffff\nv_cmp_gt_u32 vcc, 64, v0\ns_cbranch_vccz ffn_kernel_end")
    for rr in range(16):
        k(f"ds_read_b32 v{16+rr}, v12 offset:{64+128*rr}\nds_read_b32 v{32+rr}, v12 offset:{96+128*rr}")
    k("s_waitcnt lgkmcnt(0)")
    for st in (8, 4, 2, 1):
        for rr in range(st):
            k(f"v_add_f32 v{16+rr}, v{16+rr}, v{16+rr+st}\nv_add_f32 v{32+rr}, v{32+rr}, v{32+rr+st}")
    k(f"""
    v_cvt_pk_bf16_f32 v16, v16, v32
    v_and_b32 v20, 0xffff0000, v16
    v_lshlrev_b32 v16, 16, v16
    v_mul_f32 v17, {f32hex(-1.4426950408889634)}, v16
    v_exp_f32 v17, v17
    s_nop 0
    v_add_f32 v17, 1.0, v17
    v_rcp_f32 v17, v17
    s_nop 0
    v_mul_f32 v16, v16, v17
    v_cvt_pk_bf16_f32 v16, v16, v16
    v_lshlrev_b32 v16, 16, v16
    v_mul_f32 v16, v16, v20
    v_cvt_pk_bf16_f32 v16, v16, v16
    v_lshlrev_b32 v16, 16, v16
    v_lshlrev_b32 v12, 2, v0
    s_lshl_b32 s16, s2, 6
    s_mov_b64 exec, 0xffff
    buffer_store_dword v16, v12, s[44:47], s16 offen sc1
    s_mov_b64 exec, -1
    s_branch ffn_kernel_end
    """)
    k.label("ffb")
    D, AV_, AC = 16, 72, 104
    k.srd_off(32, 12, WS_WD, 40 * 55296)
    k(f"s_sub_u32 s16, s2, {NFF}\ns_mul_i32 s17, s16, 55296\nv_cmp_gt_u32 vcc, 128, v0\nv_mov_b32 v2, 0x40000000\ns_nop 1\nv_cndmask_b32 v6, v2, v1, vcc")
    for i in range(14):
        k(f"buffer_load_dwordx4 {v4(D+4*i)}, v{6 if i == 13 else 1}, s[32:35], s17 offen\ns_add_u32 s17, s17, 4096")
    argmax(14)
    k(f"v_mov_b32 v2, 0\nbuffer_load_dwordx3 v[{SS}:{SS+2}], v2, s[24:27], s19 offen")
    k("v_and_b32 v3, 15, v0\nv_lshlrev_b32 v3, 1, v3\ns_lshl_b32 s17, s16, 5\ns_add_u32 s53, s53, s17\nbuffer_load_ushort v124, v3, s[20:23], s53 offen")
    k("s_waitcnt vmcnt(1)")
    row_stats(k, SS, SS + 1, SS + 2, 8, 9, 10, 125)
    k(f"""
    s_nop 0
    v_cvt_pk_bf16_f32 v10, v10, v10
    v_lshlrev_b32 v10, 16, v10
    v_mul_f32 v11, {f32hex(-1.4426950408889634)}, v10
    v_exp_f32 v11, v11
    s_nop 0
    v_add_f32 v11, 1.0, v11
    v_rcp_f32 v11, v11
    s_nop 0
    v_cvt_pk_bf16_f32 v11, v11, v11
    v_lshlrev_b32 v11, 16, v11
    s_mov_b32 s17, 0
    """)
    k.stamp()
    k("v_lshrrev_b32 v4, 1, v0\nv_lshlrev_b32 v4, 2, v4")
    k.label("poll")
    for i in range(14):
        k(f"s_mov_b32 s16, {512*i}\nbuffer_load_dword v{AV_+i}, v4, s[44:47], s16 offen sc1")
    k("s_waitcnt vmcnt(0)")
    k(f"v_and_b32 v5, v{AV_}, v{AV_+1}")
    k(f"v_max_u32 v5, v{AV_}, v{AV_+1}")
    for i in range(2, 14, 2):
        k(f"v_max3_u32 v5, v{AV_+i}, v{AV_+i+1}, v5")
    k(f"""
    v_cmp_eq_u32 vcc, -1, v5
    s_add_u32 s17, s17, 1
    s_cbranch_vccz ffn_kernel_go
    s_cmp_lt_u32 s17, 0x100000
    s_cbranch_scc0 ffn_kernel_go
    s_sleep 2
    s_branch ffn_kernel_poll
    """)
    k.label("go")
    k.stamp()
    for r in range(8):
        k(f"v_mov_b32 v{AC+r}, 0")
    for i in range(14):
        for d in range(4):
            s_ = D + 4 * i + d
            k(f"v_lshlrev_b32 v12, 16, v{s_}\nv_and_b32 v13, 0xffff0000, v{s_}\nv_fmac_f32 v{AC+2*d}, v12, v{AV_+i}\nv_fmac_f32 v{AC+2*d+1}, v13, v{AV_+i}")
    gemv_reduce(AC, 8)
    k("v_cmp_gt_u32 vcc, 64, v0\ns_cbranch_vccz ffn_kernel_end")
    for rr in range(16):
        k(f"ds_read_b32 v{16+rr}, v12 offset:{64+128*rr}")
    k("s_waitcnt lgkmcnt(0)")
    for st in (8, 4, 2, 1):
        for rr in range(st):
            k(f"v_add_f32 v{16+rr}, v{16+rr}, v{16+rr+st}")
    k("""
    v_cvt_pk_bf16_f32 v16, v16, v16
    v_lshlrev_b32 v16, 16, v16
    v_mul_f32 v16, v16, v11
    v_cvt_pk_bf16_f32 v16, v16, v16
    v_lshlrev_b32 v16, 16, v16
    v_lshlrev_b32 v124, 16, v124
    v_sub_f32 v10, v124, v8
    v_mul_f32 v10, v10, v9
    v_cvt_pk_bf16_f32 v10, v10, v10
    v_lshlrev_b32 v10, 16, v10
    v_add_f32 v10, v10, v16
    v_cvt_pk_bf16_f32 v10, v10, v10
    v_lshlrev_b32 v10, 16, v10
    v_add_f32 v10, v10, v124
    v_cvt_pk_bf16_f32 v10, v10, v10
    s_mov_b64 exec, 0xffff
    buffer_store_short v10, v3, s[28:31], s53 offen
    s_mov_b64 exec, -1
    """)
    k.finish(3)
    return k, f"grid=({NTOT},1,1) block=(256,1,1) lds=4096"

def main():
    ks = [gen_k1(), gen_k2(), gen_k3(), gen_k4()]
    out = "; generated by dev/gen7.py (hand-written generator)\n"
    for k, l in ks:
        out += f"; @launch kernel={k.name} {l}\n"
    out += '.amdgcn_target "amdgcn-amd-amdhsa--gfx950"\n.text\n'
    for k, l in ks:
        out += k.text()
    out += '.section .rodata,"a"\n'
    for k, l in ks:
        out += ".p2align 6\n" + k.desc()
    path = sys.argv[1] if len(sys.argv) > 1 else f"cdna_kernels/{NAME}.s"
    open(path, "w").write(out)
    print("wrote", path, len(out))

main()
```

```python
import sys, struct, os
STAMP = os.environ.get("STAMP", "0") == "1"
DIAG = os.environ.get("DIAG", "0") == "1"
NAME = "sequential_preLN__grouped_kv_mqa__moe_arch_mod__prompt"
WS_Q, WS_KV, WS_O, WS_H, WS_ST, WS_KM, WS_YP, WS_SEL = 0, 0x400000, 0x800000, 0xC00000, 0x1000000, 0x1100000, 0x1200000, 0x1300000
WS_FW, WS_WO, WS_WD, WS_A, WS_WQ = 0x1400000, 0x1900000, 0x1A00000, 0x1D00000, 0x1E00000
MATB = 2048 * 1280
QSCALE = (20 ** -0.5) * 1.4426950408889634
NFF = 108

def f32hex(x):
    return "0x%08x" % struct.unpack("<I", struct.pack("<f", x))[0]

class K:
    def __init__(self, name, vgpr, sgpr=96):
        self.name, self.vgpr, self.sgpr = name, vgpr, sgpr
        self.lines = []
        self.nst = 0
    def __call__(self, s):
        for l in s.strip().split("\n"):
            if l.strip():
                self.lines.append("    " + l.strip())
    def label(self, s):
        self.lines.append(f"{self.name}_{s}:")
    def srd(self, d, b, size):
        self(f"s_mov_b32 s{d}, s{b}\ns_mov_b32 s{d+1}, s{b+1}\ns_mov_b32 s{d+2}, {size}\ns_mov_b32 s{d+3}, 0x00020000")
    def srd_off(self, d, b, off, size):
        self(f"s_add_u32 s{d}, s{b}, {off}\ns_addc_u32 s{d+1}, s{b+1}, 0\ns_mov_b32 s{d+2}, {size}\ns_mov_b32 s{d+3}, 0x00020000")
    def stamp(self, real=False):
        if not STAMP: return
        i = self.nst; self.nst += 1
        self(f"{'s_memrealtime' if real else 's_memtime'} s[{60+2*i}:{61+2*i}]")
    def diag_start(self, kid):
        if not DIAG: return
        self(f"s_load_dwordx2 s[84:85], s[0:1], 88\ns_memrealtime s[86:87]\ns_waitcnt lgkmcnt(0)\ns_add_u32 s84, s84, {512*(3-kid)}\ns_addc_u32 s85, s85, 0")
    def finish(self, kid, wsreg=12):
        self.label("end")
        self.stamp()
        if DIAG:
            self(f"""
            s_memrealtime s[88:89]
            s_waitcnt lgkmcnt(0) vmcnt(0)
            s_and_b32 s90, s2, 7
            s_cmp_eq_u32 s90, 3
            s_cbranch_scc0 {self.name}_exit
            s_mov_b64 exec, 1
            s_mov_b32 s92, s84
            s_mov_b32 s93, s85
            s_mov_b32 s94, 256
            s_mov_b32 s95, 0x00020000
            v_mov_b32 v1, 0
            v_mov_b32 v2, s88
            buffer_atomic_umax v2, v1, s[92:95], 0 offen offset:{8*kid+4} sc1
            v_not_b32 v3, s86
            buffer_atomic_umax v3, v1, s[92:95], 0 offen offset:{8*kid} sc1
            """)
        if STAMP:
            self(f"s_waitcnt lgkmcnt(0)\ns_mov_b64 exec, 1")
            self.srd_off(92, wsreg, 0x2000000 + kid * 0x100000, 0x100000)
            self("v_lshrrev_b32 v1, 6, v0\ns_lshl_b32 s90, s2, 4\nv_add_u32 v1, s90, v1\nv_lshlrev_b32 v1, 6, v1")
            for i in range(self.nst):
                self(f"v_mov_b32 v2, s{60+2*i}\nbuffer_store_dword v2, v1, s[92:95], 0 offen offset:{4*i}")
        self.label("exit")
        self("s_endpgm")
    def text(self):
        return (f".globl {self.name}\n.p2align 8\n.type {self.name},@function\n{self.name}:\n" + "\n".join(self.lines) + "\n")
    def desc(self):
        acc = (self.vgpr + 3) // 4 * 4
        return (f".amdhsa_kernel {self.name}\n  .amdhsa_next_free_vgpr {self.vgpr}\n  .amdhsa_next_free_sgpr {self.sgpr}\n"
                f"  .amdhsa_accum_offset {acc}\n  .amdhsa_group_segment_fixed_size 0\n  .amdhsa_kernarg_size 104\n"
                f"  .amdhsa_user_sgpr_count 2\n  .amdhsa_user_sgpr_kernarg_segment_ptr 1\n  .amdhsa_system_sgpr_workgroup_id_x 1\n"
                f".end_amdhsa_kernel\n")

def v4(b): return f"v[{b}:{b+3}]"
def v2(b): return f"v[{b}:{b+1}]"
def v16(b): return f"v[{b}:{b+15}]"

def red_g(k, regs, tmp, op="add"):
    ins = "v_add_f32" if op == "add" else "v_max_f32"
    for i, r in enumerate(regs):
        k(f"ds_swizzle_b32 v{tmp+i}, v{r} offset:0x401F")
    k("s_waitcnt lgkmcnt(0)")
    for i, r in enumerate(regs):
        k(f"{ins} v{r}, v{r}, v{tmp+i}\nv_mov_b32 v{tmp+i}, v{r}")
    k("s_nop 1")
    for i, r in enumerate(regs):
        k(f"v_permlane32_swap_b32 v{tmp+i}, v{r}")
    k("s_nop 1")
    for i, r in enumerate(regs):
        k(f"{ins} v{r}, v{r}, v{tmp+i}")

def ln_fin(k, m, r):
    k(f"""
    v_mul_f32 v{m}, {f32hex(1/640)}, v{m}
    v_mul_f32 v{r}, {f32hex(1/640)}, v{r}
    v_fma_f32 v{r}, -v{m}, v{m}, v{r}
    v_max_f32 v{r}, 0, v{r}
    v_add_f32 v{r}, {f32hex(1e-5)}, v{r}
    v_rsq_f32 v{r}, v{r}
    s_nop 0
    v_mul_f32 v{m}, v{m}, v{r}
    """)

def gen_k1():
    k = K("kv_kernel", 96)
    WK_OFF, WV_OFF = 20480, 20480 + 28672
    XF, WF, ACC, CS, ONES, ST, TMP = 16, 24, 32, 36, 40, 44, 52
    k("""
    s_cmp_ge_u32 s2, 386
    s_cbranch_scc1 kv_kernel_exit
    s_cmp_ge_u32 s2, 128
    s_cbranch_scc1 kv_kernel_cpy
    s_load_dwordx2 s[4:5], s[0:1], 0
    s_load_dwordx4 s[8:11], s[0:1], 16
    s_load_dwordx2 s[12:13], s[0:1], 96
    s_load_dwordx2 s[14:15], s[0:1], 48
    v_and_b32 v1, 63, v0
    v_lshrrev_b32 v2, 6, v0
    s_and_b32 s17, s2, 7
    s_lshl_b32 s17, s17, 4
    s_lshr_b32 s44, s2, 3
    s_add_u32 s17, s17, s44
    v_readfirstlane_b32 s18, v2
    v_and_b32 v3, 15, v1
    v_lshrrev_b32 v4, 4, v1
    s_waitcnt lgkmcnt(0)
    """)
    k.diag_start(0)
    k.stamp()
    k.srd(20, 4, MATB)
    k.srd(24, 8, 25600)
    k.srd(28, 10, 25600)
    k("s_mul_i32 s45, s17, 20480\ns_mul_i32 s46, s18, 320\ns_mul_i32 s48, s18, 5120")
    for j in range(5):
        k(f"""
        v_add_u32 v6, s46, v1
        v_add_u32 v6, {64*j}, v6
        v_mul_u32_u24 v7, 3277, v6
        v_lshrrev_b32 v7, 18, v7
        v_mul_u32_u24 v8, 80, v7
        v_sub_u32 v8, v6, v8
        v_xor_b32 v8, v8, v7
        v_mul_u32_u24 v7, 1280, v7
        v_lshl_add_u32 v7, v8, 4, v7
        s_mov_b32 m0, s48
        s_add_u32 s48, s48, 1024
        buffer_load_dwordx4 v7, s[20:23], s45 offen lds
        """)
    k(f"v_lshlrev_b32 v7, 4, v1\ns_lshl_b32 s47, s18, 10\ns_add_u32 s48, s47, {WK_OFF}")
    for j in range(7):
        k(f"s_mov_b32 m0, s48\ns_add_u32 s49, s48, 28672\nbuffer_load_dwordx4 v7, s[24:27], s47 offen lds\ns_mov_b32 m0, s49\ns_add_u32 s48, s48, 4096\nbuffer_load_dwordx4 v7, s[28:31], s47 offen lds\ns_add_u32 s47, s47, 4096")
    k(f"""
    v_mul_u32_u24 v9, 1280, v3
    v_and_b32 v6, 3, v3
    v_xor_b32 v6, v6, v4
    v_lshl_add_u32 v9, v6, 4, v9
    v_and_b32 v10, 12, v3
    v_lshrrev_b32 v12, 2, v1
    v_and_b32 v12, 3, v12
    v_lshl_add_u32 v12, v4, 3, v12
    v_and_b32 v13, 3, v1
    v_mul_u32_u24 v11, 40, v12
    v_lshl_add_u32 v11, v13, 3, v11
    s_lshr_b32 s46, s18, 1
    s_mul_i32 s46, s46, 28672
    s_and_b32 s47, s18, 1
    s_lshl_b32 s47, s47, 5
    s_add_u32 s46, s46, s47
    s_add_u32 s46, s46, {WK_OFF}
    v_add_u32 v11, s46, v11
    """)
    for q in range(4):
        k(f"v_xor_b32 v6, {4*q}, v10\nv_lshl_add_u32 v{TMP+8+q}, v6, 4, v9")
    for i in range(4):
        k(f"v_mov_b32 v{ONES+i}, 0x3f803f80\nv_mov_b32 v{ST+i}, 0")
    k.srd_off(36, 12, WS_KV, 163840)
    k.stamp()
    k("s_waitcnt vmcnt(0)\ns_barrier")
    k.stamp()
    def reads(ks, b):
        k(f"ds_read_b128 {v4(XF+4*b)}, v{TMP+8+(ks&3)} offset:{(ks>>2)*256}")
        for h in range(2):
            k(f"ds_read_b64_tr_b16 {v2(WF+4*b+2*h)}, v11 offset:{ks*1280+h*160}")
    reads(0, 0)
    for ks in range(20):
        if ks < 19:
            reads(ks + 1, (ks + 1) & 1)
            k("s_waitcnt lgkmcnt(3)")
        else:
            k("s_waitcnt lgkmcnt(0)")
        b = ks & 1
        k(f"v_mfma_f32_16x16x32_bf16 {v4(ACC)}, {v4(WF+4*b)}, {v4(XF+4*b)}, {'0' if ks == 0 else v4(ACC)}")
        k(f"v_mfma_f32_16x16x32_bf16 {v4(CS)}, {v4(WF+4*b)}, {v4(ONES)}, {'0' if ks == 0 else v4(CS)}")
        for d in range(4):
            k(f"v_dot2_f32_bf16 v{ST+(d&1)}, v{XF+4*b+d}, v{ONES}, v{ST+(d&1)}\nv_dot2_f32_bf16 v{ST+2+(d&1)}, v{XF+4*b+d}, v{XF+4*b+d}, v{ST+2+(d&1)}")
    k.stamp()
    k(f"s_nop 7\nv_add_f32 v{ST}, v{ST}, v{ST+1}\nv_add_f32 v{ST+1}, v{ST+2}, v{ST+3}")
    red_g(k, [ST, ST + 1], TMP)
    ln_fin(k, ST, ST + 1)
    k.srd_off(40, 12, WS_Q, 16384)
    k(f"""
    s_cmp_eq_u32 s18, 3
    s_cbranch_scc0 kv_kernel_nost
    s_lshl_b32 s46, s17, 7
    v_lshlrev_b32 v14, 3, v3
    s_mov_b64 exec, 0xffff
    buffer_store_dwordx2 {v2(ST)}, v14, s[40:43], s46 offen
    s_mov_b64 exec, -1
    """)
    k.label("nost")
    for r in range(4):
        k(f"v_mul_f32 v{ACC+r}, v{ACC+r}, v{ST+1}\nv_fma_f32 v{ACC+r}, -v{CS+r}, v{ST}, v{ACC+r}")
    k(f"v_cvt_pk_bf16_f32 v{ACC}, v{ACC}, v{ACC+1}\nv_cvt_pk_bf16_f32 v{ACC+1}, v{ACC+2}, v{ACC+3}")
    k("""
    s_lshr_b32 s44, s17, 1
    s_mul_i32 s44, s44, 2560
    s_and_b32 s45, s17, 1
    s_cmp_ge_u32 s18, 2
    s_cbranch_scc1 kv_kernel_vepi
    v_mov_b32 v15, 0
    s_cmp_eq_u32 s18, 0
    s_cbranch_scc0 kv_kernel_k1
    """)
    k(f"""
    s_lshl_b32 s46, s45, 8
    s_add_u32 s44, s44, s46
    v_lshrrev_b32 v14, 1, v4
    v_lshlrev_b32 v14, 9, v14
    v_lshl_add_u32 v14, v3, 4, v14
    v_and_b32 v13, 1, v4
    v_lshl_add_u32 v14, v13, 3, v14
    buffer_store_dwordx2 {v2(ACC)}, v14, s[36:39], s44 offen
    v_dot2_f32_bf16 v15, v{ACC}, v{ACC}, v15
    v_dot2_f32_bf16 v15, v{ACC+1}, v{ACC+1}, v15
    s_nop 3
    """)
    red_g(k, [15], TMP)
    k("s_branch kv_kernel_kmax")
    k.label("k1")
    k(f"""
    s_lshl_b32 s46, s45, 7
    s_add_u32 s44, s44, s46
    v_lshlrev_b32 v14, 3, v3
    s_mov_b64 exec, 0xffff
    buffer_store_dwordx2 {v2(ACC)}, v14, s[36:39], s44 offen offset:1024
    v_dot2_f32_bf16 v15, v{ACC}, v{ACC}, v15
    v_dot2_f32_bf16 v15, v{ACC+1}, v{ACC+1}, v15
    """)
    k.srd_off(40, 12, WS_A, 1728 * 4)
    k("""
    s_mov_b64 exec, -1
    v_mov_b32 v20, -1
    v_mov_b32 v21, -1
    v_mov_b32 v22, -1
    v_mov_b32 v23, -1
    s_lshl_b32 s46, s2, 10
    v_lshlrev_b32 v14, 4, v1
    buffer_store_dwordx4 v[20:23], v14, s[40:43], s46 offen
    s_mov_b64 exec, 0xffff
    s_nop 1
    """)
    k.srd_off(40, 12, WS_ST, 32768)
    k("""
    v_mov_b32 v20, 0
    v_mov_b32 v21, 0
    v_mov_b32 v22, 0
    v_mov_b32 v23, 0
    s_lshl_b32 s46, s17, 8
    v_lshlrev_b32 v14, 4, v3
    buffer_store_dwordx4 v[20:23], v14, s[40:43], s46 offen
    s_mov_b64 exec, -1
    """)
    k.label("kmax")
    for off in ("0x041F", "0x081F", "0x101F", "0x201F"):
        k(f"ds_swizzle_b32 v{TMP}, v15 offset:{off}\ns_waitcnt lgkmcnt(0)\nv_max_f32 v15, v15, v{TMP}")
    k.srd_off(40, 12, WS_KM, 1024)
    k("""
    s_lshl_b32 s44, s18, 7
    s_add_u32 s44, s44, s17
    s_lshl_b32 s44, s44, 2
    v_mov_b32 v14, 0
    s_mov_b64 exec, 1
    buffer_store_dword v15, v14, s[40:43], s44 offen
    s_mov_b64 exec, -1
    s_branch kv_kernel_end
    """)
    k.label("vepi")
    k("""
    s_mul_i32 s46, s45, 640
    s_add_u32 s44, s44, s46
    v_bfe_u32 v14, v3, 2, 1
    v_mul_u32_u24 v12, 320, v14
    v_bfe_u32 v14, v3, 3, 1
    v_lshl_add_u32 v12, v14, 3, v12
    v_and_b32 v14, 3, v3
    v_lshl_add_u32 v12, v14, 1, v12
    v_lshl_add_u32 v14, v4, 6, v12
    s_cmp_eq_u32 s18, 2
    s_cbranch_scc1 kv_kernel_v0
    v_add_u32 v14, 256, v12
    s_mov_b64 exec, 0xffff
    """)
    k.label("v0")
    k(f"""
    buffer_store_short v{ACC}, v14, s[36:39], s44 offen offset:1280
    buffer_store_short_d16_hi v{ACC}, v14, s[36:39], s44 offen offset:1296
    buffer_store_short v{ACC+1}, v14, s[36:39], s44 offen offset:1312
    buffer_store_short_d16_hi v{ACC+1}, v14, s[36:39], s44 offen offset:1328
    s_mov_b64 exec, -1
    s_cmp_eq_u32 s18, 3
    s_cbranch_scc0 kv_kernel_end
    s_cmp_eq_u32 s2, 0
    s_cbranch_scc0 kv_kernel_end
    """)
    k.srd(40, 14, 1280)
    k(f"""
    v_mul_u32_u24 v8, 20, v1
    buffer_load_dwordx4 v[20:23], v8, s[40:43], 0 offen
    buffer_load_dword v24, v8, s[40:43], 0 offen offset:16
    v_mov_b32 v17, 0
    s_waitcnt vmcnt(0)
    v_dot2_f32_bf16 v17, v20, v{ONES}, v17
    v_dot2_f32_bf16 v17, v21, v{ONES}, v17
    v_dot2_f32_bf16 v17, v22, v{ONES}, v17
    v_dot2_f32_bf16 v17, v23, v{ONES}, v17
    v_dot2_f32_bf16 v17, v24, v{ONES}, v17
    s_nop 3
    """)
    for off in ("0x041F", "0x081F", "0x101F", "0x201F"):
        k(f"ds_swizzle_b32 v18, v17 offset:{off}\ns_waitcnt lgkmcnt(0)\nv_add_f32 v17, v17, v18")
    red_g(k, [17], 18)
    k.srd_off(40, 12, WS_SEL, 64)
    k("""
    v_mov_b32 v14, 0
    s_mov_b64 exec, 1
    buffer_store_dword v17, v14, s[40:43], 0 offen offset:32
    s_mov_b64 exec, -1
    """)
    k("s_branch kv_kernel_end")
    k.label("cpy")
    k("""
    s_load_dwordx2 s[12:13], s[0:1], 96
    s_sub_u32 s16, s2, 128
    s_mov_b32 s46, 0x12F684C
    s_mov_b32 s47, 0x3333334
    s_mov_b32 s48, 0x1999999A
    v_mov_b32 v14, 0x7fffffff
    """)
    def job(label, nxt, lo, n, karg, srcbytes, dst_off, dst_bytes, kind, dadd=0):
        k.label(label)
        if nxt:
            k(f"s_cmp_ge_u32 s16, {lo+n}\ns_cbranch_scc1 kv_kernel_{nxt}")
        k(f"""
        s_load_dwordx2 s[4:5], s[0:1], {karg}
        s_sub_u32 s17, s16, {lo}
        s_lshl_b32 s17, s17, 11
        v_add_u32 v1, s17, v0
        s_waitcnt lgkmcnt(0)
        """)
        k.srd(20, 4, srcbytes)
        k.srd_off(24, 12, dst_off, dst_bytes)
        for i in range(8):
            k(f"v_add_u32 v{2+i}, {256*i}, v1\nv_lshlrev_b32 v10, 4, v{2+i}\nbuffer_load_dwordx4 {v4(16+4*i)}, v10, s[20:23], 0 offen")
        npieces = srcbytes // 16
        for i in range(8):
            p = 2 + i
            if kind == "tile":
                k(f"""
                v_mul_hi_u32 v10, v{p}, s47
                v_mul_u32_u24 v11, 80, v10
                v_sub_u32 v11, v{p}, v11
                v_mul_hi_u32 v12, v11, s48
                v_mul_u32_u24 v13, 10, v12
                v_sub_u32 v13, v11, v13
                v_mul_u32_u24 v12, 102400, v12
                v_mul_u32_u24 v10, 160, v10
                v_add_u32 v12, v12, v10
                v_lshl_add_u32 v12, v13, 4, v12
                """)
            else:
                mag, per, sl = ("s46", 216, 40960) if kind == "gu" else ("s47", 80, 55296)
                k(f"""
                v_mul_hi_u32 v10, v{p}, {mag}
                v_mul_u32_u24 v11, {per}, v10
                v_sub_u32 v11, v{p}, v11
                v_lshrrev_b32 v12, 1, v11
                v_mul_u32_u24 v12, {sl}, v12
                v_lshl_add_u32 v12, v10, 5, v12
                v_and_b32 v11, 1, v11
                v_lshl_add_u32 v12, v11, 4, v12
                v_add_u32 v12, {dadd}, v12
                """)
            k(f"v_cmp_gt_u32 vcc, {npieces}, v{p}\ns_nop 1\nv_cndmask_b32 v{p}, v14, v12, vcc")
        for i in range(8):
            k(f"s_waitcnt vmcnt({7-i})\nbuffer_store_dwordx4 {v4(16+4*i)}, v{2+i}, s[24:27], 0 offen")
        k("s_endpgm")
    def job2(label, nxt, lo, n, karg, rowb, nrows, nsg, dst_off, dst_bytes, sliceb):
        k.label(label)
        if nxt:
            k(f"s_cmp_ge_u32 s16, {lo+n}\ns_cbranch_scc1 kv_kernel_{nxt}")
        total = (nrows // 4) * nsg
        magic = (1 << 32) // nsg + 1
        k(f"""
        s_load_dwordx2 s[4:5], s[0:1], {karg}
        v_and_b32 v1, 63, v0
        v_lshrrev_b32 v2, 6, v0
        v_lshrrev_b32 v3, 4, v1
        v_bfe_u32 v4, v1, 1, 3
        v_and_b32 v5, 1, v1
        v_readfirstlane_b32 s18, v2
        v_mul_u32_u24 v6, {rowb}, v3
        v_lshl_add_u32 v6, v4, 5, v6
        v_lshl_add_u32 v6, v5, 4, v6
        v_mul_u32_u24 v7, {sliceb}, v4
        v_lshl_add_u32 v7, v3, 5, v7
        v_lshl_add_u32 v7, v5, 4, v7
        s_sub_u32 s17, s16, {lo}
        s_lshl_b32 s17, s17, 5
        s_lshl_b32 s18, s18, 3
        s_add_u32 s17, s17, s18
        s_mov_b32 s19, {magic}
        s_waitcnt lgkmcnt(0)
        """)
        k.srd(20, 4, rowb * nrows)
        k.srd_off(24, 12, dst_off, dst_bytes)
        for i in range(8):
            k(f"""
            s_add_u32 s30, s17, {i}
            s_mul_hi_u32 s31, s30, s19
            s_mul_i32 s32, s31, {nsg}
            s_sub_u32 s32, s30, s32
            s_mul_i32 s33, s31, {4*rowb}
            s_lshl_b32 s34, s32, 8
            s_add_u32 s33, s33, s34
            s_mul_i32 s{40+i}, s32, {8*sliceb}
            s_lshl_b32 s34, s31, 7
            s_add_u32 s{40+i}, s{40+i}, s34
            s_cmp_lt_u32 s30, {total}
            s_cselect_b32 s{40+i}, s{40+i}, 0x40000000
            buffer_load_dwordx4 {v4(16+4*i)}, v6, s[20:23], s33 offen
            """)
        for i in range(8):
            k(f"s_waitcnt vmcnt({7-i})\nbuffer_store_dwordx4 {v4(16+4*i)}, v7, s[24:27], s{40+i} offen")
        k("s_endpgm")
    job("j0", "j1", 0, 25, 8, 819200, WS_WQ, 819200, "tile")
    job("j1", "j2", 25, 25, 32, 819200, WS_WO, 819200, "tile")
    job2("j2", "j3", 50, 70, 56, 3456, 640, 14, WS_FW, NFF * 40960, 40960)
    job2("j3", "j4", 120, 70, 64, 3456, 640, 14, WS_FW + 20480, NFF * 40960 - 20480, 40960)
    job2("j4", None, 190, 68, 72, 1280, 1728, 5, WS_WD, 40 * 55296, 55296)
    k.finish(0)
    return k, "grid=(386,1,1) block=(256,1,1) lds=%d" % (20480 + 2 * 28672)

SLOT = 36864
W_OFF = 16384
XF, SRC, VA_RD, VW_RD, ST, ONES, ACC, CS, WF, TMP = 16, 16, 48, 52, 56, 76, 80, 96, 100, 108

def gemm_ids(k):
    k("""
    v_and_b32 v1, 63, v0
    v_lshrrev_b32 v2, 6, v0
    s_lshr_b32 s16, s2, 5
    s_and_b32 s17, s2, 7
    s_lshl_b32 s17, s17, 2
    s_bfe_u32 s44, s2, 0x20003
    s_add_u32 s17, s17, s44
    v_readfirstlane_b32 s18, v2
    v_and_b32 v3, 15, v1
    v_lshrrev_b32 v4, 4, v1
    """)

def loader_list(lw):
    return [("A", e) for e in range(16)][12*lw:12*lw+12] + [("W", e) for e in range(20)][max(0, 12*lw-16):max(0, 12*lw+12-16)]

def gemm_loader(k, lw, w_linear, gb, wchunk, mid=None, nmid=0):
    lst = loader_list(lw)
    k("s_lshl_b32 s45, s17, 6")
    for i, (kind, e) in enumerate(lst):
        if kind == "A":
            k(f"""
            v_add_u32 v6, {4*e}, v4
            v_and_b32 v7, 15, v6
            v_xor_b32 v7, v7, v3
            v_add_u32 v6, s45, v6
            v_mul_u32_u24 v6, 1280, v6
            v_lshl_add_u32 v{SRC+i}, v7, 4, v6
            """)
        elif w_linear:
            k(f"v_add_u32 v6, {64*e}, v1\nv_lshlrev_b32 v{SRC+i}, 4, v6")
        else:
            k(f"""
            v_add_u32 v6, {64*e}, v1
            v_mul_u32_u24 v7, 6554, v6
            v_lshrrev_b32 v7, 16, v7
            v_mul_u32_u24 v8, 10, v7
            v_sub_u32 v8, v6, v8
            v_mul_u32_u24 v7, 1280, v7
            v_lshl_add_u32 v{SRC+i}, v8, 4, v7
            """)
    def issue(c):
        slot = gb + (c % 3) * SLOT
        k(f"s_mov_b32 s46, {c*256}\ns_mov_b32 s47, {c*wchunk}")
        for i, (kind, e) in enumerate(lst):
            if kind == "A":
                k(f"s_mov_b32 m0, {slot + e*1024}\ns_nop 0\nbuffer_load_dwordx4 v{SRC+i}, s[20:23], s46 offen lds")
            else:
                k(f"s_mov_b32 m0, {slot + W_OFF + e*1024}\ns_nop 0\nbuffer_load_dwordx4 v{SRC+i}, s[24:27], s47 offen lds")
    for c in range(3):
        issue(c)
    if mid:
        mid()
    k.stamp()
    waits = [24 + nmid, 12 + nmid, 12 + nmid, 12, 0]
    for c in range(5):
        k(f"s_waitcnt vmcnt({waits[c]})\ns_barrier")
        k.stamp()
        if 1 <= c <= 2:
            issue(c + 2)
    k.stamp()

def gemm_mm(k, colsum, gb):
    k(f"""
    v_lshlrev_b32 v6, 8, v3
    v_and_b32 v7, 3, v3
    v_xor_b32 v7, v7, v4
    v_lshl_add_u32 v6, v7, 4, v6
    v_add_u32 v6, {gb}, v6
    v_and_b32 v7, 12, v3
    """)
    for ks in range(4):
        k(f"v_xor_b32 v8, {4*ks}, v7\nv_lshl_add_u32 v{VA_RD+ks}, v8, 4, v6")
    k(f"""
    v_lshrrev_b32 v12, 2, v1
    v_and_b32 v12, 3, v12
    v_lshl_add_u32 v12, v4, 3, v12
    v_and_b32 v13, 3, v1
    s_lshl_b32 s48, s18, 5
    s_add_u32 s47, s48, {gb + W_OFF}
    v_mul_u32_u24 v{VW_RD}, 160, v12
    v_lshl_add_u32 v{VW_RD}, v13, 3, v{VW_RD}
    v_add_u32 v{VW_RD}, s47, v{VW_RD}
    """)
    if colsum:
        for i in range(4):
            k(f"v_mov_b32 v{ONES+i}, 0x3f803f80")
    k.stamp()
    def reads(ks, buf):
        for h in range(2):
            k(f"ds_read_b64_tr_b16 {v2(WF+4*buf+2*h)}, v{VW_RD} offset:{ks*5120 + h*640}")
        for rf in range(4):
            k(f"ds_read_b128 {v4(XF+16*buf+4*rf)}, v{VA_RD+ks} offset:{rf*4096}")
    for c in range(5):
        k("s_barrier")
        k.stamp()
        reads(0, 0)
        for ks in range(4):
            if ks < 3:
                reads(ks + 1, (ks + 1) & 1)
                k("s_waitcnt lgkmcnt(6)")
            else:
                k("s_waitcnt lgkmcnt(0)")
                if c < 4:
                    d = SLOT if (c % 3) != 2 else -2 * SLOT
                    for r in [VA_RD + i for i in range(4)] + [VW_RD]:
                        k(f"v_add_u32 v{r}, {d & 0xffffffff}, v{r}")
            first = (c == 0 and ks == 0)
            b = ks & 1
            for rf in range(4):
                a = ACC + 4 * rf
                k(f"v_mfma_f32_16x16x32_bf16 {v4(a)}, {v4(WF+4*b)}, {v4(XF+16*b+4*rf)}, {'0' if first else v4(a)}")
            if colsum:
                k(f"v_mfma_f32_16x16x32_bf16 {v4(CS)}, {v4(WF+4*b)}, {v4(ONES)}, {'0' if first else v4(CS)}")
    k.stamp()

def gen_k2():
    k = K("attn_kernel", 144)
    GB = 53248
    QB = 163840 - 10240
    QF1, QF2, SA, SB, O, P = 8, 12, 16, 32, 48, 64
    KF = [72, 80]; VF = [88, 96]
    AK, AK2, AV, VO = 136, 137, 138, 139
    T = 108
    QA, KX = 125, 127
    CP, CPD = 128, 128
    THRESH = 50.0
    k("""
    s_cmp_ge_u32 s2, 256
    s_cbranch_scc1 attn_kernel_exit
    s_load_dwordx2 s[4:5], s[0:1], 0
    s_load_dwordx2 s[12:13], s[0:1], 96
    s_load_dwordx2 s[14:15], s[0:1], 32
    s_load_dwordx4 s[8:11], s[0:1], 56
    """)
    gemm_ids(k)
    k("s_waitcnt lgkmcnt(0)")
    k.diag_start(1)
    k.stamp()
    k.srd(20, 4, MATB)
    k(f"""
    s_mul_i32 s44, s16, 102400
    s_add_u32 s44, s44, {WS_WQ}
    s_add_u32 s24, s12, s44
    s_addc_u32 s25, s13, 0
    s_mov_b32 s26, 102400
    s_mov_b32 s27, 0x00020000
    """)
    k.srd_off(28, 12, WS_KM, 1024)
    k.srd_off(56, 12, WS_KV, 163840)
    k(f"""
    v_lshlrev_b32 v7, 2, v1
    buffer_load_dword v{CP}, v7, s[28:31], 0 offen
    buffer_load_dword v{CP+1}, v7, s[28:31], 0 offen offset:256
    buffer_load_dword v{CP+2}, v7, s[28:31], 0 offen offset:512
    buffer_load_dword v{CP+3}, v7, s[28:31], 0 offen offset:768
    """)
    k(f"v_lshlrev_b32 v{CPD+4}, 4, v1\ns_lshl_b32 s52, s18, 10\ns_add_u32 s52, s52, 49152")
    def dma():
        k(f"s_mov_b32 m0, s52\ns_nop 0\nbuffer_load_dwordx4 v{CPD+4}, s[56:59], s52 offen lds\ns_add_u32 s52, s52, 8192")
    def pre(nyounger):
        k(f"""
        v_and_b32 v{T}, 31, v1
        v_lshrrev_b32 v{T+1}, 5, v1
        v_lshrrev_b32 v{T+2}, 2, v{T}
        v_and_b32 v{T+3}, 3, v{T}
        v_mul_u32_u24 v{QA}, 160, v{T+2}
        v_mul_u32_u24 v{T+3}, 40, v{T+3}
        v_add_u32 v{QA}, v{QA}, v{T+3}
        s_mul_i32 s46, s18, 1280
        s_add_u32 s46, s46, {QB}
        v_add_u32 v{QA}, s46, v{QA}
        v_lshl_add_u32 v{QA+1}, v{T+1}, 4, v{QA}
        v_mul_u32_u24 v{VO}, 1280, v{T+2}
        v_add_u32 v{VO}, v{VO}, v{T+3}
        v_lshl_add_u32 v{VO}, v{T+1}, 3, v{VO}
        s_lshl_b32 s19, s17, 6
        s_lshl_b32 s46, s18, 3
        s_add_u32 s19, s19, s46
        s_mul_i32 s19, s19, 1280
        s_mul_i32 s46, s16, 160
        s_add_u32 s19, s19, s46
        v_lshlrev_b32 v{AK}, 4, v1
        v_lshlrev_b32 v{AK2}, 3, v{T}
        v_mul_u32_u24 v{AV}, 320, v{T+1}
        v_lshl_add_u32 v{AV}, v{T}, 4, v{AV}
        s_mov_b32 s40, 0x000fffff
        s_mov_b32 s41, 0x000fffff
        s_waitcnt vmcnt({nyounger})
        v_max_f32 v{T}, v{CP}, v{CP+1}
        v_max_f32 v{T+1}, v{CP+2}, v{CP+3}
        """)
        for ror in (8, 4, 2, 1):
            k(f"s_nop 1\nv_max_f32_dpp v{T}, v{T}, v{T} row_ror:{ror} row_mask:0xf bank_mask:0xf\nv_max_f32_dpp v{T+1}, v{T+1}, v{T+1} row_ror:{ror} row_mask:0xf bank_mask:0xf")
        red_g(k, [T, T + 1], T + 2, "max")
        k(f"v_add_f32 v{KX}, v{T}, v{T+1}")
        k.srd_off(32, 12, WS_O, MATB)
    n0 = k.nst
    k("s_cmp_lt_u32 s18, 5\ns_cbranch_scc1 attn_kernel_mm")
    for lw in range(3):
        if lw < 2:
            k(f"s_cmp_eq_u32 s18, {5+lw}\ns_cbranch_scc0 attn_kernel_ld{lw+1}")
        def mid():
            for i in range(16):
                o = (lw * 16 + i) * 1024
                k(f"s_mov_b32 m0, {o}\ns_mov_b32 s46, {o}\nbuffer_load_dwordx4 v{CPD+4}, s[56:59], s46 offen lds")
        k.nst = n0
        gemm_loader(k, lw, True, GB, 20480, mid, 16)
        k("s_branch attn_kernel_ldone")
        if lw < 2:
            k.label(f"ld{lw+1}")
    k.label("ldone")
    pre(0)
    k("s_branch attn_kernel_qrd")
    k.label("mm")
    k.nst = n0
    k.srd_off(36, 12, WS_Q, 16384)
    k("s_lshl_b32 s46, s17, 9\nv_lshlrev_b32 v9, 3, v3")
    for rf in range(4):
        k(f"buffer_load_dwordx2 {v2(ST+2*rf)}, v9, s[36:39], s46 offen offset:{rf*128}")
    pre(4)
    gemm_mm(k, True, GB)
    k(f"""
    v_mul_u32_u24 v10, 160, v3
    v_lshl_add_u32 v10, v4, 3, v10
    s_lshl_b32 s46, s18, 5
    s_add_u32 s46, s46, {QB}
    v_add_u32 v10, s46, v10
    s_waitcnt vmcnt(0)
    s_nop 3
    """)
    for rf in range(4):
        a = ACC + 4 * rf
        k(f"v_mul_f32 v14, {f32hex(QSCALE)}, v{ST+2*rf+1}\nv_mul_f32 v15, {f32hex(QSCALE)}, v{ST+2*rf}")
        for r in range(4):
            k(f"v_mul_f32 v{a+r}, v{a+r}, v14\nv_fma_f32 v{a+r}, -v{CS+r}, v15, v{a+r}")
        k(f"v_cvt_pk_bf16_f32 v{a}, v{a}, v{a+1}\nv_cvt_pk_bf16_f32 v{a+1}, v{a+2}, v{a+3}")
        k(f"ds_write_b64 v10, {v2(a)} offset:{rf*2560}")
    k("s_waitcnt lgkmcnt(0)")
    k.label("qrd")
    k("s_barrier")
    k.stamp()
    k(f"""
    ds_read_b64 {v2(QF1)}, v{QA+1}
    ds_read_b64 {v2(QF1+2)}, v{QA+1} offset:8
    ds_read_b64 {v2(QF2)}, v{QA} offset:32
    v_and_b32 v3, 31, v1
    v_lshrrev_b32 v4, 5, v1
    """)
    for b in range(2):
        k(f"v_mov_b32 v{KF[b]+6}, 0x3f803f80\nv_mov_b32 v{KF[b]+7}, 0x00003f80")
    k(f"v_cmp_eq_u32 vcc, 20, v3\nv_mov_b32 v{T+2}, 0x3f803f80\ns_nop 1\nv_cndmask_b32 v{T+2}, 0, v{T+2}, vcc")
    for b in range(2):
        for r in range(8):
            k(f"v_mov_b32 v{VF[b]+r}, v{T+2}")
    for r in range(16):
        k(f"v_mov_b32 v{O+r}, 0")
    for r in range(4, 8):
        k(f"v_mov_b32 v{P+r}, 0")
    k(f"""
    v_cmp_eq_u32 vcc, 0, v4
    s_waitcnt lgkmcnt(0)
    v_cndmask_b32 v{QF2}, 0, v{QF2}, vcc
    v_cndmask_b32 v{QF2+1}, 0, v{QF2+1}, vcc
    v_mov_b32 v{QF2+2}, 0
    v_mov_b32 v{QF2+3}, 0
    v_mov_b32 v{T+3}, 0
    """)
    for r in range(4):
        k(f"v_dot2_f32_bf16 v{T+3}, v{QF1+r}, v{QF1+r}, v{T+3}")
    for r in range(2):
        k(f"v_dot2_f32_bf16 v{T+3}, v{QF2+r}, v{QF2+r}, v{T+3}")
    k(f"""
    s_nop 3
    v_mov_b32 v{T+4}, v{T+3}
    v_mov_b32 v{T+5}, v{T+3}
    s_nop 1
    v_permlane32_swap_b32 v{T+4}, v{T+5}
    s_nop 1
    v_add_f32 v{T+3}, v{T+4}, v{T+5}
    v_mul_f32 v{T+3}, v{T+3}, v{KX}
    v_sqrt_f32 v{T+3}, v{T+3}
    s_nop 0
    v_mul_f32 v{T+3}, {f32hex(1.01)}, v{T+3}
    v_mov_b32 v{T+6}, {f32hex(THRESH)}
    v_cmp_nle_f32 vcc, v{T+3}, v{T+6}
    s_barrier
    s_cbranch_vccnz attn_kernel_slow
    """)
    def set_m():
        k(f"""
        v_xor_b32 v{T+3}, 0x80000000, v{T+3}
        v_and_b32 v{T+4}, 0xffff0000, v{T+3}
        v_sub_f32 v{T+5}, v{T+3}, v{T+4}
        v_and_b32 v{T+6}, 0xffff0000, v{T+5}
        v_sub_f32 v{T+5}, v{T+5}, v{T+6}
        v_lshrrev_b32 v{T+4}, 16, v{T+4}
        v_or_b32 v{T+4}, v{T+4}, v{T+6}
        v_lshrrev_b32 v{T+5}, 16, v{T+5}
        v_cmp_eq_u32 vcc, 0, v4
        s_nop 1
        v_cndmask_b32 v{QF2+2}, 0, v{T+4}, vcc
        v_cndmask_b32 v{QF2+3}, 0, v{T+5}, vcc
        """)
    def kreads(b, blk):
        k(f"ds_read_b128 {v4(KF[b])}, v{AK} offset:{blk*2560}\nds_read_b64 {v2(KF[b]+4)}, v{AK2} offset:{blk*2560+1024}")
    def vreads(b, blk):
        k(f"s_mov_b64 exec, s[40:41]\nds_read_b128 {v4(VF[b])}, v{AV} offset:{blk*2560+1280}\nds_read_b128 {v4(VF[b]+4)}, v{AV} offset:{blk*2560+1920}\ns_mov_b64 exec, -1")
    def pipe_start():
        kreads(0, 0); kreads(1, 1); vreads(0, 0)
        k("s_waitcnt lgkmcnt(4)")
        k(f"v_mfma_f32_32x32x16_bf16 {v16(SA)}, {v4(KF[0])}, {v4(QF1)}, 0")
        k(f"v_mfma_f32_32x32x16_bf16 {v16(SA)}, {v4(KF[0]+4)}, {v4(QF2)}, {v16(SA)}")
        k("s_nop 7\ns_nop 3")
    def E(Sc, a, b):
        for r in range(a, b):
            k(f"v_exp_f32 v{Sc+r}, v{Sc+r}")
    def C(Sc, a, b):
        for p in range(a, b):
            k(f"v_cvt_pk_bf16_f32 v{P+p}, v{Sc+2*p}, v{Sc+2*p+1}")
    def iteration(j, ndma):
        par = j & 1
        Sc, Sn = (SA, SB) if par == 0 else (SB, SA)
        k("s_waitcnt lgkmcnt(0)")
        E(Sc, 0, 2)
        k(f"v_mfma_f32_32x32x16_bf16 {v16(O)}, {v4(VF[1-par]+4)}, {v4(P+4)}, {v16(O)}")
        kreads(par, j + 2)
        vreads(1 - par, j + 1)
        E(Sc, 2, 5)
        k(f"v_mfma_f32_32x32x16_bf16 {v16(Sn)}, {v4(KF[1-par])}, {v4(QF1)}, 0")
        E(Sc, 5, 8); C(Sc, 0, 4); E(Sc, 8, 9)
        k(f"v_mfma_f32_32x32x16_bf16 {v16(Sn)}, {v4(KF[1-par]+4)}, {v4(QF2)}, {v16(Sn)}")
        if ndma >= 1: dma()
        E(Sc, 9, 12)
        k(f"v_mfma_f32_32x32x16_bf16 {v16(O)}, {v4(VF[par])}, {v4(P)}, {v16(O)}")
        if ndma >= 2: dma()
        E(Sc, 12, 16); C(Sc, 4, 8)
    def group(with_dma):
        for j in range(8):
            iteration(j, (2 if j < 7 else 0) if with_dma else 0)
        k(f"v_add_u32 v{AK}, 20480, v{AK}\nv_add_u32 v{AK2}, 20480, v{AK2}\nv_add_u32 v{AV}, 20480, v{AV}")
    def copy_loads():
        pass
    set_m()
    k.stamp()
    pipe_start()
    group(True)
    k.stamp()
    k.stamp()
    k("s_mov_b32 s42, 7\ns_mov_b32 s53, 7\ns_branch attn_kernel_loop")
    k.label("slow")
    for i in range(14):
        dma()
    k("s_waitcnt vmcnt(0)\ns_barrier")
    copy_loads()
    k(f"v_mov_b32 v{T+3}, 0xff800000\ns_mov_b32 s42, 64")
    k.label("maxloop")
    kreads(0, 0)
    k(f"v_add_u32 v{AK}, 2560, v{AK}\nv_add_u32 v{AK2}, 2560, v{AK2}\ns_waitcnt lgkmcnt(0)")
    k(f"v_mfma_f32_32x32x16_bf16 {v16(SA)}, {v4(KF[0])}, {v4(QF1)}, 0")
    k(f"v_mfma_f32_32x32x16_bf16 {v16(SA)}, {v4(KF[0]+4)}, {v4(QF2)}, {v16(SA)}")
    k("s_nop 15\ns_nop 3")
    for r in range(0, 16, 2):
        k(f"v_max3_f32 v{T+3}, v{SA+r}, v{SA+r+1}, v{T+3}")
    k("s_sub_u32 s42, s42, 1\ns_cmp_lg_u32 s42, 0\ns_cbranch_scc1 attn_kernel_maxloop")
    k(f"""
    v_mov_b32 v{T+4}, v{T+3}
    v_mov_b32 v{T+5}, v{T+3}
    s_nop 1
    v_permlane32_swap_b32 v{T+4}, v{T+5}
    s_nop 1
    v_max_f32 v{T+3}, v{T+4}, v{T+5}
    v_lshlrev_b32 v{AK}, 4, v1
    v_lshlrev_b32 v{AK2}, 3, v3
    """)
    set_m()
    pipe_start()
    k("s_mov_b32 s42, 8\ns_mov_b32 s53, 100")
    k.label("loop")
    if os.environ.get("PRIO") is not None:
        k(f"s_lshr_b32 s43, s18, 2\ns_add_u32 s43, s43, s42\ns_and_b32 s43, s43, 1\ns_cmp_eq_u32 s43, 0\ns_cbranch_scc1 attn_kernel_p0\ns_setprio 1\ns_branch attn_kernel_p1")
        k.label("p0")
        k("s_setprio 0")
        k.label("p1")
    group(False)
    k("s_cmp_eq_u32 s42, s53\ns_cbranch_scc0 attn_kernel_nobar\ns_waitcnt vmcnt(0)\ns_barrier")
    k.label("nobar")
    k("s_sub_u32 s42, s42, 1\ns_cmp_lg_u32 s42, 0\ns_cbranch_scc1 attn_kernel_loop")
    k.stamp()
    k("s_nop 1")
    k(f"v_mfma_f32_32x32x16_bf16 {v16(O)}, {v4(VF[1]+4)}, {v4(P+4)}, {v16(O)}")
    k("s_nop 15\ns_nop 3")
    k(f"""
    v_mov_b32 v{T}, v{O+8}
    v_mov_b32 v{T+1}, v{O+8}
    s_nop 1
    v_permlane32_swap_b32 v{T}, v{T+1}
    s_nop 1
    v_rcp_f32 v{T+1}, v{T+1}
    s_nop 0
    """)
    for r in range(12):
        k(f"v_mul_f32 v{O+r}, v{O+r}, v{T+1}")
    for p in range(6):
        k(f"v_cvt_pk_bf16_f32 v{P+p}, v{O+2*p}, v{O+2*p+1}")
    k(f"""
    buffer_store_dwordx2 {v2(P)}, v{VO}, s[32:35], s19 offen
    buffer_store_dwordx2 {v2(P+2)}, v{VO}, s[32:35], s19 offen offset:16
    s_mov_b32 exec_hi, 0
    buffer_store_dwordx2 {v2(P+4)}, v{VO}, s[32:35], s19 offen offset:32
    """)
    k.finish(1)
    return k, "grid=(256,1,1) block=(512,1,1) lds=163840"

def gen_k3():
    k = K("oproj_kernel", 128)
    XR, WR = ST, ST + 8
    EXS = 3 * SLOT
    k("""
    s_cmp_ge_u32 s2, 256
    s_cbranch_scc1 oproj_kernel_exit
    s_load_dwordx2 s[4:5], s[0:1], 0
    s_load_dwordx2 s[12:13], s[0:1], 96
    s_load_dwordx2 s[14:15], s[0:1], 48
    """)
    gemm_ids(k)
    k("s_waitcnt lgkmcnt(0)")
    k.diag_start(2)
    k.stamp()
    k.srd_off(20, 12, WS_O, MATB)
    k(f"""
    s_mul_i32 s44, s16, 102400
    s_add_u32 s44, s44, {WS_WO}
    s_add_u32 s24, s12, s44
    s_addc_u32 s25, s13, 0
    s_mov_b32 s26, 102400
    s_mov_b32 s27, 0x00020000
    """)
    k.srd(28, 4, MATB)
    k.srd(32, 14, 1280)
    k.srd_off(36, 12, WS_H, MATB)
    k.srd_off(40, 12, WS_ST, 32768)
    n0 = k.nst
    k("""
    s_cmp_lt_u32 s18, 5
    s_cbranch_scc0 oproj_kernel_idle
    s_lshl_b32 s45, s17, 6
    v_add_u32 v5, s45, v3
    v_mul_u32_u24 v10, 1280, v5
    v_lshl_add_u32 v10, v4, 3, v10
    v_lshlrev_b32 v11, 3, v4
    s_mul_i32 s59, s16, 160
    s_lshl_b32 s46, s18, 5
    s_add_u32 s59, s59, s46
    s_mov_b32 s44, s59
    """)
    for rf in range(4):
        k(f"buffer_load_dwordx2 {v2(XR+2*rf)}, v10, s[28:31], s44 offen\ns_add_u32 s44, s44, 20480")
    k(f"buffer_load_dwordx2 {v2(WR)}, v11, s[32:35], s59 offen")
    gemm_mm(k, False, 0)
    k("s_waitcnt vmcnt(0)")
    k("s_nop 7\nv_mov_b32 v15, 0x3f803f80\ns_mov_b32 s44, s59")
    for rf in range(4):
        a = ACC + 4 * rf
        S = TMP + 4 * rf
        k(f"v_cvt_pk_bf16_f32 v{a}, v{a}, v{a+1}\nv_cvt_pk_bf16_f32 v{a+1}, v{a+2}, v{a+3}")
        k(f"v_mov_b32 v{S}, 0\nv_mov_b32 v{S+1}, 0\nv_mov_b32 v{S+2}, 0\nv_mov_b32 v{S+3}, 0")
        for h in range(2):
            k(f"""
            v_lshlrev_b32 v12, 16, v{a+h}
            v_and_b32 v13, 0xffff0000, v{a+h}
            v_lshlrev_b32 v6, 16, v{XR+2*rf+h}
            v_and_b32 v7, 0xffff0000, v{XR+2*rf+h}
            v_add_f32 v12, v12, v6
            v_add_f32 v13, v13, v7
            v_cvt_pk_bf16_f32 v{a+h}, v12, v13
            """)
            k(f"v_dot2_f32_bf16 v{S}, v{a+h}, v15, v{S}\nv_dot2_f32_bf16 v{S+1}, v{a+h}, v{a+h}, v{S+1}\nv_dot2_f32_bf16 v{S+2}, v{a+h}, v{WR+h}, v{S+2}")
        k(f"buffer_store_dwordx2 {v2(a)}, v10, s[36:39], s44 offen\ns_add_u32 s44, s44, 20480")
    k("s_nop 3")
    red_g(k, [TMP + 4 * rf + i for rf in range(4) for i in range(3)], 16)
    k("""
    v_lshlrev_b32 v14, 4, v3
    v_lshl_add_u32 v14, v4, 2, v14
    s_lshl_b32 s44, s17, 10
    v_cmp_eq_u32 vcc, 1, v4
    v_cmp_eq_u32 s[46:47], 2, v4
    v_cmp_eq_u32 s[48:49], 3, v4
    s_nop 1
    """)
    for rf in range(4):
        S = TMP + 4 * rf
        k(f"v_cndmask_b32 v{S}, v{S}, v{S+1}, vcc\nv_cndmask_b32 v{S}, v{S}, v{S+2}, s[46:47]\nv_cndmask_b32 v{S}, v{S}, v{S+3}, s[48:49]")
        k(f"buffer_atomic_add_f32 v{S}, v14, s[40:43], s44 offen offset:{rf*256}")
    k("s_branch oproj_kernel_end")
    k.label("idle")
    for lw in range(3):
        if lw < 2:
            k(f"s_cmp_eq_u32 s18, {5+lw}\ns_cbranch_scc0 oproj_kernel_ld{lw+1}")
        k.nst = n0
        gemm_loader(k, lw, True, 0, 20480)
        if lw < 2:
            k("s_branch oproj_kernel_end")
            k.label(f"ld{lw+1}")
    k.finish(2)
    return k, "grid=(256,1,1) block=(512,1,1) lds=%d" % (3 * SLOT)

def row_stats(k, s0, s1, s2, mean, rstd, r=None, wsum=None):
    k(f"""
    v_mul_f32 v{mean}, {f32hex(1/640)}, v{s0}
    v_mul_f32 v{rstd}, {f32hex(1/640)}, v{s1}
    v_fma_f32 v{rstd}, -v{mean}, v{mean}, v{rstd}
    v_max_f32 v{rstd}, 0, v{rstd}
    v_add_f32 v{rstd}, {f32hex(1e-5)}, v{rstd}
    v_rsq_f32 v{rstd}, v{rstd}
    """)
    if r is not None:
        k(f"v_fma_f32 v{r}, -v{mean}, v{wsum}, v{s2}\nv_mul_f32 v{r}, v{r}, v{rstd}")

NFB = 40
def gen_k4():
    k = K("ffn_kernel", 128)
    NTOT = NFF + NFB + 128
    SS = 88
    k(f"""
    s_cmp_ge_u32 s2, {NTOT}
    s_cbranch_scc1 ffn_kernel_exit
    s_load_dwordx4 s[8:11], s[0:1], 80
    s_load_dwordx2 s[12:13], s[0:1], 96
    s_waitcnt lgkmcnt(0)
    """)
    k.diag_start(3)
    k.stamp()
    k.srd_off(20, 12, WS_H, MATB)
    k.srd_off(24, 12, WS_ST, 32768)
    k.srd_off(40, 12, WS_SEL, 64)
    k.srd(28, 8, MATB)
    k.srd(48, 10, 256)
    k.srd_off(44, 12, WS_A, 1728 * 4)
    k("v_lshlrev_b32 v1, 4, v0")
    for i in range(8):
        k(f"v_add_u32 v2, {4096*i}, v1\nbuffer_load_dwordx3 v[{SS+4*i}:{SS+2+4*i}], v2, s[24:27], 0 offen")
    k("v_mov_b32 v2, 0\nbuffer_load_dword v125, v2, s[40:43], 0 offen offset:32")
    def argmax(nyounger):
        k(f"s_waitcnt vmcnt({nyounger})")
        k("v_mov_b32 v7, 0")
        for i in range(8):
            b = SS + 4 * i
            row_stats(k, b, b + 1, b + 2, 8, 9, 10, 125)
            k(f"""
            v_ashrrev_i32 v11, 31, v10
            v_or_b32 v11, 0x80000000, v11
            v_xor_b32 v11, v11, v10
            v_and_b32 v11, 0xfffff800, v11
            v_sub_u32 v12, {2047 - 256*i}, v0
            v_or_b32 v11, v11, v12
            v_max_u32 v7, v7, v11
            """)
        for ror in (8, 4, 2, 1):
            k(f"s_nop 1\nv_max_u32_dpp v7, v7, v7 row_ror:{ror} row_mask:0xf bank_mask:0xf")
        k("""
        v_lshrrev_b32 v8, 4, v0
        v_lshlrev_b32 v8, 2, v8
        ds_write_b32 v8, v7
        s_waitcnt lgkmcnt(0)
        s_barrier
        v_mov_b32 v8, 0
        ds_read_b128 v[8:11], v8
        v_mov_b32 v12, 0
        ds_read_b128 v[12:15], v12 offset:16
        v_mov_b32 v2, 0
        ds_read_b128 v[2:5], v2 offset:32
        v_mov_b32 v120, 0
        ds_read_b128 v[120:123], v120 offset:48
        s_waitcnt lgkmcnt(0)
        v_max3_u32 v7, v8, v9, v10
        v_max3_u32 v7, v11, v12, v7
        v_max3_u32 v7, v13, v14, v7
        v_max3_u32 v7, v15, v2, v7
        v_max3_u32 v7, v3, v4, v7
        v_max3_u32 v7, v5, v120, v7
        v_max3_u32 v7, v121, v122, v7
        v_max_u32 v7, v123, v7
        v_and_b32 v7, 0x7ff, v7
        v_sub_u32 v7, 2047, v7
        s_nop 0
        v_readfirstlane_b32 s18, v7
        s_nop 3
        s_lshl_b32 s19, s18, 4
        s_mul_i32 s50, s18, 1280
        """.replace("s_mul_i32 s50, s18, 1280", "s_mul_i32 s53, s18, 1280"))
    def gemv_reduce(AC, nacc):
        for ror in (8, 4, 2):
            k("s_nop 1")
            for r in range(nacc):
                k(f"v_add_f32_dpp v{AC+r}, v{AC+r}, v{AC+r} row_ror:{ror} row_mask:0xf bank_mask:0xf")
        k(f"""
        v_lshrrev_b32 v12, 4, v0
        v_lshlrev_b32 v12, 7, v12
        v_and_b32 v13, 1, v0
        v_lshl_add_u32 v12, v13, 6, v12
        s_mov_b32 s52, 0x00030003
        s_mov_b32 exec_lo, s52
        s_mov_b32 exec_hi, s52
        """)
        for q in range(nacc // 4):
            k(f"ds_write_b128 v12, {v4(AC+4*q)} offset:{64+16*q}")
        k("s_mov_b64 exec, -1\ns_waitcnt lgkmcnt(0)\ns_barrier")
        k("""
        v_and_b32 v13, 7, v0
        v_bfe_u32 v12, v0, 3, 1
        v_lshlrev_b32 v12, 6, v12
        v_lshl_add_u32 v12, v13, 2, v12
        """)
    k(f"s_cmp_lt_u32 s2, {NFF}\ns_cbranch_scc1 ffn_kernel_ffa\ns_cmp_lt_u32 s2, {NFF+NFB}\ns_cbranch_scc1 ffn_kernel_ffb")
    k(f"""
    s_sub_u32 s16, s2, {NFF+NFB}
    s_add_u32 s17, s16, {(NFF+NFB) % 8}
    s_and_b32 s17, s17, 7
    s_lshl_b32 s17, s17, 4
    s_lshr_b32 s16, s16, 3
    s_add_u32 s16, s16, s17
    s_mul_i32 s17, s16, 20480
    s_lshl_b32 s51, s16, 8
    s_lshl_b32 s16, s16, 4
    """)
    for i in range(5):
        k(f"v_add_u32 v{60+i}, {4096*i}, v1\nbuffer_load_dwordx4 {v4(16+4*i)}, v{60+i}, s[20:23], s17 offen")
    for i in range(5):
        k(f"""
        v_add_u32 v{66+i}, {256*i}, v0
        v_mul_u32_u24 v{66+i}, 3277, v{66+i}
        v_lshrrev_b32 v{66+i}, 18, v{66+i}
        v_lshlrev_b32 v72, 4, v{66+i}
        buffer_load_dwordx2 {v2(40+2*i)}, v72, s[24:27], s51 offen
        """)
    argmax(10)
    k("s_sub_u32 s18, s18, s16\nv_mov_b32 v73, 0x40000000\ns_waitcnt vmcnt(0)")
    for i in range(5):
        row_stats(k, 40 + 2 * i, 41 + 2 * i, None, 52, 53)
        k(f"v_cmp_eq_u32 vcc, s18, v{66+i}\nv_mul_f32 v52, v52, v53\ns_nop 0")
        k(f"v_cndmask_b32 v{60+i}, v{60+i}, v73, vcc")
        for d in range(4):
            r = 16 + 4 * i + d
            k(f"""
            v_lshlrev_b32 v54, 16, v{r}
            v_and_b32 v55, 0xffff0000, v{r}
            v_fma_f32 v56, v54, v53, -v52
            v_fma_f32 v57, v55, v53, -v52
            v_cvt_pk_bf16_f32 v56, v56, v57
            v_lshlrev_b32 v57, 16, v56
            v_and_b32 v56, 0xffff0000, v56
            v_add_f32 v54, v54, v57
            v_add_f32 v55, v55, v56
            v_cvt_pk_bf16_f32 v{r}, v54, v55
            """)
        k(f"buffer_store_dwordx4 {v4(16+4*i)}, v{60+i}, s[28:31], s17 offen")
    k("s_branch ffn_kernel_end")
    k.label("ffa")
    G, U, HX, AC = 16, 36, 56, 64
    k.srd_off(32, 12, WS_FW, NFF * 40960)
    k("s_mul_i32 s16, s2, 40960")
    for i in range(5):
        k(f"s_add_u32 s17, s16, {i*4096}\nbuffer_load_dwordx4 {v4(G+4*i)}, v1, s[32:35], s17 offen\ns_add_u32 s17, s16, {20480+i*4096}\nbuffer_load_dwordx4 {v4(U+4*i)}, v1, s[32:35], s17 offen")
    k.stamp()
    argmax(10)
    k.stamp()
    k(f"v_mov_b32 v2, 0\nbuffer_load_dwordx3 v[{SS}:{SS+2}], v2, s[24:27], s19 offen\nv_and_b32 v8, 0xfe, v0")
    for i in range(5):
        k(f"buffer_load_ushort v{HX+i}, v8, s[20:23], s53 offen offset:{256*i}")
    k("s_waitcnt vmcnt(5)")
    row_stats(k, SS, SS + 1, SS + 2, 8, 9)
    k("s_nop 0\nv_mul_f32 v11, v8, v9\ns_waitcnt vmcnt(0)")
    for i in range(5):
        k(f"v_lshlrev_b32 v{HX+i}, 16, v{HX+i}\nv_fma_f32 v{HX+i}, v{HX+i}, v9, -v11\nv_cvt_pk_bf16_f32 v{HX+i}, v{HX+i}, v{HX+i}\nv_lshlrev_b32 v{HX+i}, 16, v{HX+i}")
    k.stamp()
    for r in range(16):
        k(f"v_mov_b32 v{AC+r}, 0")
    for i in range(5):
        for (src, acc) in ((G, AC), (U, AC + 8)):
            for d in range(4):
                s_ = src + 4 * i + d
                k(f"v_lshlrev_b32 v12, 16, v{s_}\nv_and_b32 v13, 0xffff0000, v{s_}\nv_fmac_f32 v{acc+2*d}, v12, v{HX+i}\nv_fmac_f32 v{acc+2*d+1}, v13, v{HX+i}")
    k.stamp()
    gemv_reduce(AC, 16)
    k("s_cmp_lt_u32 s2, 0x7fffffff\nv_cmp_gt_u32 vcc, 64, v0\ns_cbranch_vccz ffn_kernel_end")
    for rr in range(16):
        k(f"ds_read_b32 v{16+rr}, v12 offset:{64+128*rr}\nds_read_b32 v{32+rr}, v12 offset:{96+128*rr}")
    k("s_waitcnt lgkmcnt(0)")
    for st in (8, 4, 2, 1):
        for rr in range(st):
            k(f"v_add_f32 v{16+rr}, v{16+rr}, v{16+rr+st}\nv_add_f32 v{32+rr}, v{32+rr}, v{32+rr+st}")
    k(f"""
    v_cvt_pk_bf16_f32 v16, v16, v32
    v_and_b32 v20, 0xffff0000, v16
    v_lshlrev_b32 v16, 16, v16
    v_mul_f32 v17, {f32hex(-1.4426950408889634)}, v16
    v_exp_f32 v17, v17
    s_nop 0
    v_add_f32 v17, 1.0, v17
    v_rcp_f32 v17, v17
    s_nop 0
    v_mul_f32 v16, v16, v17
    v_cvt_pk_bf16_f32 v16, v16, v16
    v_lshlrev_b32 v16, 16, v16
    v_mul_f32 v16, v16, v20
    v_cvt_pk_bf16_f32 v16, v16, v16
    v_lshlrev_b32 v16, 16, v16
    v_lshlrev_b32 v12, 2, v0
    s_lshl_b32 s16, s2, 6
    s_mov_b64 exec, 0xffff
    buffer_store_dword v16, v12, s[44:47], s16 offen sc1
    s_mov_b64 exec, -1
    s_branch ffn_kernel_end
    """)
    k.label("ffb")
    D, AV_, AC = 16, 72, 104
    k.srd_off(32, 12, WS_WD, 40 * 55296)
    k(f"s_sub_u32 s16, s2, {NFF}\ns_mul_i32 s17, s16, 55296\nv_cmp_gt_u32 vcc, 128, v0\nv_mov_b32 v2, 0x40000000\ns_nop 1\nv_cndmask_b32 v6, v2, v1, vcc")
    for i in range(14):
        k(f"buffer_load_dwordx4 {v4(D+4*i)}, v{6 if i == 13 else 1}, s[32:35], s17 offen\ns_add_u32 s17, s17, 4096")
    argmax(14)
    k(f"v_mov_b32 v2, 0\nbuffer_load_dwordx3 v[{SS}:{SS+2}], v2, s[24:27], s19 offen")
    k("v_and_b32 v3, 15, v0\nv_lshlrev_b32 v3, 1, v3\ns_lshl_b32 s17, s16, 5\ns_add_u32 s53, s53, s17\nbuffer_load_ushort v124, v3, s[20:23], s53 offen")
    k("s_waitcnt vmcnt(1)")
    row_stats(k, SS, SS + 1, SS + 2, 8, 9, 10, 125)
    k(f"""
    s_nop 0
    v_cvt_pk_bf16_f32 v10, v10, v10
    v_lshlrev_b32 v10, 16, v10
    v_mul_f32 v11, {f32hex(-1.4426950408889634)}, v10
    v_exp_f32 v11, v11
    s_nop 0
    v_add_f32 v11, 1.0, v11
    v_rcp_f32 v11, v11
    s_nop 0
    v_cvt_pk_bf16_f32 v11, v11, v11
    v_lshlrev_b32 v11, 16, v11
    s_mov_b32 s17, 0
    """)
    k.stamp()
    k("v_lshrrev_b32 v4, 1, v0\nv_lshlrev_b32 v4, 2, v4")
    k.label("poll")
    for i in range(14):
        k(f"s_mov_b32 s16, {512*i}\nbuffer_load_dword v{AV_+i}, v4, s[44:47], s16 offen sc1")
    k("s_waitcnt vmcnt(0)")
    k(f"v_and_b32 v5, v{AV_}, v{AV_+1}")
    k(f"v_max_u32 v5, v{AV_}, v{AV_+1}")
    for i in range(2, 14, 2):
        k(f"v_max3_u32 v5, v{AV_+i}, v{AV_+i+1}, v5")
    k(f"""
    v_cmp_eq_u32 vcc, -1, v5
    s_add_u32 s17, s17, 1
    s_cbranch_vccz ffn_kernel_go
    s_cmp_lt_u32 s17, 0x100000
    s_cbranch_scc0 ffn_kernel_go
    s_sleep 2
    s_branch ffn_kernel_poll
    """)
    k.label("go")
    k.stamp()
    for r in range(8):
        k(f"v_mov_b32 v{AC+r}, 0")
    for i in range(14):
        for d in range(4):
            s_ = D + 4 * i + d
            k(f"v_lshlrev_b32 v12, 16, v{s_}\nv_and_b32 v13, 0xffff0000, v{s_}\nv_fmac_f32 v{AC+2*d}, v12, v{AV_+i}\nv_fmac_f32 v{AC+2*d+1}, v13, v{AV_+i}")
    gemv_reduce(AC, 8)
    k("v_cmp_gt_u32 vcc, 64, v0\ns_cbranch_vccz ffn_kernel_end")
    for rr in range(16):
        k(f"ds_read_b32 v{16+rr}, v12 offset:{64+128*rr}")
    k("s_waitcnt lgkmcnt(0)")
    for st in (8, 4, 2, 1):
        for rr in range(st):
            k(f"v_add_f32 v{16+rr}, v{16+rr}, v{16+rr+st}")
    k("""
    v_cvt_pk_bf16_f32 v16, v16, v16
    v_lshlrev_b32 v16, 16, v16
    v_mul_f32 v16, v16, v11
    v_cvt_pk_bf16_f32 v16, v16, v16
    v_lshlrev_b32 v16, 16, v16
    v_lshlrev_b32 v124, 16, v124
    v_sub_f32 v10, v124, v8
    v_mul_f32 v10, v10, v9
    v_cvt_pk_bf16_f32 v10, v10, v10
    v_lshlrev_b32 v10, 16, v10
    v_add_f32 v10, v10, v16
    v_cvt_pk_bf16_f32 v10, v10, v10
    v_lshlrev_b32 v10, 16, v10
    v_add_f32 v10, v10, v124
    v_cvt_pk_bf16_f32 v10, v10, v10
    s_mov_b64 exec, 0xffff
    buffer_store_short v10, v3, s[28:31], s53 offen
    s_mov_b64 exec, -1
    """)
    k.finish(3)
    return k, f"grid=({NTOT},1,1) block=(256,1,1) lds=4096"

def main():
    ks = [gen_k1(), gen_k2(), gen_k3(), gen_k4()]
    out = "; generated by dev/gen7.py (hand-written generator)\n"
    for k, l in ks:
        out += f"; @launch kernel={k.name} {l}\n"
    out += '.amdgcn_target "amdgcn-amd-amdhsa--gfx950"\n.text\n'
    for k, l in ks:
        out += k.text()
    out += '.section .rodata,"a"\n'
    for k, l in ks:
        out += ".p2align 6\n" + k.desc()
    path = sys.argv[1] if len(sys.argv) > 1 else f"cdna_kernels/{NAME}.s"
    open(path, "w").write(out)
    print("wrote", path, len(out))

main()
```

```python
import sys, struct, os
STAMP = os.environ.get("STAMP", "0") == "1"
DIAG = os.environ.get("DIAG", "0") == "1"
NAME = "sequential_preLN__grouped_kv_mqa__moe_arch_mod__prompt"
WS_Q, WS_KV, WS_O, WS_H, WS_ST, WS_KM, WS_YP, WS_SEL = 0, 0x400000, 0x800000, 0xC00000, 0x1000000, 0x1100000, 0x1200000, 0x1300000
WS_FW, WS_WO, WS_WD, WS_A, WS_WQ = 0x1400000, 0x1900000, 0x1A00000, 0x1D00000, 0x1E00000
MATB = 2048 * 1280
QSCALE = (20 ** -0.5) * 1.4426950408889634
NFF = 108

def f32hex(x):
    return "0x%08x" % struct.unpack("<I", struct.pack("<f", x))[0]

class K:
    def __init__(self, name, vgpr, sgpr=96):
        self.name, self.vgpr, self.sgpr = name, vgpr, sgpr
        self.lines = []
        self.nst = 0
    def __call__(self, s):
        for l in s.strip().split("\n"):
            if l.strip():
                self.lines.append("    " + l.strip())
    def label(self, s):
        self.lines.append(f"{self.name}_{s}:")
    def srd(self, d, b, size):
        self(f"s_mov_b32 s{d}, s{b}\ns_mov_b32 s{d+1}, s{b+1}\ns_mov_b32 s{d+2}, {size}\ns_mov_b32 s{d+3}, 0x00020000")
    def srd_off(self, d, b, off, size):
        self(f"s_add_u32 s{d}, s{b}, {off}\ns_addc_u32 s{d+1}, s{b+1}, 0\ns_mov_b32 s{d+2}, {size}\ns_mov_b32 s{d+3}, 0x00020000")
    def stamp(self, real=False):
        if not STAMP: return
        i = self.nst; self.nst += 1
        self(f"{'s_memrealtime' if real else 's_memtime'} s[{60+2*i}:{61+2*i}]")
    def diag_start(self, kid):
        if not DIAG: return
        self(f"s_load_dwordx2 s[84:85], s[0:1], 88\ns_memrealtime s[86:87]\ns_waitcnt lgkmcnt(0)\ns_add_u32 s84, s84, {512*(3-kid)}\ns_addc_u32 s85, s85, 0")
    def finish(self, kid, wsreg=12):
        self.label("end")
        self.stamp()
        if DIAG:
            self(f"""
            s_memrealtime s[88:89]
            s_waitcnt lgkmcnt(0) vmcnt(0)
            s_and_b32 s90, s2, 7
            s_cmp_eq_u32 s90, 3
            s_cbranch_scc0 {self.name}_exit
            s_mov_b64 exec, 1
            s_mov_b32 s92, s84
            s_mov_b32 s93, s85
            s_mov_b32 s94, 256
            s_mov_b32 s95, 0x00020000
            v_mov_b32 v1, 0
            v_mov_b32 v2, s88
            buffer_atomic_umax v2, v1, s[92:95], 0 offen offset:{8*kid+4} sc1
            v_not_b32 v3, s86
            buffer_atomic_umax v3, v1, s[92:95], 0 offen offset:{8*kid} sc1
            """)
        if STAMP:
            self(f"s_waitcnt lgkmcnt(0)\ns_mov_b64 exec, 1")
            self.srd_off(92, wsreg, 0x2000000 + kid * 0x100000, 0x100000)
            self("v_lshrrev_b32 v1, 6, v0\ns_lshl_b32 s90, s2, 4\nv_add_u32 v1, s90, v1\nv_lshlrev_b32 v1, 6, v1")
            for i in range(self.nst):
                self(f"v_mov_b32 v2, s{60+2*i}\nbuffer_store_dword v2, v1, s[92:95], 0 offen offset:{4*i}")
        self.label("exit")
        self("s_endpgm")
    def text(self):
        return (f".globl {self.name}\n.p2align 8\n.type {self.name},@function\n{self.name}:\n" + "\n".join(self.lines) + "\n")
    def desc(self):
        acc = (self.vgpr + 3) // 4 * 4
        return (f".amdhsa_kernel {self.name}\n  .amdhsa_next_free_vgpr {self.vgpr}\n  .amdhsa_next_free_sgpr {self.sgpr}\n"
                f"  .amdhsa_accum_offset {acc}\n  .amdhsa_group_segment_fixed_size 0\n  .amdhsa_kernarg_size 104\n"
                f"  .amdhsa_user_sgpr_count 2\n  .amdhsa_user_sgpr_kernarg_segment_ptr 1\n  .amdhsa_system_sgpr_workgroup_id_x 1\n"
                f".end_amdhsa_kernel\n")

def v4(b): return f"v[{b}:{b+3}]"
def v2(b): return f"v[{b}:{b+1}]"
def v16(b): return f"v[{b}:{b+15}]"

def red_g(k, regs, tmp, op="add"):
    ins = "v_add_f32" if op == "add" else "v_max_f32"
    for i, r in enumerate(regs):
        k(f"ds_swizzle_b32 v{tmp+i}, v{r} offset:0x401F")
    k("s_waitcnt lgkmcnt(0)")
    for i, r in enumerate(regs):
        k(f"{ins} v{r}, v{r}, v{tmp+i}\nv_mov_b32 v{tmp+i}, v{r}")
    k("s_nop 1")
    for i, r in enumerate(regs):
        k(f"v_permlane32_swap_b32 v{tmp+i}, v{r}")
    k("s_nop 1")
    for i, r in enumerate(regs):
        k(f"{ins} v{r}, v{r}, v{tmp+i}")

def ln_fin(k, m, r):
    k(f"""
    v_mul_f32 v{m}, {f32hex(1/640)}, v{m}
    v_mul_f32 v{r}, {f32hex(1/640)}, v{r}
    v_fma_f32 v{r}, -v{m}, v{m}, v{r}
    v_max_f32 v{r}, 0, v{r}
    v_add_f32 v{r}, {f32hex(1e-5)}, v{r}
    v_rsq_f32 v{r}, v{r}
    s_nop 0
    v_mul_f32 v{m}, v{m}, v{r}
    """)

def gen_k1():
    k = K("kv_kernel", 96)
    WK_OFF, WV_OFF = 20480, 20480 + 28672
    XF, WF, ACC, CS, ONES, ST, TMP = 16, 24, 32, 36, 40, 44, 52
    k("""
    s_cmp_ge_u32 s2, 386
    s_cbranch_scc1 kv_kernel_exit
    s_cmp_ge_u32 s2, 128
    s_cbranch_scc1 kv_kernel_cpy
    s_load_dwordx2 s[4:5], s[0:1], 0
    s_load_dwordx4 s[8:11], s[0:1], 16
    s_load_dwordx2 s[12:13], s[0:1], 96
    s_load_dwordx2 s[14:15], s[0:1], 48
    v_and_b32 v1, 63, v0
    v_lshrrev_b32 v2, 6, v0
    s_and_b32 s17, s2, 7
    s_lshl_b32 s17, s17, 4
    s_lshr_b32 s44, s2, 3
    s_add_u32 s17, s17, s44
    v_readfirstlane_b32 s18, v2
    v_and_b32 v3, 15, v1
    v_lshrrev_b32 v4, 4, v1
    s_waitcnt lgkmcnt(0)
    """)
    k.diag_start(0)
    k.stamp()
    k.srd(20, 4, MATB)
    k.srd(24, 8, 25600)
    k.srd(28, 10, 25600)
    k("s_mul_i32 s45, s17, 20480\ns_mul_i32 s46, s18, 320\ns_mul_i32 s48, s18, 5120")
    for j in range(5):
        k(f"""
        v_add_u32 v6, s46, v1
        v_add_u32 v6, {64*j}, v6
        v_mul_u32_u24 v7, 3277, v6
        v_lshrrev_b32 v7, 18, v7
        v_mul_u32_u24 v8, 80, v7
        v_sub_u32 v8, v6, v8
        v_xor_b32 v8, v8, v7
        v_mul_u32_u24 v7, 1280, v7
        v_lshl_add_u32 v7, v8, 4, v7
        s_mov_b32 m0, s48
        s_add_u32 s48, s48, 1024
        buffer_load_dwordx4 v7, s[20:23], s45 offen lds
        """)
    k(f"v_lshlrev_b32 v7, 4, v1\ns_lshl_b32 s47, s18, 10\ns_add_u32 s48, s47, {WK_OFF}")
    for j in range(7):
        k(f"s_mov_b32 m0, s48\ns_add_u32 s49, s48, 28672\nbuffer_load_dwordx4 v7, s[24:27], s47 offen lds\ns_mov_b32 m0, s49\ns_add_u32 s48, s48, 4096\nbuffer_load_dwordx4 v7, s[28:31], s47 offen lds\ns_add_u32 s47, s47, 4096")
    k(f"""
    v_mul_u32_u24 v9, 1280, v3
    v_and_b32 v6, 3, v3
    v_xor_b32 v6, v6, v4
    v_lshl_add_u32 v9, v6, 4, v9
    v_and_b32 v10, 12, v3
    v_lshrrev_b32 v12, 2, v1
    v_and_b32 v12, 3, v12
    v_lshl_add_u32 v12, v4, 3, v12
    v_and_b32 v13, 3, v1
    v_mul_u32_u24 v11, 40, v12
    v_lshl_add_u32 v11, v13, 3, v11
    s_lshr_b32 s46, s18, 1
    s_mul_i32 s46, s46, 28672
    s_and_b32 s47, s18, 1
    s_lshl_b32 s47, s47, 5
    s_add_u32 s46, s46, s47
    s_add_u32 s46, s46, {WK_OFF}
    v_add_u32 v11, s46, v11
    """)
    for q in range(4):
        k(f"v_xor_b32 v6, {4*q}, v10\nv_lshl_add_u32 v{TMP+8+q}, v6, 4, v9")
    for i in range(4):
        k(f"v_mov_b32 v{ONES+i}, 0x3f803f80\nv_mov_b32 v{ST+i}, 0")
    k.srd_off(36, 12, WS_KV, 163840)
    k.stamp()
    k("s_waitcnt vmcnt(0)\ns_barrier")
    k.stamp()
    def reads(ks, b):
        k(f"ds_read_b128 {v4(XF+4*b)}, v{TMP+8+(ks&3)} offset:{(ks>>2)*256}")
        for h in range(2):
            k(f"ds_read_b64_tr_b16 {v2(WF+4*b+2*h)}, v11 offset:{ks*1280+h*160}")
    reads(0, 0)
    for ks in range(20):
        if ks < 19:
            reads(ks + 1, (ks + 1) & 1)
            k("s_waitcnt lgkmcnt(3)")
        else:
            k("s_waitcnt lgkmcnt(0)")
        b = ks & 1
        k(f"v_mfma_f32_16x16x32_bf16 {v4(ACC)}, {v4(WF+4*b)}, {v4(XF+4*b)}, {'0' if ks == 0 else v4(ACC)}")
        k(f"v_mfma_f32_16x16x32_bf16 {v4(CS)}, {v4(WF+4*b)}, {v4(ONES)}, {'0' if ks == 0 else v4(CS)}")
        for d in range(4):
            k(f"v_dot2_f32_bf16 v{ST+(d&1)}, v{XF+4*b+d}, v{ONES}, v{ST+(d&1)}\nv_dot2_f32_bf16 v{ST+2+(d&1)}, v{XF+4*b+d}, v{XF+4*b+d}, v{ST+2+(d&1)}")
    k.stamp()
    k(f"s_nop 7\nv_add_f32 v{ST}, v{ST}, v{ST+1}\nv_add_f32 v{ST+1}, v{ST+2}, v{ST+3}")
    red_g(k, [ST, ST + 1], TMP)
    ln_fin(k, ST, ST + 1)
    k.srd_off(40, 12, WS_Q, 16384)
    k(f"""
    s_cmp_eq_u32 s18, 3
    s_cbranch_scc0 kv_kernel_nost
    s_lshl_b32 s46, s17, 7
    v_lshlrev_b32 v14, 3, v3
    s_mov_b64 exec, 0xffff
    buffer_store_dwordx2 {v2(ST)}, v14, s[40:43], s46 offen
    s_mov_b64 exec, -1
    """)
    k.label("nost")
    for r in range(4):
        k(f"v_mul_f32 v{ACC+r}, v{ACC+r}, v{ST+1}\nv_fma_f32 v{ACC+r}, -v{CS+r}, v{ST}, v{ACC+r}")
    k(f"v_cvt_pk_bf16_f32 v{ACC}, v{ACC}, v{ACC+1}\nv_cvt_pk_bf16_f32 v{ACC+1}, v{ACC+2}, v{ACC+3}")
    k("""
    s_lshr_b32 s44, s17, 1
    s_mul_i32 s44, s44, 2560
    s_and_b32 s45, s17, 1
    s_cmp_ge_u32 s18, 2
    s_cbranch_scc1 kv_kernel_vepi
    v_mov_b32 v15, 0
    s_cmp_eq_u32 s18, 0
    s_cbranch_scc0 kv_kernel_k1
    """)
    k(f"""
    s_lshl_b32 s46, s45, 8
    s_add_u32 s44, s44, s46
    v_lshrrev_b32 v14, 1, v4
    v_lshlrev_b32 v14, 9, v14
    v_lshl_add_u32 v14, v3, 4, v14
    v_and_b32 v13, 1, v4
    v_lshl_add_u32 v14, v13, 3, v14
    buffer_store_dwordx2 {v2(ACC)}, v14, s[36:39], s44 offen
    v_dot2_f32_bf16 v15, v{ACC}, v{ACC}, v15
    v_dot2_f32_bf16 v15, v{ACC+1}, v{ACC+1}, v15
    s_nop 3
    """)
    red_g(k, [15], TMP)
    k("s_branch kv_kernel_kmax")
    k.label("k1")
    k(f"""
    s_lshl_b32 s46, s45, 7
    s_add_u32 s44, s44, s46
    v_lshlrev_b32 v14, 3, v3
    s_mov_b64 exec, 0xffff
    buffer_store_dwordx2 {v2(ACC)}, v14, s[36:39], s44 offen offset:1024
    v_dot2_f32_bf16 v15, v{ACC}, v{ACC}, v15
    v_dot2_f32_bf16 v15, v{ACC+1}, v{ACC+1}, v15
    """)
    k.srd_off(40, 12, WS_A, 1728 * 4)
    k("""
    s_mov_b64 exec, -1
    v_mov_b32 v20, -1
    v_mov_b32 v21, -1
    v_mov_b32 v22, -1
    v_mov_b32 v23, -1
    s_lshl_b32 s46, s2, 10
    v_lshlrev_b32 v14, 4, v1
    buffer_store_dwordx4 v[20:23], v14, s[40:43], s46 offen
    s_mov_b64 exec, 0xffff
    s_nop 1
    """)
    k.srd_off(40, 12, WS_ST, 32768)
    k("""
    v_mov_b32 v20, 0
    v_mov_b32 v21, 0
    v_mov_b32 v22, 0
    v_mov_b32 v23, 0
    s_lshl_b32 s46, s17, 8
    v_lshlrev_b32 v14, 4, v3
    buffer_store_dwordx4 v[20:23], v14, s[40:43], s46 offen
    s_mov_b64 exec, -1
    """)
    k.label("kmax")
    for off in ("0x041F", "0x081F", "0x101F", "0x201F"):
        k(f"ds_swizzle_b32 v{TMP}, v15 offset:{off}\ns_waitcnt lgkmcnt(0)\nv_max_f32 v15, v15, v{TMP}")
    k.srd_off(40, 12, WS_KM, 1024)
    k("""
    s_lshl_b32 s44, s18, 7
    s_add_u32 s44, s44, s17
    s_lshl_b32 s44, s44, 2
    v_mov_b32 v14, 0
    s_mov_b64 exec, 1
    buffer_store_dword v15, v14, s[40:43], s44 offen
    s_mov_b64 exec, -1
    s_branch kv_kernel_end
    """)
    k.label("vepi")
    k("""
    s_mul_i32 s46, s45, 640
    s_add_u32 s44, s44, s46
    v_bfe_u32 v14, v3, 2, 1
    v_mul_u32_u24 v12, 320, v14
    v_bfe_u32 v14, v3, 3, 1
    v_lshl_add_u32 v12, v14, 3, v12
    v_and_b32 v14, 3, v3
    v_lshl_add_u32 v12, v14, 1, v12
    v_lshl_add_u32 v14, v4, 6, v12
    s_cmp_eq_u32 s18, 2
    s_cbranch_scc1 kv_kernel_v0
    v_add_u32 v14, 256, v12
    s_mov_b64 exec, 0xffff
    """)
    k.label("v0")
    k(f"""
    buffer_store_short v{ACC}, v14, s[36:39], s44 offen offset:1280
    buffer_store_short_d16_hi v{ACC}, v14, s[36:39], s44 offen offset:1296
    buffer_store_short v{ACC+1}, v14, s[36:39], s44 offen offset:1312
    buffer_store_short_d16_hi v{ACC+1}, v14, s[36:39], s44 offen offset:1328
    s_mov_b64 exec, -1
    s_cmp_eq_u32 s18, 3
    s_cbranch_scc0 kv_kernel_end
    s_cmp_eq_u32 s2, 0
    s_cbranch_scc0 kv_kernel_end
    """)
    k.srd(40, 14, 1280)
    k(f"""
    v_mul_u32_u24 v8, 20, v1
    buffer_load_dwordx4 v[20:23], v8, s[40:43], 0 offen
    buffer_load_dword v24, v8, s[40:43], 0 offen offset:16
    v_mov_b32 v17, 0
    s_waitcnt vmcnt(0)
    v_dot2_f32_bf16 v17, v20, v{ONES}, v17
    v_dot2_f32_bf16 v17, v21, v{ONES}, v17
    v_dot2_f32_bf16 v17, v22, v{ONES}, v17
    v_dot2_f32_bf16 v17, v23, v{ONES}, v17
    v_dot2_f32_bf16 v17, v24, v{ONES}, v17
    s_nop 3
    """)
    for off in ("0x041F", "0x081F", "0x101F", "0x201F"):
        k(f"ds_swizzle_b32 v18, v17 offset:{off}\ns_waitcnt lgkmcnt(0)\nv_add_f32 v17, v17, v18")
    red_g(k, [17], 18)
    k.srd_off(40, 12, WS_SEL, 64)
    k("""
    v_mov_b32 v14, 0
    s_mov_b64 exec, 1
    buffer_store_dword v17, v14, s[40:43], 0 offen offset:32
    s_mov_b64 exec, -1
    """)
    k("s_branch kv_kernel_end")
    k.label("cpy")
    k("""
    s_load_dwordx2 s[12:13], s[0:1], 96
    s_sub_u32 s16, s2, 128
    s_mov_b32 s46, 0x12F684C
    s_mov_b32 s47, 0x3333334
    s_mov_b32 s48, 0x1999999A
    v_mov_b32 v14, 0x7fffffff
    """)
    def job(label, nxt, lo, n, karg, srcbytes, dst_off, dst_bytes, kind, dadd=0):
        k.label(label)
        if nxt:
            k(f"s_cmp_ge_u32 s16, {lo+n}\ns_cbranch_scc1 kv_kernel_{nxt}")
        k(f"""
        s_load_dwordx2 s[4:5], s[0:1], {karg}
        s_sub_u32 s17, s16, {lo}
        s_lshl_b32 s17, s17, 11
        v_add_u32 v1, s17, v0
        s_waitcnt lgkmcnt(0)
        """)
        k.srd(20, 4, srcbytes)
        k.srd_off(24, 12, dst_off, dst_bytes)
        for i in range(8):
            k(f"v_add_u32 v{2+i}, {256*i}, v1\nv_lshlrev_b32 v10, 4, v{2+i}\nbuffer_load_dwordx4 {v4(16+4*i)}, v10, s[20:23], 0 offen")
        npieces = srcbytes // 16
        for i in range(8):
            p = 2 + i
            if kind == "tile":
                k(f"""
                v_mul_hi_u32 v10, v{p}, s47
                v_mul_u32_u24 v11, 80, v10
                v_sub_u32 v11, v{p}, v11
                v_mul_hi_u32 v12, v11, s48
                v_mul_u32_u24 v13, 10, v12
                v_sub_u32 v13, v11, v13
                v_mul_u32_u24 v12, 102400, v12
                v_mul_u32_u24 v10, 160, v10
                v_add_u32 v12, v12, v10
                v_lshl_add_u32 v12, v13, 4, v12
                """)
            else:
                mag, per, sl = ("s46", 216, 40960) if kind == "gu" else ("s47", 80, 55296)
                k(f"""
                v_mul_hi_u32 v10, v{p}, {mag}
                v_mul_u32_u24 v11, {per}, v10
                v_sub_u32 v11, v{p}, v11
                v_lshrrev_b32 v12, 1, v11
                v_mul_u32_u24 v12, {sl}, v12
                v_lshl_add_u32 v12, v10, 5, v12
                v_and_b32 v11, 1, v11
                v_lshl_add_u32 v12, v11, 4, v12
                v_add_u32 v12, {dadd}, v12
                """)
            k(f"v_cmp_gt_u32 vcc, {npieces}, v{p}\ns_nop 1\nv_cndmask_b32 v{p}, v14, v12, vcc")
        for i in range(8):
            k(f"s_waitcnt vmcnt({7-i})\nbuffer_store_dwordx4 {v4(16+4*i)}, v{2+i}, s[24:27], 0 offen")
        k("s_endpgm")
    def job2(label, nxt, lo, n, karg, rowb, nrows, nsg, dst_off, dst_bytes, sliceb):
        k.label(label)
        if nxt:
            k(f"s_cmp_ge_u32 s16, {lo+n}\ns_cbranch_scc1 kv_kernel_{nxt}")
        total = (nrows // 4) * nsg
        magic = (1 << 32) // nsg + 1
        k(f"""
        s_load_dwordx2 s[4:5], s[0:1], {karg}
        v_and_b32 v1, 63, v0
        v_lshrrev_b32 v2, 6, v0
        v_lshrrev_b32 v3, 4, v1
        v_bfe_u32 v4, v1, 1, 3
        v_and_b32 v5, 1, v1
        v_readfirstlane_b32 s18, v2
        v_mul_u32_u24 v6, {rowb}, v3
        v_lshl_add_u32 v6, v4, 5, v6
        v_lshl_add_u32 v6, v5, 4, v6
        v_mul_u32_u24 v7, {sliceb}, v4
        v_lshl_add_u32 v7, v3, 5, v7
        v_lshl_add_u32 v7, v5, 4, v7
        s_sub_u32 s17, s16, {lo}
        s_lshl_b32 s17, s17, 5
        s_lshl_b32 s18, s18, 3
        s_add_u32 s17, s17, s18
        s_mov_b32 s19, {magic}
        s_waitcnt lgkmcnt(0)
        """)
        k.srd(20, 4, rowb * nrows)
        k.srd_off(24, 12, dst_off, dst_bytes)
        for i in range(8):
            k(f"""
            s_add_u32 s30, s17, {i}
            s_mul_hi_u32 s31, s30, s19
            s_mul_i32 s32, s31, {nsg}
            s_sub_u32 s32, s30, s32
            s_mul_i32 s33, s31, {4*rowb}
            s_lshl_b32 s34, s32, 8
            s_add_u32 s33, s33, s34
            s_mul_i32 s{40+i}, s32, {8*sliceb}
            s_lshl_b32 s34, s31, 7
            s_add_u32 s{40+i}, s{40+i}, s34
            s_cmp_lt_u32 s30, {total}
            s_cselect_b32 s{40+i}, s{40+i}, 0x40000000
            buffer_load_dwordx4 {v4(16+4*i)}, v6, s[20:23], s33 offen
            """)
        for i in range(8):
            k(f"s_waitcnt vmcnt({7-i})\nbuffer_store_dwordx4 {v4(16+4*i)}, v7, s[24:27], s{40+i} offen")
        k("s_endpgm")
    job("j0", "j1", 0, 25, 8, 819200, WS_WQ, 819200, "tile")
    job("j1", "j2", 25, 25, 32, 819200, WS_WO, 819200, "tile")
    job2("j2", "j3", 50, 70, 56, 3456, 640, 14, WS_FW, NFF * 40960, 40960)
    job2("j3", "j4", 120, 70, 64, 3456, 640, 14, WS_FW + 20480, NFF * 40960 - 20480, 40960)
    job2("j4", None, 190, 68, 72, 1280, 1728, 5, WS_WD, 40 * 55296, 55296)
    k.finish(0)
    return k, "grid=(386,1,1) block=(256,1,1) lds=%d" % (20480 + 2 * 28672)

SLOT = 36864
W_OFF = 16384
XF, SRC, VA_RD, VW_RD, ST, ONES, ACC, CS, WF, TMP = 16, 16, 48, 52, 56, 76, 80, 96, 100, 108

def gemm_ids(k):
    k("""
    v_and_b32 v1, 63, v0
    v_lshrrev_b32 v2, 6, v0
    s_lshr_b32 s16, s2, 5
    s_and_b32 s17, s2, 7
    s_lshl_b32 s17, s17, 2
    s_bfe_u32 s44, s2, 0x20003
    s_add_u32 s17, s17, s44
    v_readfirstlane_b32 s18, v2
    v_and_b32 v3, 15, v1
    v_lshrrev_b32 v4, 4, v1
    """)

def loader_list(lw):
    return [("A", e) for e in range(16)][12*lw:12*lw+12] + [("W", e) for e in range(20)][max(0, 12*lw-16):max(0, 12*lw+12-16)]

def gemm_loader(k, lw, w_linear, gb, wchunk, mid=None, nmid=0):
    lst = loader_list(lw)
    k("s_lshl_b32 s45, s17, 6")
    for i, (kind, e) in enumerate(lst):
        if kind == "A":
            k(f"""
            v_add_u32 v6, {4*e}, v4
            v_and_b32 v7, 15, v6
            v_xor_b32 v7, v7, v3
            v_add_u32 v6, s45, v6
            v_mul_u32_u24 v6, 1280, v6
            v_lshl_add_u32 v{SRC+i}, v7, 4, v6
            """)
        elif w_linear:
            k(f"v_add_u32 v6, {64*e}, v1\nv_lshlrev_b32 v{SRC+i}, 4, v6")
        else:
            k(f"""
            v_add_u32 v6, {64*e}, v1
            v_mul_u32_u24 v7, 6554, v6
            v_lshrrev_b32 v7, 16, v7
            v_mul_u32_u24 v8, 10, v7
            v_sub_u32 v8, v6, v8
            v_mul_u32_u24 v7, 1280, v7
            v_lshl_add_u32 v{SRC+i}, v8, 4, v7
            """)
    def issue(c):
        slot = gb + (c % 3) * SLOT
        k(f"s_mov_b32 s46, {c*256}\ns_mov_b32 s47, {c*wchunk}")
        for i, (kind, e) in enumerate(lst):
            if kind == "A":
                k(f"s_mov_b32 m0, {slot + e*1024}\ns_nop 0\nbuffer_load_dwordx4 v{SRC+i}, s[20:23], s46 offen lds")
            else:
                k(f"s_mov_b32 m0, {slot + W_OFF + e*1024}\ns_nop 0\nbuffer_load_dwordx4 v{SRC+i}, s[24:27], s47 offen lds")
    for c in range(2):
        issue(c)
    k.stamp()
    waits = [12, 12, 12, 12, nmid]
    for c in range(5):
        k(f"s_waitcnt vmcnt({waits[c]})\ns_barrier")
        k.stamp()
        if c + 2 <= 4:
            issue(c + 2)
        if c == 3 and mid:
            mid()
    k("s_waitcnt vmcnt(0)")
    k.stamp()

XF2, WF2, ACC2, CS2 = 16, 32, 64, 88
VA2, VW2, ST2 = 100, 104, 108
ONES2 = 56
def gemm_mm(k, tiles, colsum, gb):
    k(f"""
    v_lshlrev_b32 v6, 8, v3
    v_and_b32 v7, 3, v3
    v_xor_b32 v7, v7, v4
    v_lshl_add_u32 v6, v7, 4, v6
    s_and_b32 s46, s18, 1
    s_lshl_b32 s46, s46, 13
    s_add_u32 s46, s46, {gb}
    v_add_u32 v6, s46, v6
    v_and_b32 v7, 12, v3
    """)
    for ks in range(4):
        k(f"v_xor_b32 v8, {4*ks}, v7\nv_lshl_add_u32 v{VA2+ks}, v8, 4, v6")
    k(f"""
    v_lshrrev_b32 v12, 2, v1
    v_and_b32 v12, 3, v12
    v_lshl_add_u32 v12, v4, 3, v12
    v_and_b32 v13, 3, v1
    v_mul_u32_u24 v{VW2}, 160, v12
    v_lshl_add_u32 v{VW2}, v13, 3, v{VW2}
    v_add_u32 v{VW2}, {gb + W_OFF}, v{VW2}
    """)
    if colsum:
        for i in range(4):
            k(f"v_mov_b32 v{ONES2+i}, 0x3f803f80")
    k.stamp()
    nt = len(tiles)
    nr = 2 + 2 * nt
    def reads(ks, buf):
        for j in range(2):
            k(f"ds_read_b128 {v4(XF2+8*buf+4*j)}, v{VA2+ks} offset:{j*4096}")
        for u, t in enumerate(tiles):
            for h in range(2):
                k(f"ds_read_b64_tr_b16 {v2(WF2+12*buf+4*u+2*h)}, v{VW2} offset:{ks*5120 + t*32 + h*640}")
    for c in range(5):
        k("s_barrier")
        k.stamp()
        reads(0, 0)
        for ks in range(4):
            if ks < 3:
                reads(ks + 1, (ks + 1) & 1)
                k(f"s_waitcnt lgkmcnt({nr})")
            else:
                k("s_waitcnt lgkmcnt(0)")
                if c < 4:
                    d = SLOT if (c % 3) != 2 else -2 * SLOT
                    for r in [VA2 + i for i in range(4)] + [VW2]:
                        k(f"v_add_u32 v{r}, {d & 0xffffffff}, v{r}")
            first = (c == 0 and ks == 0)
            b = ks & 1
            for u in range(nt):
                for j in range(2):
                    a = ACC2 + 12 * j + 4 * u
                    k(f"v_mfma_f32_16x16x32_bf16 {v4(a)}, {v4(WF2+12*b+4*u)}, {v4(XF2+8*b+4*j)}, {'0' if first else v4(a)}")
                if colsum:
                    k(f"v_mfma_f32_16x16x32_bf16 {v4(CS2+4*u)}, {v4(WF2+12*b+4*u)}, {v4(ONES2)}, {'0' if first else v4(CS2+4*u)}")
    k.stamp()

def gen_k2():
    k = K("attn_kernel", 144)
    GB = 53248
    QB = 163840 - 10240
    QF1, QF2, SA, SB, O, P = 8, 12, 16, 32, 48, 64
    KF = [72, 80]; VF = [88, 96]
    AK, AK2, AV, VO = 136, 137, 138, 139
    T = 108
    QA, KX = 125, 127
    CP, CPD = 128, 128
    THRESH = 50.0
    k("""
    s_cmp_ge_u32 s2, 256
    s_cbranch_scc1 attn_kernel_exit
    s_load_dwordx2 s[4:5], s[0:1], 0
    s_load_dwordx2 s[12:13], s[0:1], 96
    s_load_dwordx2 s[14:15], s[0:1], 32
    s_load_dwordx4 s[8:11], s[0:1], 56
    """)
    gemm_ids(k)
    k("s_waitcnt lgkmcnt(0)")
    k.diag_start(1)
    k.stamp()
    k.srd(20, 4, MATB)
    k(f"""
    s_mul_i32 s44, s16, 102400
    s_add_u32 s44, s44, {WS_WQ}
    s_add_u32 s24, s12, s44
    s_addc_u32 s25, s13, 0
    s_mov_b32 s26, 102400
    s_mov_b32 s27, 0x00020000
    """)
    k.srd_off(28, 12, WS_KM, 1024)
    k.srd_off(56, 12, WS_KV, 163840)
    k(f"""
    v_lshlrev_b32 v7, 2, v1
    buffer_load_dword v{CP}, v7, s[28:31], 0 offen
    buffer_load_dword v{CP+1}, v7, s[28:31], 0 offen offset:256
    buffer_load_dword v{CP+2}, v7, s[28:31], 0 offen offset:512
    buffer_load_dword v{CP+3}, v7, s[28:31], 0 offen offset:768
    """)
    k(f"v_lshlrev_b32 v{CPD+4}, 4, v1\ns_lshl_b32 s52, s18, 10\ns_add_u32 s52, s52, 49152")
    def dma():
        k(f"s_mov_b32 m0, s52\ns_nop 0\nbuffer_load_dwordx4 v{CPD+4}, s[56:59], s52 offen lds\ns_add_u32 s52, s52, 8192")
    def pre(nyounger):
        k(f"""
        v_and_b32 v{T}, 31, v1
        v_lshrrev_b32 v{T+1}, 5, v1
        v_lshrrev_b32 v{T+2}, 2, v{T}
        v_and_b32 v{T+3}, 3, v{T}
        v_mul_u32_u24 v{QA}, 160, v{T+2}
        v_mul_u32_u24 v{T+3}, 40, v{T+3}
        v_add_u32 v{QA}, v{QA}, v{T+3}
        s_mul_i32 s46, s18, 1280
        s_add_u32 s46, s46, {QB}
        v_add_u32 v{QA}, s46, v{QA}
        v_lshl_add_u32 v{QA+1}, v{T+1}, 4, v{QA}
        v_mul_u32_u24 v{VO}, 1280, v{T+2}
        v_add_u32 v{VO}, v{VO}, v{T+3}
        v_lshl_add_u32 v{VO}, v{T+1}, 3, v{VO}
        s_lshl_b32 s19, s17, 6
        s_lshl_b32 s46, s18, 3
        s_add_u32 s19, s19, s46
        s_mul_i32 s19, s19, 1280
        s_mul_i32 s46, s16, 160
        s_add_u32 s19, s19, s46
        v_lshlrev_b32 v{AK}, 4, v1
        v_lshlrev_b32 v{AK2}, 3, v{T}
        v_mul_u32_u24 v{AV}, 320, v{T+1}
        v_lshl_add_u32 v{AV}, v{T}, 4, v{AV}
        s_mov_b32 s40, 0x000fffff
        s_mov_b32 s41, 0x000fffff
        s_waitcnt vmcnt({nyounger})
        v_max_f32 v{T}, v{CP}, v{CP+1}
        v_max_f32 v{T+1}, v{CP+2}, v{CP+3}
        """)
        for ror in (8, 4, 2, 1):
            k(f"s_nop 1\nv_max_f32_dpp v{T}, v{T}, v{T} row_ror:{ror} row_mask:0xf bank_mask:0xf\nv_max_f32_dpp v{T+1}, v{T+1}, v{T+1} row_ror:{ror} row_mask:0xf bank_mask:0xf")
        red_g(k, [T, T + 1], T + 2, "max")
        k(f"v_add_f32 v{KX}, v{T}, v{T+1}")
        k.srd_off(32, 12, WS_O, MATB)
    n0 = k.nst
    k("s_cmp_lt_u32 s18, 4\ns_cbranch_scc1 attn_kernel_mm\ns_cmp_eq_u32 s18, 4\ns_cbranch_scc0 attn_kernel_ld0")
    k.stamp()
    for c in range(5):
        k("s_barrier")
        k.stamp()
    k.stamp()
    k("s_branch attn_kernel_ldone")
    k.label("ld0")
    for lw in range(3):
        if lw < 2:
            k(f"s_cmp_eq_u32 s18, {5+lw}\ns_cbranch_scc0 attn_kernel_ld{lw+1}")
        def mid():
            for i in range(16):
                o = (lw * 16 + i) * 1024
                k(f"s_mov_b32 m0, {o}\ns_mov_b32 s46, {o}\nbuffer_load_dwordx4 v{CPD+4}, s[56:59], s46 offen lds")
        k.nst = n0
        gemm_loader(k, lw, True, GB, 20480, mid, 16)
        k("s_branch attn_kernel_ldone")
        if lw < 2:
            k.label(f"ld{lw+1}")
    k.label("ldone")
    pre(0)
    k("s_branch attn_kernel_qrd")
    k.label("mm")
    k.srd_off(36, 12, WS_Q, 16384)
    k("s_lshl_b32 s46, s17, 9\ns_and_b32 s47, s18, 1\ns_lshl_b32 s47, s47, 8\ns_add_u32 s46, s46, s47\nv_lshlrev_b32 v9, 3, v3")
    for j in range(2):
        k(f"buffer_load_dwordx2 {v2(140+2*j)}, v9, s[36:39], s46 offen offset:{j*128}")
    pre(2)
    k("s_cmp_lt_u32 s18, 2\ns_cbranch_scc0 attn_kernel_mm1")
    for cg, tiles in enumerate(([0, 1, 2], [3, 4])):
        if cg == 1:
            k.label("mm1")
        k.nst = n0
        gemm_mm(k, tiles, True, GB)
        k(f"""
        v_mul_u32_u24 v10, 160, v3
        v_lshl_add_u32 v10, v4, 3, v10
        s_and_b32 s46, s18, 1
        s_mul_i32 s46, s46, 5120
        s_add_u32 s46, s46, {QB}
        v_add_u32 v10, s46, v10
        s_waitcnt vmcnt(0)
        s_nop 3
        """)
        for j in range(2):
            k(f"v_mul_f32 v14, {f32hex(QSCALE)}, v{141+2*j}\nv_mul_f32 v15, {f32hex(QSCALE)}, v{140+2*j}")
            for u, t in enumerate(tiles):
                a = ACC2 + 12 * j + 4 * u
                for r in range(4):
                    k(f"v_mul_f32 v{a+r}, v{a+r}, v14\nv_fma_f32 v{a+r}, -v{CS2+4*u+r}, v15, v{a+r}")
                k(f"v_cvt_pk_bf16_f32 v{a}, v{a}, v{a+1}\nv_cvt_pk_bf16_f32 v{a+1}, v{a+2}, v{a+3}")
                k(f"ds_write_b64 v10, {v2(a)} offset:{j*2560 + t*32}")
        k("s_waitcnt lgkmcnt(0)")
        if cg == 0:
            k("s_branch attn_kernel_qrd")
    k.label("qrd")
    k("s_barrier")
    k.stamp()
    k(f"""
    ds_read_b64 {v2(QF1)}, v{QA+1}
    ds_read_b64 {v2(QF1+2)}, v{QA+1} offset:8
    ds_read_b64 {v2(QF2)}, v{QA} offset:32
    v_and_b32 v3, 31, v1
    v_lshrrev_b32 v4, 5, v1
    """)
    for b in range(2):
        k(f"v_mov_b32 v{KF[b]+6}, 0x3f803f80\nv_mov_b32 v{KF[b]+7}, 0x00003f80")
    k(f"v_cmp_eq_u32 vcc, 20, v3\nv_mov_b32 v{T+2}, 0x3f803f80\ns_nop 1\nv_cndmask_b32 v{T+2}, 0, v{T+2}, vcc")
    for b in range(2):
        for r in range(8):
            k(f"v_mov_b32 v{VF[b]+r}, v{T+2}")
    for r in range(16):
        k(f"v_mov_b32 v{O+r}, 0")
    for r in range(4, 8):
        k(f"v_mov_b32 v{P+r}, 0")
    k(f"""
    v_cmp_eq_u32 vcc, 0, v4
    s_waitcnt lgkmcnt(0)
    v_cndmask_b32 v{QF2}, 0, v{QF2}, vcc
    v_cndmask_b32 v{QF2+1}, 0, v{QF2+1}, vcc
    v_mov_b32 v{QF2+2}, 0
    v_mov_b32 v{QF2+3}, 0
    v_mov_b32 v{T+3}, 0
    """)
    for r in range(4):
        k(f"v_dot2_f32_bf16 v{T+3}, v{QF1+r}, v{QF1+r}, v{T+3}")
    for r in range(2):
        k(f"v_dot2_f32_bf16 v{T+3}, v{QF2+r}, v{QF2+r}, v{T+3}")
    k(f"""
    s_nop 3
    v_mov_b32 v{T+4}, v{T+3}
    v_mov_b32 v{T+5}, v{T+3}
    s_nop 1
    v_permlane32_swap_b32 v{T+4}, v{T+5}
    s_nop 1
    v_add_f32 v{T+3}, v{T+4}, v{T+5}
    v_mul_f32 v{T+3}, v{T+3}, v{KX}
    v_sqrt_f32 v{T+3}, v{T+3}
    s_nop 0
    v_mul_f32 v{T+3}, {f32hex(1.01)}, v{T+3}
    v_mov_b32 v{T+6}, {f32hex(THRESH)}
    v_cmp_nle_f32 vcc, v{T+3}, v{T+6}
    s_barrier
    s_cbranch_vccnz attn_kernel_slow
    """)
    def set_m():
        k(f"""
        v_xor_b32 v{T+3}, 0x80000000, v{T+3}
        v_and_b32 v{T+4}, 0xffff0000, v{T+3}
        v_sub_f32 v{T+5}, v{T+3}, v{T+4}
        v_and_b32 v{T+6}, 0xffff0000, v{T+5}
        v_sub_f32 v{T+5}, v{T+5}, v{T+6}
        v_lshrrev_b32 v{T+4}, 16, v{T+4}
        v_or_b32 v{T+4}, v{T+4}, v{T+6}
        v_lshrrev_b32 v{T+5}, 16, v{T+5}
        v_cmp_eq_u32 vcc, 0, v4
        s_nop 1
        v_cndmask_b32 v{QF2+2}, 0, v{T+4}, vcc
        v_cndmask_b32 v{QF2+3}, 0, v{T+5}, vcc
        """)
    def kreads(b, blk):
        k(f"ds_read_b128 {v4(KF[b])}, v{AK} offset:{blk*2560}\nds_read_b64 {v2(KF[b]+4)}, v{AK2} offset:{blk*2560+1024}")
    def vreads(b, blk):
        k(f"s_mov_b64 exec, s[40:41]\nds_read_b128 {v4(VF[b])}, v{AV} offset:{blk*2560+1280}\nds_read_b128 {v4(VF[b]+4)}, v{AV} offset:{blk*2560+1920}\ns_mov_b64 exec, -1")
    def pipe_start():
        kreads(0, 0); kreads(1, 1); vreads(0, 0)
        k("s_waitcnt lgkmcnt(4)")
        k(f"v_mfma_f32_32x32x16_bf16 {v16(SA)}, {v4(KF[0])}, {v4(QF1)}, 0")
        k(f"v_mfma_f32_32x32x16_bf16 {v16(SA)}, {v4(KF[0]+4)}, {v4(QF2)}, {v16(SA)}")
        k("s_nop 7\ns_nop 3")
    def E(Sc, a, b):
        for r in range(a, b):
            k(f"v_exp_f32 v{Sc+r}, v{Sc+r}")
    def C(Sc, a, b):
        for p in range(a, b):
            k(f"v_cvt_pk_bf16_f32 v{P+p}, v{Sc+2*p}, v{Sc+2*p+1}")
    def iteration(j, ndma):
        par = j & 1
        Sc, Sn = (SA, SB) if par == 0 else (SB, SA)
        k("s_waitcnt lgkmcnt(0)")
        E(Sc, 0, 2)
        k(f"v_mfma_f32_32x32x16_bf16 {v16(O)}, {v4(VF[1-par]+4)}, {v4(P+4)}, {v16(O)}")
        kreads(par, j + 2)
        vreads(1 - par, j + 1)
        E(Sc, 2, 5)
        k(f"v_mfma_f32_32x32x16_bf16 {v16(Sn)}, {v4(KF[1-par])}, {v4(QF1)}, 0")
        E(Sc, 5, 8); C(Sc, 0, 4); E(Sc, 8, 9)
        k(f"v_mfma_f32_32x32x16_bf16 {v16(Sn)}, {v4(KF[1-par]+4)}, {v4(QF2)}, {v16(Sn)}")
        if ndma >= 1: dma()
        E(Sc, 9, 12)
        k(f"v_mfma_f32_32x32x16_bf16 {v16(O)}, {v4(VF[par])}, {v4(P)}, {v16(O)}")
        if ndma >= 2: dma()
        E(Sc, 12, 16); C(Sc, 4, 8)
    def group(with_dma):
        for j in range(8):
            iteration(j, (2 if j < 7 else 0) if with_dma else 0)
        k(f"v_add_u32 v{AK}, 20480, v{AK}\nv_add_u32 v{AK2}, 20480, v{AK2}\nv_add_u32 v{AV}, 20480, v{AV}")
    def copy_loads():
        pass
    set_m()
    k.stamp()
    pipe_start()
    group(True)
    k.stamp()
    k.stamp()
    k("s_mov_b32 s42, 7\ns_mov_b32 s53, 7\ns_branch attn_kernel_loop")
    k.label("slow")
    for i in range(14):
        dma()
    k("s_waitcnt vmcnt(0)\ns_barrier")
    copy_loads()
    k(f"v_mov_b32 v{T+3}, 0xff800000\ns_mov_b32 s42, 64")
    k.label("maxloop")
    kreads(0, 0)
    k(f"v_add_u32 v{AK}, 2560, v{AK}\nv_add_u32 v{AK2}, 2560, v{AK2}\ns_waitcnt lgkmcnt(0)")
    k(f"v_mfma_f32_32x32x16_bf16 {v16(SA)}, {v4(KF[0])}, {v4(QF1)}, 0")
    k(f"v_mfma_f32_32x32x16_bf16 {v16(SA)}, {v4(KF[0]+4)}, {v4(QF2)}, {v16(SA)}")
    k("s_nop 15\ns_nop 3")
    for r in range(0, 16, 2):
        k(f"v_max3_f32 v{T+3}, v{SA+r}, v{SA+r+1}, v{T+3}")
    k("s_sub_u32 s42, s42, 1\ns_cmp_lg_u32 s42, 0\ns_cbranch_scc1 attn_kernel_maxloop")
    k(f"""
    v_mov_b32 v{T+4}, v{T+3}
    v_mov_b32 v{T+5}, v{T+3}
    s_nop 1
    v_permlane32_swap_b32 v{T+4}, v{T+5}
    s_nop 1
    v_max_f32 v{T+3}, v{T+4}, v{T+5}
    v_lshlrev_b32 v{AK}, 4, v1
    v_lshlrev_b32 v{AK2}, 3, v3
    """)
    set_m()
    pipe_start()
    k("s_mov_b32 s42, 8\ns_mov_b32 s53, 100")
    k.label("loop")
    if os.environ.get("PRIO") is not None:
        k(f"s_lshr_b32 s43, s18, 2\ns_add_u32 s43, s43, s42\ns_and_b32 s43, s43, 1\ns_cmp_eq_u32 s43, 0\ns_cbranch_scc1 attn_kernel_p0\ns_setprio 1\ns_branch attn_kernel_p1")
        k.label("p0")
        k("s_setprio 0")
        k.label("p1")
    group(False)
    k("s_cmp_eq_u32 s42, s53\ns_cbranch_scc0 attn_kernel_nobar\ns_waitcnt vmcnt(0)\ns_barrier")
    k.label("nobar")
    k("s_sub_u32 s42, s42, 1\ns_cmp_lg_u32 s42, 0\ns_cbranch_scc1 attn_kernel_loop")
    k.stamp()
    k("s_nop 1")
    k(f"v_mfma_f32_32x32x16_bf16 {v16(O)}, {v4(VF[1]+4)}, {v4(P+4)}, {v16(O)}")
    k("s_nop 15\ns_nop 3")
    k(f"""
    v_mov_b32 v{T}, v{O+8}
    v_mov_b32 v{T+1}, v{O+8}
    s_nop 1
    v_permlane32_swap_b32 v{T}, v{T+1}
    s_nop 1
    v_rcp_f32 v{T+1}, v{T+1}
    s_nop 0
    """)
    for r in range(12):
        k(f"v_mul_f32 v{O+r}, v{O+r}, v{T+1}")
    for p in range(6):
        k(f"v_cvt_pk_bf16_f32 v{P+p}, v{O+2*p}, v{O+2*p+1}")
    k(f"""
    buffer_store_dwordx2 {v2(P)}, v{VO}, s[32:35], s19 offen
    buffer_store_dwordx2 {v2(P+2)}, v{VO}, s[32:35], s19 offen offset:16
    s_mov_b32 exec_hi, 0
    buffer_store_dwordx2 {v2(P+4)}, v{VO}, s[32:35], s19 offen offset:32
    """)
    k.finish(1)
    return k, "grid=(256,1,1) block=(512,1,1) lds=163840"

def gen_k3():
    k = K("oproj_kernel", 128)
    XR, WR = ST, ST + 8
    EXS = 3 * SLOT
    k("""
    s_cmp_ge_u32 s2, 256
    s_cbranch_scc1 oproj_kernel_exit
    s_load_dwordx2 s[4:5], s[0:1], 0
    s_load_dwordx2 s[12:13], s[0:1], 96
    s_load_dwordx2 s[14:15], s[0:1], 48
    """)
    gemm_ids(k)
    k("s_waitcnt lgkmcnt(0)")
    k.diag_start(2)
    k.stamp()
    k.srd_off(20, 12, WS_O, MATB)
    k(f"""
    s_mul_i32 s44, s16, 102400
    s_add_u32 s44, s44, {WS_WO}
    s_add_u32 s24, s12, s44
    s_addc_u32 s25, s13, 0
    s_mov_b32 s26, 102400
    s_mov_b32 s27, 0x00020000
    """)
    k.srd(28, 4, MATB)
    k.srd(32, 14, 1280)
    k.srd_off(36, 12, WS_H, MATB)
    k.srd_off(40, 12, WS_ST, 32768)
    n0 = k.nst
    XR, WR, SS_ = 88, 112, 118
    k("""
    s_cmp_lt_u32 s18, 4
    s_cbranch_scc0 oproj_kernel_idle
    s_lshl_b32 s45, s17, 6
    s_and_b32 s46, s18, 1
    s_lshl_b32 s46, s46, 5
    s_add_u32 s45, s45, s46
    v_add_u32 v5, s45, v3
    v_mul_u32_u24 v10, 1280, v5
    v_lshl_add_u32 v10, v4, 3, v10
    v_lshlrev_b32 v11, 3, v4
    s_mul_i32 s59, s16, 160
    s_add_u32 s58, s59, 20480
    s_cmp_lt_u32 s18, 2
    s_cbranch_scc0 oproj_kernel_mm1
    """)
    for cg, tiles in enumerate(([0, 1, 2], [3, 4])):
        if cg == 1:
            k.label("mm1")
        for u, t in enumerate(tiles):
            for j in range(2):
                k(f"buffer_load_dwordx2 {v2(XR+6*j+2*u)}, v10, s[28:31], s{59-j} offen offset:{t*32}")
            k(f"buffer_load_dwordx2 {v2(WR+2*u)}, v11, s[32:35], s59 offen offset:{t*32}")
        k.nst = n0
        gemm_mm(k, tiles, False, 0)
        k("s_waitcnt vmcnt(0)\ns_nop 7\nv_mov_b32 v15, 0x3f803f80")
        for j in range(2):
            S = SS_ + 4 * j
            k(f"v_mov_b32 v{S}, 0\nv_mov_b32 v{S+1}, 0\nv_mov_b32 v{S+2}, 0\nv_mov_b32 v{S+3}, 0")
            for u, t in enumerate(tiles):
                a = ACC2 + 12 * j + 4 * u
                k(f"v_cvt_pk_bf16_f32 v{a}, v{a}, v{a+1}\nv_cvt_pk_bf16_f32 v{a+1}, v{a+2}, v{a+3}")
                for h in range(2):
                    k(f"""
                    v_lshlrev_b32 v12, 16, v{a+h}
                    v_and_b32 v13, 0xffff0000, v{a+h}
                    v_lshlrev_b32 v6, 16, v{XR+6*j+2*u+h}
                    v_and_b32 v7, 0xffff0000, v{XR+6*j+2*u+h}
                    v_add_f32 v12, v12, v6
                    v_add_f32 v13, v13, v7
                    v_cvt_pk_bf16_f32 v{a+h}, v12, v13
                    """)
                    k(f"v_dot2_f32_bf16 v{S}, v{a+h}, v15, v{S}\nv_dot2_f32_bf16 v{S+1}, v{a+h}, v{a+h}, v{S+1}\nv_dot2_f32_bf16 v{S+2}, v{a+h}, v{WR+2*u+h}, v{S+2}")
                k(f"buffer_store_dwordx2 {v2(a)}, v10, s[36:39], s{59-j} offen offset:{t*32}")
        k("s_nop 3")
        red_g(k, [SS_ + 4 * j + i for j in range(2) for i in range(3)], 16)
        k("""
        v_lshlrev_b32 v14, 4, v5
        v_lshl_add_u32 v14, v4, 2, v14
        v_cmp_eq_u32 vcc, 1, v4
        v_cmp_eq_u32 s[46:47], 2, v4
        v_cmp_eq_u32 s[48:49], 3, v4
        s_nop 1
        """)
        for j in range(2):
            S = SS_ + 4 * j
            k(f"v_cndmask_b32 v{S}, v{S}, v{S+1}, vcc\nv_cndmask_b32 v{S}, v{S}, v{S+2}, s[46:47]\nv_cndmask_b32 v{S}, v{S}, v{S+3}, s[48:49]")
            k(f"buffer_atomic_add_f32 v{S}, v14, s[40:43], 0 offen offset:{j*256}")
        k("s_branch oproj_kernel_end")
    k.label("idle")
    k("s_cmp_eq_u32 s18, 4\ns_cbranch_scc1 oproj_kernel_exit")
    for lw in range(3):
        if lw < 2:
            k(f"s_cmp_eq_u32 s18, {5+lw}\ns_cbranch_scc0 oproj_kernel_ld{lw+1}")
        k.nst = n0
        gemm_loader(k, lw, True, 0, 20480)
        if lw < 2:
            k("s_branch oproj_kernel_end")
            k.label(f"ld{lw+1}")
    k.finish(2)
    return k, "grid=(256,1,1) block=(512,1,1) lds=%d" % (3 * SLOT)

def row_stats(k, s0, s1, s2, mean, rstd, r=None, wsum=None):
    k(f"""
    v_mul_f32 v{mean}, {f32hex(1/640)}, v{s0}
    v_mul_f32 v{rstd}, {f32hex(1/640)}, v{s1}
    v_fma_f32 v{rstd}, -v{mean}, v{mean}, v{rstd}
    v_max_f32 v{rstd}, 0, v{rstd}
    v_add_f32 v{rstd}, {f32hex(1e-5)}, v{rstd}
    v_rsq_f32 v{rstd}, v{rstd}
    """)
    if r is not None:
        k(f"v_fma_f32 v{r}, -v{mean}, v{wsum}, v{s2}\nv_mul_f32 v{r}, v{r}, v{rstd}")

NFB = 40
def gen_k4():
    k = K("ffn_kernel", 128)
    NTOT = NFF + NFB + 128
    SS = 88
    k(f"""
    s_cmp_ge_u32 s2, {NTOT}
    s_cbranch_scc1 ffn_kernel_exit
    s_load_dwordx4 s[8:11], s[0:1], 80
    s_load_dwordx2 s[12:13], s[0:1], 96
    s_waitcnt lgkmcnt(0)
    """)
    k.diag_start(3)
    k.stamp()
    k.srd_off(20, 12, WS_H, MATB)
    k.srd_off(24, 12, WS_ST, 32768)
    k.srd_off(40, 12, WS_SEL, 64)
    k.srd(28, 8, MATB)
    k.srd(48, 10, 256)
    k.srd_off(44, 12, WS_A, 1728 * 4)
    k("v_lshlrev_b32 v1, 4, v0")
    for i in range(8):
        k(f"v_add_u32 v2, {4096*i}, v1\nbuffer_load_dwordx3 v[{SS+4*i}:{SS+2+4*i}], v2, s[24:27], 0 offen")
    k("v_mov_b32 v2, 0\nbuffer_load_dword v125, v2, s[40:43], 0 offen offset:32")
    def argmax(nyounger):
        k(f"s_waitcnt vmcnt({nyounger})")
        k("v_mov_b32 v7, 0")
        for i in range(8):
            b = SS + 4 * i
            row_stats(k, b, b + 1, b + 2, 8, 9, 10, 125)
            k(f"""
            v_ashrrev_i32 v11, 31, v10
            v_or_b32 v11, 0x80000000, v11
            v_xor_b32 v11, v11, v10
            v_and_b32 v11, 0xfffff800, v11
            v_sub_u32 v12, {2047 - 256*i}, v0
            v_or_b32 v11, v11, v12
            v_max_u32 v7, v7, v11
            """)
        for ror in (8, 4, 2, 1):
            k(f"s_nop 1\nv_max_u32_dpp v7, v7, v7 row_ror:{ror} row_mask:0xf bank_mask:0xf")
        k("""
        v_lshrrev_b32 v8, 4, v0
        v_lshlrev_b32 v8, 2, v8
        ds_write_b32 v8, v7
        s_waitcnt lgkmcnt(0)
        s_barrier
        v_mov_b32 v8, 0
        ds_read_b128 v[8:11], v8
        v_mov_b32 v12, 0
        ds_read_b128 v[12:15], v12 offset:16
        v_mov_b32 v2, 0
        ds_read_b128 v[2:5], v2 offset:32
        v_mov_b32 v120, 0
        ds_read_b128 v[120:123], v120 offset:48
        s_waitcnt lgkmcnt(0)
        v_max3_u32 v7, v8, v9, v10
        v_max3_u32 v7, v11, v12, v7
        v_max3_u32 v7, v13, v14, v7
        v_max3_u32 v7, v15, v2, v7
        v_max3_u32 v7, v3, v4, v7
        v_max3_u32 v7, v5, v120, v7
        v_max3_u32 v7, v121, v122, v7
        v_max_u32 v7, v123, v7
        v_and_b32 v7, 0x7ff, v7
        v_sub_u32 v7, 2047, v7
        s_nop 0
        v_readfirstlane_b32 s18, v7
        s_nop 3
        s_lshl_b32 s19, s18, 4
        s_mul_i32 s50, s18, 1280
        """.replace("s_mul_i32 s50, s18, 1280", "s_mul_i32 s53, s18, 1280"))
    def gemv_reduce(AC, nacc):
        for ror in (8, 4, 2):
            k("s_nop 1")
            for r in range(nacc):
                k(f"v_add_f32_dpp v{AC+r}, v{AC+r}, v{AC+r} row_ror:{ror} row_mask:0xf bank_mask:0xf")
        k(f"""
        v_lshrrev_b32 v12, 4, v0
        v_lshlrev_b32 v12, 7, v12
        v_and_b32 v13, 1, v0
        v_lshl_add_u32 v12, v13, 6, v12
        s_mov_b32 s52, 0x00030003
        s_mov_b32 exec_lo, s52
        s_mov_b32 exec_hi, s52
        """)
        for q in range(nacc // 4):
            k(f"ds_write_b128 v12, {v4(AC+4*q)} offset:{64+16*q}")
        k("s_mov_b64 exec, -1\ns_waitcnt lgkmcnt(0)\ns_barrier")
        k("""
        v_and_b32 v13, 7, v0
        v_bfe_u32 v12, v0, 3, 1
        v_lshlrev_b32 v12, 6, v12
        v_lshl_add_u32 v12, v13, 2, v12
        """)
    k(f"s_cmp_lt_u32 s2, {NFF}\ns_cbranch_scc1 ffn_kernel_ffa\ns_cmp_lt_u32 s2, {NFF+NFB}\ns_cbranch_scc1 ffn_kernel_ffb")
    k(f"""
    s_sub_u32 s16, s2, {NFF+NFB}
    s_add_u32 s17, s16, {(NFF+NFB) % 8}
    s_and_b32 s17, s17, 7
    s_lshl_b32 s17, s17, 4
    s_lshr_b32 s16, s16, 3
    s_add_u32 s16, s16, s17
    s_mul_i32 s17, s16, 20480
    s_lshl_b32 s51, s16, 8
    s_lshl_b32 s16, s16, 4
    """)
    for i in range(5):
        k(f"v_add_u32 v{60+i}, {4096*i}, v1\nbuffer_load_dwordx4 {v4(16+4*i)}, v{60+i}, s[20:23], s17 offen")
    for i in range(5):
        k(f"""
        v_add_u32 v{66+i}, {256*i}, v0
        v_mul_u32_u24 v{66+i}, 3277, v{66+i}
        v_lshrrev_b32 v{66+i}, 18, v{66+i}
        v_lshlrev_b32 v72, 4, v{66+i}
        buffer_load_dwordx2 {v2(40+2*i)}, v72, s[24:27], s51 offen
        """)
    argmax(10)
    k("s_sub_u32 s18, s18, s16\nv_mov_b32 v73, 0x40000000\ns_waitcnt vmcnt(0)")
    for i in range(5):
        row_stats(k, 40 + 2 * i, 41 + 2 * i, None, 52, 53)
        k(f"v_cmp_eq_u32 vcc, s18, v{66+i}\nv_mul_f32 v52, v52, v53\ns_nop 0")
        k(f"v_cndmask_b32 v{60+i}, v{60+i}, v73, vcc")
        for d in range(4):
            r = 16 + 4 * i + d
            k(f"""
            v_lshlrev_b32 v54, 16, v{r}
            v_and_b32 v55, 0xffff0000, v{r}
            v_fma_f32 v56, v54, v53, -v52
            v_fma_f32 v57, v55, v53, -v52
            v_cvt_pk_bf16_f32 v56, v56, v57
            v_lshlrev_b32 v57, 16, v56
            v_and_b32 v56, 0xffff0000, v56
            v_add_f32 v54, v54, v57
            v_add_f32 v55, v55, v56
            v_cvt_pk_bf16_f32 v{r}, v54, v55
            """)
        k(f"buffer_store_dwordx4 {v4(16+4*i)}, v{60+i}, s[28:31], s17 offen")
    k("s_branch ffn_kernel_end")
    k.label("ffa")
    G, U, HX, AC = 16, 36, 56, 64
    k.srd_off(32, 12, WS_FW, NFF * 40960)
    k("s_mul_i32 s16, s2, 40960")
    for i in range(5):
        k(f"s_add_u32 s17, s16, {i*4096}\nbuffer_load_dwordx4 {v4(G+4*i)}, v1, s[32:35], s17 offen\ns_add_u32 s17, s16, {20480+i*4096}\nbuffer_load_dwordx4 {v4(U+4*i)}, v1, s[32:35], s17 offen")
    k.stamp()
    argmax(10)
    k.stamp()
    k(f"v_mov_b32 v2, 0\nbuffer_load_dwordx3 v[{SS}:{SS+2}], v2, s[24:27], s19 offen\nv_and_b32 v8, 0xfe, v0")
    for i in range(5):
        k(f"buffer_load_ushort v{HX+i}, v8, s[20:23], s53 offen offset:{256*i}")
    k("s_waitcnt vmcnt(5)")
    row_stats(k, SS, SS + 1, SS + 2, 8, 9)
    k("s_nop 0\nv_mul_f32 v11, v8, v9\ns_waitcnt vmcnt(0)")
    for i in range(5):
        k(f"v_lshlrev_b32 v{HX+i}, 16, v{HX+i}\nv_fma_f32 v{HX+i}, v{HX+i}, v9, -v11\nv_cvt_pk_bf16_f32 v{HX+i}, v{HX+i}, v{HX+i}\nv_lshlrev_b32 v{HX+i}, 16, v{HX+i}")
    k.stamp()
    for r in range(16):
        k(f"v_mov_b32 v{AC+r}, 0")
    for i in range(5):
        for (src, acc) in ((G, AC), (U, AC + 8)):
            for d in range(4):
                s_ = src + 4 * i + d
                k(f"v_lshlrev_b32 v12, 16, v{s_}\nv_and_b32 v13, 0xffff0000, v{s_}\nv_fmac_f32 v{acc+2*d}, v12, v{HX+i}\nv_fmac_f32 v{acc+2*d+1}, v13, v{HX+i}")
    k.stamp()
    gemv_reduce(AC, 16)
    k("s_cmp_lt_u32 s2, 0x7fffffff\nv_cmp_gt_u32 vcc, 64, v0\ns_cbranch_vccz ffn_kernel_end")
    for rr in range(16):
        k(f"ds_read_b32 v{16+rr}, v12 offset:{64+128*rr}\nds_read_b32 v{32+rr}, v12 offset:{96+128*rr}")
    k("s_waitcnt lgkmcnt(0)")
    for st in (8, 4, 2, 1):
        for rr in range(st):
            k(f"v_add_f32 v{16+rr}, v{16+rr}, v{16+rr+st}\nv_add_f32 v{32+rr}, v{32+rr}, v{32+rr+st}")
    k(f"""
    v_cvt_pk_bf16_f32 v16, v16, v32
    v_and_b32 v20, 0xffff0000, v16
    v_lshlrev_b32 v16, 16, v16
    v_mul_f32 v17, {f32hex(-1.4426950408889634)}, v16
    v_exp_f32 v17, v17
    s_nop 0
    v_add_f32 v17, 1.0, v17
    v_rcp_f32 v17, v17
    s_nop 0
    v_mul_f32 v16, v16, v17
    v_cvt_pk_bf16_f32 v16, v16, v16
    v_lshlrev_b32 v16, 16, v16
    v_mul_f32 v16, v16, v20
    v_cvt_pk_bf16_f32 v16, v16, v16
    v_lshlrev_b32 v16, 16, v16
    v_lshlrev_b32 v12, 2, v0
    s_lshl_b32 s16, s2, 6
    s_mov_b64 exec, 0xffff
    buffer_store_dword v16, v12, s[44:47], s16 offen sc1
    s_mov_b64 exec, -1
    s_branch ffn_kernel_end
    """)
    k.label("ffb")
    D, AV_, AC = 16, 72, 104
    k.srd_off(32, 12, WS_WD, 40 * 55296)
    k(f"s_sub_u32 s16, s2, {NFF}\ns_mul_i32 s17, s16, 55296\nv_cmp_gt_u32 vcc, 128, v0\nv_mov_b32 v2, 0x40000000\ns_nop 1\nv_cndmask_b32 v6, v2, v1, vcc")
    for i in range(14):
        k(f"buffer_load_dwordx4 {v4(D+4*i)}, v{6 if i == 13 else 1}, s[32:35], s17 offen\ns_add_u32 s17, s17, 4096")
    argmax(14)
    k(f"v_mov_b32 v2, 0\nbuffer_load_dwordx3 v[{SS}:{SS+2}], v2, s[24:27], s19 offen")
    k("v_and_b32 v3, 15, v0\nv_lshlrev_b32 v3, 1, v3\ns_lshl_b32 s17, s16, 5\ns_add_u32 s53, s53, s17\nbuffer_load_ushort v124, v3, s[20:23], s53 offen")
    k("s_waitcnt vmcnt(1)")
    row_stats(k, SS, SS + 1, SS + 2, 8, 9, 10, 125)
    k(f"""
    s_nop 0
    v_cvt_pk_bf16_f32 v10, v10, v10
    v_lshlrev_b32 v10, 16, v10
    v_mul_f32 v11, {f32hex(-1.4426950408889634)}, v10
    v_exp_f32 v11, v11
    s_nop 0
    v_add_f32 v11, 1.0, v11
    v_rcp_f32 v11, v11
    s_nop 0
    v_cvt_pk_bf16_f32 v11, v11, v11
    v_lshlrev_b32 v11, 16, v11
    s_mov_b32 s17, 0
    """)
    k.stamp()
    k("v_lshrrev_b32 v4, 1, v0\nv_lshlrev_b32 v4, 2, v4")
    k.label("poll")
    for i in range(14):
        k(f"s_mov_b32 s16, {512*i}\nbuffer_load_dword v{AV_+i}, v4, s[44:47], s16 offen sc1")
    k("s_waitcnt vmcnt(0)")
    k(f"v_and_b32 v5, v{AV_}, v{AV_+1}")
    k(f"v_max_u32 v5, v{AV_}, v{AV_+1}")
    for i in range(2, 14, 2):
        k(f"v_max3_u32 v5, v{AV_+i}, v{AV_+i+1}, v5")
    k(f"""
    v_cmp_eq_u32 vcc, -1, v5
    s_add_u32 s17, s17, 1
    s_cbranch_vccz ffn_kernel_go
    s_cmp_lt_u32 s17, 0x100000
    s_cbranch_scc0 ffn_kernel_go
    s_sleep 2
    s_branch ffn_kernel_poll
    """)
    k.label("go")
    k.stamp()
    for r in range(8):
        k(f"v_mov_b32 v{AC+r}, 0")
    for i in range(14):
        for d in range(4):
            s_ = D + 4 * i + d
            k(f"v_lshlrev_b32 v12, 16, v{s_}\nv_and_b32 v13, 0xffff0000, v{s_}\nv_fmac_f32 v{AC+2*d}, v12, v{AV_+i}\nv_fmac_f32 v{AC+2*d+1}, v13, v{AV_+i}")
    gemv_reduce(AC, 8)
    k("v_cmp_gt_u32 vcc, 64, v0\ns_cbranch_vccz ffn_kernel_end")
    for rr in range(16):
        k(f"ds_read_b32 v{16+rr}, v12 offset:{64+128*rr}")
    k("s_waitcnt lgkmcnt(0)")
    for st in (8, 4, 2, 1):
        for rr in range(st):
            k(f"v_add_f32 v{16+rr}, v{16+rr}, v{16+rr+st}")
    k("""
    v_cvt_pk_bf16_f32 v16, v16, v16
    v_lshlrev_b32 v16, 16, v16
    v_mul_f32 v16, v16, v11
    v_cvt_pk_bf16_f32 v16, v16, v16
    v_lshlrev_b32 v16, 16, v16
    v_lshlrev_b32 v124, 16, v124
    v_sub_f32 v10, v124, v8
    v_mul_f32 v10, v10, v9
    v_cvt_pk_bf16_f32 v10, v10, v10
    v_lshlrev_b32 v10, 16, v10
    v_add_f32 v10, v10, v16
    v_cvt_pk_bf16_f32 v10, v10, v10
    v_lshlrev_b32 v10, 16, v10
    v_add_f32 v10, v10, v124
    v_cvt_pk_bf16_f32 v10, v10, v10
    s_mov_b64 exec, 0xffff
    buffer_store_short v10, v3, s[28:31], s53 offen
    s_mov_b64 exec, -1
    """)
    k.finish(3)
    return k, f"grid=({NTOT},1,1) block=(256,1,1) lds=4096"

def main():
    ks = [gen_k1(), gen_k2(), gen_k3(), gen_k4()]
    out = "; generated by dev/gen7.py (hand-written generator)\n"
    for k, l in ks:
        out += f"; @launch kernel={k.name} {l}\n"
    out += '.amdgcn_target "amdgcn-amd-amdhsa--gfx950"\n.text\n'
    for k, l in ks:
        out += k.text()
    out += '.section .rodata,"a"\n'
    for k, l in ks:
        out += ".p2align 6\n" + k.desc()
    path = sys.argv[1] if len(sys.argv) > 1 else f"cdna_kernels/{NAME}.s"
    open(path, "w").write(out)
    print("wrote", path, len(out))

main()
```

```python
import sys, struct, os
STAMP = os.environ.get("STAMP", "0") == "1"
DIAG = os.environ.get("DIAG", "0") == "1"
NAME = "sequential_preLN__grouped_kv_mqa__moe_arch_mod__prompt"
WS_Q, WS_KV, WS_O, WS_H, WS_ST, WS_KM, WS_YP, WS_SEL = 0, 0x400000, 0x800000, 0xC00000, 0x1000000, 0x1100000, 0x1200000, 0x1300000
WS_FW, WS_WO, WS_WD, WS_A, WS_WQ = 0x1400000, 0x1900000, 0x1A00000, 0x1D00000, 0x1E00000
MATB = 2048 * 1280
QSCALE = (20 ** -0.5) * 1.4426950408889634
NFF = 108

def f32hex(x):
    return "0x%08x" % struct.unpack("<I", struct.pack("<f", x))[0]

class K:
    def __init__(self, name, vgpr, sgpr=96):
        self.name, self.vgpr, self.sgpr = name, vgpr, sgpr
        self.lines = []
        self.nst = 0
    def __call__(self, s):
        for l in s.strip().split("\n"):
            if l.strip():
                self.lines.append("    " + l.strip())
    def label(self, s):
        self.lines.append(f"{self.name}_{s}:")
    def srd(self, d, b, size):
        self(f"s_mov_b32 s{d}, s{b}\ns_mov_b32 s{d+1}, s{b+1}\ns_mov_b32 s{d+2}, {size}\ns_mov_b32 s{d+3}, 0x00020000")
    def srd_off(self, d, b, off, size):
        self(f"s_add_u32 s{d}, s{b}, {off}\ns_addc_u32 s{d+1}, s{b+1}, 0\ns_mov_b32 s{d+2}, {size}\ns_mov_b32 s{d+3}, 0x00020000")
    def stamp(self, real=False):
        if not STAMP: return
        i = self.nst; self.nst += 1
        self(f"{'s_memrealtime' if real else 's_memtime'} s[{60+2*i}:{61+2*i}]")
    def diag_start(self, kid):
        if not DIAG: return
        self(f"s_load_dwordx2 s[84:85], s[0:1], 88\ns_memrealtime s[86:87]\ns_waitcnt lgkmcnt(0)\ns_add_u32 s84, s84, {512*(3-kid)}\ns_addc_u32 s85, s85, 0")
    def finish(self, kid, wsreg=12):
        self.label("end")
        self.stamp()
        if DIAG:
            self(f"""
            s_memrealtime s[88:89]
            s_waitcnt lgkmcnt(0) vmcnt(0)
            s_and_b32 s90, s2, 7
            s_cmp_eq_u32 s90, 3
            s_cbranch_scc0 {self.name}_exit
            s_mov_b64 exec, 1
            s_mov_b32 s92, s84
            s_mov_b32 s93, s85
            s_mov_b32 s94, 256
            s_mov_b32 s95, 0x00020000
            v_mov_b32 v1, 0
            v_mov_b32 v2, s88
            buffer_atomic_umax v2, v1, s[92:95], 0 offen offset:{8*kid+4} sc1
            v_not_b32 v3, s86
            buffer_atomic_umax v3, v1, s[92:95], 0 offen offset:{8*kid} sc1
            """)
        if STAMP:
            self(f"s_waitcnt lgkmcnt(0)\ns_mov_b64 exec, 1")
            self.srd_off(92, wsreg, 0x2000000 + kid * 0x100000, 0x100000)
            self("v_lshrrev_b32 v1, 6, v0\ns_lshl_b32 s90, s2, 4\nv_add_u32 v1, s90, v1\nv_lshlrev_b32 v1, 6, v1")
            for i in range(self.nst):
                self(f"v_mov_b32 v2, s{60+2*i}\nbuffer_store_dword v2, v1, s[92:95], 0 offen offset:{4*i}")
        self.label("exit")
        self("s_endpgm")
    def text(self):
        return (f".globl {self.name}\n.p2align 8\n.type {self.name},@function\n{self.name}:\n" + "\n".join(self.lines) + "\n")
    def desc(self):
        acc = (self.vgpr + 3) // 4 * 4
        return (f".amdhsa_kernel {self.name}\n  .amdhsa_next_free_vgpr {self.vgpr}\n  .amdhsa_next_free_sgpr {self.sgpr}\n"
                f"  .amdhsa_accum_offset {acc}\n  .amdhsa_group_segment_fixed_size 0\n  .amdhsa_kernarg_size 104\n"
                f"  .amdhsa_user_sgpr_count 2\n  .amdhsa_user_sgpr_kernarg_segment_ptr 1\n  .amdhsa_system_sgpr_workgroup_id_x 1\n"
                f".end_amdhsa_kernel\n")

def v4(b): return f"v[{b}:{b+3}]"
def v2(b): return f"v[{b}:{b+1}]"
def v16(b): return f"v[{b}:{b+15}]"

def red_g(k, regs, tmp, op="add"):
    ins = "v_add_f32" if op == "add" else "v_max_f32"
    for i, r in enumerate(regs):
        k(f"ds_swizzle_b32 v{tmp+i}, v{r} offset:0x401F")
    k("s_waitcnt lgkmcnt(0)")
    for i, r in enumerate(regs):
        k(f"{ins} v{r}, v{r}, v{tmp+i}\nv_mov_b32 v{tmp+i}, v{r}")
    k("s_nop 1")
    for i, r in enumerate(regs):
        k(f"v_permlane32_swap_b32 v{tmp+i}, v{r}")
    k("s_nop 1")
    for i, r in enumerate(regs):
        k(f"{ins} v{r}, v{r}, v{tmp+i}")

def ln_fin(k, m, r):
    k(f"""
    v_mul_f32 v{m}, {f32hex(1/640)}, v{m}
    v_mul_f32 v{r}, {f32hex(1/640)}, v{r}
    v_fma_f32 v{r}, -v{m}, v{m}, v{r}
    v_max_f32 v{r}, 0, v{r}
    v_add_f32 v{r}, {f32hex(1e-5)}, v{r}
    v_rsq_f32 v{r}, v{r}
    s_nop 0
    v_mul_f32 v{m}, v{m}, v{r}
    """)

def gen_k1():
    k = K("kv_kernel", 96)
    WK_OFF, WV_OFF = 20480, 20480 + 28672
    XF, WF, ACC, CS, ONES, ST, TMP = 16, 24, 32, 36, 40, 44, 52
    k("""
    s_cmp_ge_u32 s2, 386
    s_cbranch_scc1 kv_kernel_exit
    s_cmp_ge_u32 s2, 128
    s_cbranch_scc1 kv_kernel_cpy
    s_load_dwordx2 s[4:5], s[0:1], 0
    s_load_dwordx4 s[8:11], s[0:1], 16
    s_load_dwordx2 s[12:13], s[0:1], 96
    s_load_dwordx2 s[14:15], s[0:1], 48
    v_and_b32 v1, 63, v0
    v_lshrrev_b32 v2, 6, v0
    s_and_b32 s17, s2, 7
    s_lshl_b32 s17, s17, 4
    s_lshr_b32 s44, s2, 3
    s_add_u32 s17, s17, s44
    v_readfirstlane_b32 s18, v2
    v_and_b32 v3, 15, v1
    v_lshrrev_b32 v4, 4, v1
    s_waitcnt lgkmcnt(0)
    """)
    k.diag_start(0)
    k.stamp()
    k.srd(20, 4, MATB)
    k.srd(24, 8, 25600)
    k.srd(28, 10, 25600)
    k("s_mul_i32 s45, s17, 20480\ns_mul_i32 s46, s18, 320\ns_mul_i32 s48, s18, 5120")
    for j in range(5):
        k(f"""
        v_add_u32 v6, s46, v1
        v_add_u32 v6, {64*j}, v6
        v_mul_u32_u24 v7, 3277, v6
        v_lshrrev_b32 v7, 18, v7
        v_mul_u32_u24 v8, 80, v7
        v_sub_u32 v8, v6, v8
        v_xor_b32 v8, v8, v7
        v_mul_u32_u24 v7, 1280, v7
        v_lshl_add_u32 v7, v8, 4, v7
        s_mov_b32 m0, s48
        s_add_u32 s48, s48, 1024
        buffer_load_dwordx4 v7, s[20:23], s45 offen lds
        """)
    k(f"v_lshlrev_b32 v7, 4, v1\ns_lshl_b32 s47, s18, 10\ns_add_u32 s48, s47, {WK_OFF}")
    for j in range(7):
        k(f"s_mov_b32 m0, s48\ns_add_u32 s49, s48, 28672\nbuffer_load_dwordx4 v7, s[24:27], s47 offen lds\ns_mov_b32 m0, s49\ns_add_u32 s48, s48, 4096\nbuffer_load_dwordx4 v7, s[28:31], s47 offen lds\ns_add_u32 s47, s47, 4096")
    k(f"""
    v_mul_u32_u24 v9, 1280, v3
    v_and_b32 v6, 3, v3
    v_xor_b32 v6, v6, v4
    v_lshl_add_u32 v9, v6, 4, v9
    v_and_b32 v10, 12, v3
    v_lshrrev_b32 v12, 2, v1
    v_and_b32 v12, 3, v12
    v_lshl_add_u32 v12, v4, 3, v12
    v_and_b32 v13, 3, v1
    v_mul_u32_u24 v11, 40, v12
    v_lshl_add_u32 v11, v13, 3, v11
    s_lshr_b32 s46, s18, 1
    s_mul_i32 s46, s46, 28672
    s_and_b32 s47, s18, 1
    s_lshl_b32 s47, s47, 5
    s_add_u32 s46, s46, s47
    s_add_u32 s46, s46, {WK_OFF}
    v_add_u32 v11, s46, v11
    """)
    for q in range(4):
        k(f"v_xor_b32 v6, {4*q}, v10\nv_lshl_add_u32 v{TMP+8+q}, v6, 4, v9")
    for i in range(4):
        k(f"v_mov_b32 v{ONES+i}, 0x3f803f80\nv_mov_b32 v{ST+i}, 0")
    k.srd_off(36, 12, WS_KV, 163840)
    k.stamp()
    k("s_waitcnt vmcnt(0)\ns_barrier")
    k.stamp()
    def reads(ks, b):
        k(f"ds_read_b128 {v4(XF+4*b)}, v{TMP+8+(ks&3)} offset:{(ks>>2)*256}")
        for h in range(2):
            k(f"ds_read_b64_tr_b16 {v2(WF+4*b+2*h)}, v11 offset:{ks*1280+h*160}")
    reads(0, 0)
    for ks in range(20):
        if ks < 19:
            reads(ks + 1, (ks + 1) & 1)
            k("s_waitcnt lgkmcnt(3)")
        else:
            k("s_waitcnt lgkmcnt(0)")
        b = ks & 1
        k(f"v_mfma_f32_16x16x32_bf16 {v4(ACC)}, {v4(WF+4*b)}, {v4(XF+4*b)}, {'0' if ks == 0 else v4(ACC)}")
        k(f"v_mfma_f32_16x16x32_bf16 {v4(CS)}, {v4(WF+4*b)}, {v4(ONES)}, {'0' if ks == 0 else v4(CS)}")
        for d in range(4):
            k(f"v_dot2_f32_bf16 v{ST+(d&1)}, v{XF+4*b+d}, v{ONES}, v{ST+(d&1)}\nv_dot2_f32_bf16 v{ST+2+(d&1)}, v{XF+4*b+d}, v{XF+4*b+d}, v{ST+2+(d&1)}")
    k.stamp()
    k(f"s_nop 7\nv_add_f32 v{ST}, v{ST}, v{ST+1}\nv_add_f32 v{ST+1}, v{ST+2}, v{ST+3}")
    red_g(k, [ST, ST + 1], TMP)
    ln_fin(k, ST, ST + 1)
    k.srd_off(40, 12, WS_Q, 16384)
    k(f"""
    s_cmp_eq_u32 s18, 3
    s_cbranch_scc0 kv_kernel_nost
    s_lshl_b32 s46, s17, 7
    v_lshlrev_b32 v14, 3, v3
    s_mov_b64 exec, 0xffff
    buffer_store_dwordx2 {v2(ST)}, v14, s[40:43], s46 offen
    s_mov_b64 exec, -1
    """)
    k.label("nost")
    for r in range(4):
        k(f"v_mul_f32 v{ACC+r}, v{ACC+r}, v{ST+1}\nv_fma_f32 v{ACC+r}, -v{CS+r}, v{ST}, v{ACC+r}")
    k(f"v_cvt_pk_bf16_f32 v{ACC}, v{ACC}, v{ACC+1}\nv_cvt_pk_bf16_f32 v{ACC+1}, v{ACC+2}, v{ACC+3}")
    k("""
    s_lshr_b32 s44, s17, 1
    s_mul_i32 s44, s44, 2560
    s_and_b32 s45, s17, 1
    s_cmp_ge_u32 s18, 2
    s_cbranch_scc1 kv_kernel_vepi
    v_mov_b32 v15, 0
    s_cmp_eq_u32 s18, 0
    s_cbranch_scc0 kv_kernel_k1
    """)
    k(f"""
    s_lshl_b32 s46, s45, 8
    s_add_u32 s44, s44, s46
    v_lshrrev_b32 v14, 1, v4
    v_lshlrev_b32 v14, 9, v14
    v_lshl_add_u32 v14, v3, 4, v14
    v_and_b32 v13, 1, v4
    v_lshl_add_u32 v14, v13, 3, v14
    buffer_store_dwordx2 {v2(ACC)}, v14, s[36:39], s44 offen
    v_dot2_f32_bf16 v15, v{ACC}, v{ACC}, v15
    v_dot2_f32_bf16 v15, v{ACC+1}, v{ACC+1}, v15
    s_nop 3
    """)
    red_g(k, [15], TMP)
    k("s_branch kv_kernel_kmax")
    k.label("k1")
    k(f"""
    s_lshl_b32 s46, s45, 7
    s_add_u32 s44, s44, s46
    v_lshlrev_b32 v14, 3, v3
    s_mov_b64 exec, 0xffff
    buffer_store_dwordx2 {v2(ACC)}, v14, s[36:39], s44 offen offset:1024
    v_dot2_f32_bf16 v15, v{ACC}, v{ACC}, v15
    v_dot2_f32_bf16 v15, v{ACC+1}, v{ACC+1}, v15
    """)
    k.srd_off(40, 12, WS_A, 1728 * 4)
    k("""
    s_mov_b64 exec, -1
    v_mov_b32 v20, -1
    v_mov_b32 v21, -1
    v_mov_b32 v22, -1
    v_mov_b32 v23, -1
    s_lshl_b32 s46, s2, 10
    v_lshlrev_b32 v14, 4, v1
    buffer_store_dwordx4 v[20:23], v14, s[40:43], s46 offen
    s_mov_b64 exec, 0xffff
    s_nop 1
    """)
    k.srd_off(40, 12, WS_ST, 32768)
    k("""
    v_mov_b32 v20, 0
    v_mov_b32 v21, 0
    v_mov_b32 v22, 0
    v_mov_b32 v23, 0
    s_lshl_b32 s46, s17, 8
    v_lshlrev_b32 v14, 4, v3
    buffer_store_dwordx4 v[20:23], v14, s[40:43], s46 offen
    s_mov_b64 exec, -1
    """)
    k.label("kmax")
    for off in ("0x041F", "0x081F", "0x101F", "0x201F"):
        k(f"ds_swizzle_b32 v{TMP}, v15 offset:{off}\ns_waitcnt lgkmcnt(0)\nv_max_f32 v15, v15, v{TMP}")
    k.srd_off(40, 12, WS_KM, 1024)
    k("""
    s_lshl_b32 s44, s18, 7
    s_add_u32 s44, s44, s17
    s_lshl_b32 s44, s44, 2
    v_mov_b32 v14, 0
    s_mov_b64 exec, 1
    buffer_store_dword v15, v14, s[40:43], s44 offen
    s_mov_b64 exec, -1
    s_branch kv_kernel_end
    """)
    k.label("vepi")
    k("""
    s_mul_i32 s46, s45, 640
    s_add_u32 s44, s44, s46
    v_bfe_u32 v14, v3, 2, 1
    v_mul_u32_u24 v12, 320, v14
    v_bfe_u32 v14, v3, 3, 1
    v_lshl_add_u32 v12, v14, 3, v12
    v_and_b32 v14, 3, v3
    v_lshl_add_u32 v12, v14, 1, v12
    v_lshl_add_u32 v14, v4, 6, v12
    s_cmp_eq_u32 s18, 2
    s_cbranch_scc1 kv_kernel_v0
    v_add_u32 v14, 256, v12
    s_mov_b64 exec, 0xffff
    """)
    k.label("v0")
    k(f"""
    buffer_store_short v{ACC}, v14, s[36:39], s44 offen offset:1280
    buffer_store_short_d16_hi v{ACC}, v14, s[36:39], s44 offen offset:1296
    buffer_store_short v{ACC+1}, v14, s[36:39], s44 offen offset:1312
    buffer_store_short_d16_hi v{ACC+1}, v14, s[36:39], s44 offen offset:1328
    s_mov_b64 exec, -1
    s_cmp_eq_u32 s18, 3
    s_cbranch_scc0 kv_kernel_end
    s_cmp_eq_u32 s2, 0
    s_cbranch_scc0 kv_kernel_end
    """)
    k.srd(40, 14, 1280)
    k(f"""
    v_mul_u32_u24 v8, 20, v1
    buffer_load_dwordx4 v[20:23], v8, s[40:43], 0 offen
    buffer_load_dword v24, v8, s[40:43], 0 offen offset:16
    v_mov_b32 v17, 0
    s_waitcnt vmcnt(0)
    v_dot2_f32_bf16 v17, v20, v{ONES}, v17
    v_dot2_f32_bf16 v17, v21, v{ONES}, v17
    v_dot2_f32_bf16 v17, v22, v{ONES}, v17
    v_dot2_f32_bf16 v17, v23, v{ONES}, v17
    v_dot2_f32_bf16 v17, v24, v{ONES}, v17
    s_nop 3
    """)
    for off in ("0x041F", "0x081F", "0x101F", "0x201F"):
        k(f"ds_swizzle_b32 v18, v17 offset:{off}\ns_waitcnt lgkmcnt(0)\nv_add_f32 v17, v17, v18")
    red_g(k, [17], 18)
    k.srd_off(40, 12, WS_SEL, 64)
    k("""
    v_mov_b32 v14, 0
    s_mov_b64 exec, 1
    buffer_store_dword v17, v14, s[40:43], 0 offen offset:32
    s_mov_b64 exec, -1
    """)
    k("s_branch kv_kernel_end")
    k.label("cpy")
    k("""
    s_load_dwordx2 s[12:13], s[0:1], 96
    s_sub_u32 s16, s2, 128
    s_mov_b32 s46, 0x12F684C
    s_mov_b32 s47, 0x3333334
    s_mov_b32 s48, 0x1999999A
    v_mov_b32 v14, 0x7fffffff
    """)
    def job(label, nxt, lo, n, karg, srcbytes, dst_off, dst_bytes, kind, dadd=0):
        k.label(label)
        if nxt:
            k(f"s_cmp_ge_u32 s16, {lo+n}\ns_cbranch_scc1 kv_kernel_{nxt}")
        k(f"""
        s_load_dwordx2 s[4:5], s[0:1], {karg}
        s_sub_u32 s17, s16, {lo}
        s_lshl_b32 s17, s17, 11
        v_add_u32 v1, s17, v0
        s_waitcnt lgkmcnt(0)
        """)
        k.srd(20, 4, srcbytes)
        k.srd_off(24, 12, dst_off, dst_bytes)
        for i in range(8):
            k(f"v_add_u32 v{2+i}, {256*i}, v1\nv_lshlrev_b32 v10, 4, v{2+i}\nbuffer_load_dwordx4 {v4(16+4*i)}, v10, s[20:23], 0 offen")
        npieces = srcbytes // 16
        for i in range(8):
            p = 2 + i
            if kind == "tile":
                k(f"""
                v_mul_hi_u32 v10, v{p}, s47
                v_mul_u32_u24 v11, 80, v10
                v_sub_u32 v11, v{p}, v11
                v_mul_hi_u32 v12, v11, s48
                v_mul_u32_u24 v13, 10, v12
                v_sub_u32 v13, v11, v13
                v_mul_u32_u24 v12, 102400, v12
                v_mul_u32_u24 v10, 160, v10
                v_add_u32 v12, v12, v10
                v_lshl_add_u32 v12, v13, 4, v12
                """)
            else:
                mag, per, sl = ("s46", 216, 40960) if kind == "gu" else ("s47", 80, 55296)
                k(f"""
                v_mul_hi_u32 v10, v{p}, {mag}
                v_mul_u32_u24 v11, {per}, v10
                v_sub_u32 v11, v{p}, v11
                v_lshrrev_b32 v12, 1, v11
                v_mul_u32_u24 v12, {sl}, v12
                v_lshl_add_u32 v12, v10, 5, v12
                v_and_b32 v11, 1, v11
                v_lshl_add_u32 v12, v11, 4, v12
                v_add_u32 v12, {dadd}, v12
                """)
            k(f"v_cmp_gt_u32 vcc, {npieces}, v{p}\ns_nop 1\nv_cndmask_b32 v{p}, v14, v12, vcc")
        for i in range(8):
            k(f"s_waitcnt vmcnt({7-i})\nbuffer_store_dwordx4 {v4(16+4*i)}, v{2+i}, s[24:27], 0 offen")
        k("s_endpgm")
    def job2(label, nxt, lo, n, karg, rowb, nrows, nsg, dst_off, dst_bytes, sliceb):
        k.label(label)
        if nxt:
            k(f"s_cmp_ge_u32 s16, {lo+n}\ns_cbranch_scc1 kv_kernel_{nxt}")
        total = (nrows // 4) * nsg
        magic = (1 << 32) // nsg + 1
        k(f"""
        s_load_dwordx2 s[4:5], s[0:1], {karg}
        v_and_b32 v1, 63, v0
        v_lshrrev_b32 v2, 6, v0
        v_lshrrev_b32 v3, 4, v1
        v_bfe_u32 v4, v1, 1, 3
        v_and_b32 v5, 1, v1
        v_readfirstlane_b32 s18, v2
        v_mul_u32_u24 v6, {rowb}, v3
        v_lshl_add_u32 v6, v4, 5, v6
        v_lshl_add_u32 v6, v5, 4, v6
        v_mul_u32_u24 v7, {sliceb}, v4
        v_lshl_add_u32 v7, v3, 5, v7
        v_lshl_add_u32 v7, v5, 4, v7
        s_sub_u32 s17, s16, {lo}
        s_lshl_b32 s17, s17, 5
        s_lshl_b32 s18, s18, 3
        s_add_u32 s17, s17, s18
        s_mov_b32 s19, {magic}
        s_waitcnt lgkmcnt(0)
        """)
        k.srd(20, 4, rowb * nrows)
        k.srd_off(24, 12, dst_off, dst_bytes)
        for i in range(8):
            k(f"""
            s_add_u32 s30, s17, {i}
            s_mul_hi_u32 s31, s30, s19
            s_mul_i32 s32, s31, {nsg}
            s_sub_u32 s32, s30, s32
            s_mul_i32 s33, s31, {4*rowb}
            s_lshl_b32 s34, s32, 8
            s_add_u32 s33, s33, s34
            s_mul_i32 s{40+i}, s32, {8*sliceb}
            s_lshl_b32 s34, s31, 7
            s_add_u32 s{40+i}, s{40+i}, s34
            s_cmp_lt_u32 s30, {total}
            s_cselect_b32 s{40+i}, s{40+i}, 0x40000000
            buffer_load_dwordx4 {v4(16+4*i)}, v6, s[20:23], s33 offen
            """)
        for i in range(8):
            k(f"s_waitcnt vmcnt({7-i})\nbuffer_store_dwordx4 {v4(16+4*i)}, v7, s[24:27], s{40+i} offen")
        k("s_endpgm")
    job("j0", "j1", 0, 25, 8, 819200, WS_WQ, 819200, "tile")
    job("j1", "j2", 25, 25, 32, 819200, WS_WO, 819200, "tile")
    job2("j2", "j3", 50, 70, 56, 3456, 640, 14, WS_FW, NFF * 40960, 40960)
    job2("j3", "j4", 120, 70, 64, 3456, 640, 14, WS_FW + 20480, NFF * 40960 - 20480, 40960)
    job2("j4", None, 190, 68, 72, 1280, 1728, 5, WS_WD, 40 * 55296, 55296)
    k.finish(0)
    return k, "grid=(386,1,1) block=(256,1,1) lds=%d" % (20480 + 2 * 28672)

SLOT = 36864
W_OFF = 16384
XF, SRC, VA_RD, VW_RD, ST, ONES, ACC, CS, WF, TMP = 16, 16, 48, 52, 56, 76, 80, 96, 100, 108

def gemm_ids(k):
    k("""
    v_and_b32 v1, 63, v0
    v_lshrrev_b32 v2, 6, v0
    s_lshr_b32 s16, s2, 5
    s_and_b32 s17, s2, 7
    s_lshl_b32 s17, s17, 2
    s_bfe_u32 s44, s2, 0x20003
    s_add_u32 s17, s17, s44
    v_readfirstlane_b32 s18, v2
    v_and_b32 v3, 15, v1
    v_lshrrev_b32 v4, 4, v1
    """)

def loader_list(lw):
    return [("A", e) for e in range(16)][12*lw:12*lw+12] + [("W", e) for e in range(20)][max(0, 12*lw-16):max(0, 12*lw+12-16)]

def gemm_loader(k, lw, w_linear, gb, wchunk, mid=None, nmid=0):
    lst = loader_list(lw)
    k("s_lshl_b32 s45, s17, 6")
    for i, (kind, e) in enumerate(lst):
        if kind == "A":
            k(f"""
            v_add_u32 v6, {4*e}, v4
            v_and_b32 v7, 15, v6
            v_xor_b32 v7, v7, v3
            v_add_u32 v6, s45, v6
            v_mul_u32_u24 v6, 1280, v6
            v_lshl_add_u32 v{SRC+i}, v7, 4, v6
            """)
        elif w_linear:
            k(f"v_add_u32 v6, {64*e}, v1\nv_lshlrev_b32 v{SRC+i}, 4, v6")
        else:
            k(f"""
            v_add_u32 v6, {64*e}, v1
            v_mul_u32_u24 v7, 6554, v6
            v_lshrrev_b32 v7, 16, v7
            v_mul_u32_u24 v8, 10, v7
            v_sub_u32 v8, v6, v8
            v_mul_u32_u24 v7, 1280, v7
            v_lshl_add_u32 v{SRC+i}, v8, 4, v7
            """)
    def issue(c):
        slot = gb + (c % 3) * SLOT
        k(f"s_mov_b32 s46, {c*256}\ns_mov_b32 s47, {c*wchunk}")
        for i, (kind, e) in enumerate(lst):
            if kind == "A":
                k(f"s_mov_b32 m0, {slot + e*1024}\ns_nop 0\nbuffer_load_dwordx4 v{SRC+i}, s[20:23], s46 offen lds")
            else:
                k(f"s_mov_b32 m0, {slot + W_OFF + e*1024}\ns_nop 0\nbuffer_load_dwordx4 v{SRC+i}, s[24:27], s47 offen lds")
    for c in range(2):
        issue(c)
    k.stamp()
    waits = [12, 12, 12, 12, nmid]
    for c in range(5):
        k(f"s_waitcnt vmcnt({waits[c]})\ns_barrier")
        k.stamp()
        if c + 2 <= 4:
            issue(c + 2)
        if c == 3 and mid:
            mid()
    k("s_waitcnt vmcnt(0)")
    k.stamp()

XF2, WF2, ACC2, CS2 = 16, 32, 64, 88
VA2, VW2, ST2 = 100, 104, 108
ONES2 = 56
def gemm_mm(k, tiles, colsum, gb):
    k(f"""
    v_lshlrev_b32 v6, 8, v3
    v_and_b32 v7, 3, v3
    v_xor_b32 v7, v7, v4
    v_lshl_add_u32 v6, v7, 4, v6
    s_and_b32 s46, s18, 1
    s_lshl_b32 s46, s46, 13
    s_add_u32 s46, s46, {gb}
    v_add_u32 v6, s46, v6
    v_and_b32 v7, 12, v3
    """)
    for ks in range(4):
        k(f"v_xor_b32 v8, {4*ks}, v7\nv_lshl_add_u32 v{VA2+ks}, v8, 4, v6")
    k(f"""
    v_lshrrev_b32 v12, 2, v1
    v_and_b32 v12, 3, v12
    v_lshl_add_u32 v12, v4, 3, v12
    v_and_b32 v13, 3, v1
    v_mul_u32_u24 v{VW2}, 160, v12
    v_lshl_add_u32 v{VW2}, v13, 3, v{VW2}
    v_add_u32 v{VW2}, {gb + W_OFF}, v{VW2}
    """)
    if colsum:
        for i in range(4):
            k(f"v_mov_b32 v{ONES2+i}, 0x3f803f80")
    k.stamp()
    nt = len(tiles)
    nr = 2 + 2 * nt
    def reads(ks, buf):
        for j in range(2):
            k(f"ds_read_b128 {v4(XF2+8*buf+4*j)}, v{VA2+ks} offset:{j*4096}")
        for u, t in enumerate(tiles):
            for h in range(2):
                k(f"ds_read_b64_tr_b16 {v2(WF2+12*buf+4*u+2*h)}, v{VW2} offset:{ks*5120 + t*32 + h*640}")
    for c in range(5):
        k("s_barrier")
        k.stamp()
        reads(0, 0)
        for ks in range(4):
            if ks < 3:
                reads(ks + 1, (ks + 1) & 1)
                k(f"s_waitcnt lgkmcnt({nr})")
            else:
                k("s_waitcnt lgkmcnt(0)")
                if c < 4:
                    d = SLOT if (c % 3) != 2 else -2 * SLOT
                    for r in [VA2 + i for i in range(4)] + [VW2]:
                        k(f"v_add_u32 v{r}, {d & 0xffffffff}, v{r}")
            first = (c == 0 and ks == 0)
            b = ks & 1
            for u in range(nt):
                for j in range(2):
                    a = ACC2 + 12 * j + 4 * u
                    k(f"v_mfma_f32_16x16x32_bf16 {v4(a)}, {v4(WF2+12*b+4*u)}, {v4(XF2+8*b+4*j)}, {'0' if first else v4(a)}")
                if colsum:
                    k(f"v_mfma_f32_16x16x32_bf16 {v4(CS2+4*u)}, {v4(WF2+12*b+4*u)}, {v4(ONES2)}, {'0' if first else v4(CS2+4*u)}")
    k.stamp()

def gen_k2():
    k = K("attn_kernel", 144)
    GB = 53248
    QB = 163840 - 10240
    QF1, QF2, SA, SB, O, P = 8, 12, 16, 32, 48, 64
    KF = [72, 80]; VF = [88, 96]
    AK, AK2, AV, VO = 136, 137, 138, 139
    T = 108
    QA, KX = 125, 127
    CP, CPD = 128, 128
    THRESH = 50.0
    k("""
    s_cmp_ge_u32 s2, 256
    s_cbranch_scc1 attn_kernel_exit
    s_load_dwordx2 s[4:5], s[0:1], 0
    s_load_dwordx2 s[12:13], s[0:1], 96
    s_load_dwordx2 s[14:15], s[0:1], 32
    s_load_dwordx4 s[8:11], s[0:1], 56
    """)
    gemm_ids(k)
    k("s_waitcnt lgkmcnt(0)")
    k.diag_start(1)
    k.stamp()
    k.srd(20, 4, MATB)
    k(f"""
    s_mul_i32 s44, s16, 102400
    s_add_u32 s44, s44, {WS_WQ}
    s_add_u32 s24, s12, s44
    s_addc_u32 s25, s13, 0
    s_mov_b32 s26, 102400
    s_mov_b32 s27, 0x00020000
    """)
    k.srd_off(28, 12, WS_KM, 1024)
    k.srd_off(56, 12, WS_KV, 163840)
    k(f"""
    v_lshlrev_b32 v7, 2, v1
    buffer_load_dword v{CP}, v7, s[28:31], 0 offen
    buffer_load_dword v{CP+1}, v7, s[28:31], 0 offen offset:256
    buffer_load_dword v{CP+2}, v7, s[28:31], 0 offen offset:512
    buffer_load_dword v{CP+3}, v7, s[28:31], 0 offen offset:768
    """)
    k(f"v_lshlrev_b32 v{CPD+4}, 4, v1\ns_lshl_b32 s52, s18, 10\ns_add_u32 s52, s52, 49152")
    def dma():
        k(f"s_mov_b32 m0, s52\ns_nop 0\nbuffer_load_dwordx4 v{CPD+4}, s[56:59], s52 offen lds\ns_add_u32 s52, s52, 8192")
    def pre(nyounger):
        k(f"""
        v_and_b32 v{T}, 31, v1
        v_lshrrev_b32 v{T+1}, 5, v1
        v_lshrrev_b32 v{T+2}, 2, v{T}
        v_and_b32 v{T+3}, 3, v{T}
        v_mul_u32_u24 v{QA}, 160, v{T+2}
        v_mul_u32_u24 v{T+3}, 40, v{T+3}
        v_add_u32 v{QA}, v{QA}, v{T+3}
        s_mul_i32 s46, s18, 1280
        s_add_u32 s46, s46, {QB}
        v_add_u32 v{QA}, s46, v{QA}
        v_lshl_add_u32 v{QA+1}, v{T+1}, 4, v{QA}
        v_mul_u32_u24 v{VO}, 1280, v{T+2}
        v_add_u32 v{VO}, v{VO}, v{T+3}
        v_lshl_add_u32 v{VO}, v{T+1}, 3, v{VO}
        s_lshl_b32 s19, s17, 6
        s_lshl_b32 s46, s18, 3
        s_add_u32 s19, s19, s46
        s_mul_i32 s19, s19, 1280
        s_mul_i32 s46, s16, 160
        s_add_u32 s19, s19, s46
        v_lshlrev_b32 v{AK}, 4, v1
        v_lshlrev_b32 v{AK2}, 3, v{T}
        v_mul_u32_u24 v{AV}, 320, v{T+1}
        v_lshl_add_u32 v{AV}, v{T}, 4, v{AV}
        s_mov_b32 s40, 0x000fffff
        s_mov_b32 s41, 0x000fffff
        s_waitcnt vmcnt({nyounger})
        v_max_f32 v{T}, v{CP}, v{CP+1}
        v_max_f32 v{T+1}, v{CP+2}, v{CP+3}
        """)
        for ror in (8, 4, 2, 1):
            k(f"s_nop 1\nv_max_f32_dpp v{T}, v{T}, v{T} row_ror:{ror} row_mask:0xf bank_mask:0xf\nv_max_f32_dpp v{T+1}, v{T+1}, v{T+1} row_ror:{ror} row_mask:0xf bank_mask:0xf")
        red_g(k, [T, T + 1], T + 2, "max")
        k(f"v_add_f32 v{KX}, v{T}, v{T+1}")
        k.srd_off(32, 12, WS_O, MATB)
    n0 = k.nst
    k("s_cmp_lt_u32 s18, 4\ns_cbranch_scc1 attn_kernel_mm\ns_cmp_eq_u32 s18, 4\ns_cbranch_scc0 attn_kernel_ld0")
    k.stamp()
    for c in range(5):
        k("s_barrier")
        k.stamp()
    k.stamp()
    k("s_branch attn_kernel_ldone")
    k.label("ld0")
    for lw in range(3):
        if lw < 2:
            k(f"s_cmp_eq_u32 s18, {5+lw}\ns_cbranch_scc0 attn_kernel_ld{lw+1}")
        def mid():
            for i in range(16):
                o = (lw * 16 + i) * 1024
                k(f"s_mov_b32 m0, {o}\ns_mov_b32 s46, {o}\nbuffer_load_dwordx4 v{CPD+4}, s[56:59], s46 offen lds")
        k.nst = n0
        gemm_loader(k, lw, True, GB, 20480, mid, 16)
        k("s_branch attn_kernel_ldone")
        if lw < 2:
            k.label(f"ld{lw+1}")
    k.label("ldone")
    pre(0)
    k("s_branch attn_kernel_qrd")
    k.label("mm")
    k.srd_off(36, 12, WS_Q, 16384)
    k("s_lshl_b32 s46, s17, 9\ns_and_b32 s47, s18, 1\ns_lshl_b32 s47, s47, 8\ns_add_u32 s46, s46, s47\nv_lshlrev_b32 v9, 3, v3")
    for j in range(2):
        k(f"buffer_load_dwordx2 {v2(140+2*j)}, v9, s[36:39], s46 offen offset:{j*128}")
    pre(2)
    k("s_cmp_lt_u32 s18, 2\ns_cbranch_scc0 attn_kernel_mm1")
    for cg, tiles in enumerate(([0, 1, 2], [3, 4])):
        if cg == 1:
            k.label("mm1")
        k.nst = n0
        gemm_mm(k, tiles, True, GB)
        k(f"""
        v_mul_u32_u24 v10, 160, v3
        v_lshl_add_u32 v10, v4, 3, v10
        s_and_b32 s46, s18, 1
        s_mul_i32 s46, s46, 5120
        s_add_u32 s46, s46, {QB}
        v_add_u32 v10, s46, v10
        s_waitcnt vmcnt(0)
        s_nop 3
        """)
        for j in range(2):
            k(f"v_mul_f32 v14, {f32hex(QSCALE)}, v{141+2*j}\nv_mul_f32 v15, {f32hex(QSCALE)}, v{140+2*j}")
            for u, t in enumerate(tiles):
                a = ACC2 + 12 * j + 4 * u
                for r in range(4):
                    k(f"v_mul_f32 v{a+r}, v{a+r}, v14\nv_fma_f32 v{a+r}, -v{CS2+4*u+r}, v15, v{a+r}")
                k(f"v_cvt_pk_bf16_f32 v{a}, v{a}, v{a+1}\nv_cvt_pk_bf16_f32 v{a+1}, v{a+2}, v{a+3}")
                k(f"ds_write_b64 v10, {v2(a)} offset:{j*2560 + t*32}")
        k("s_waitcnt lgkmcnt(0)")
        if cg == 0:
            k("s_branch attn_kernel_qrd")
    k.label("qrd")
    k("s_barrier")
    k.stamp()
    k(f"""
    ds_read_b64 {v2(QF1)}, v{QA+1}
    ds_read_b64 {v2(QF1+2)}, v{QA+1} offset:8
    ds_read_b64 {v2(QF2)}, v{QA} offset:32
    v_and_b32 v3, 31, v1
    v_lshrrev_b32 v4, 5, v1
    """)
    for b in range(2):
        k(f"v_mov_b32 v{KF[b]+6}, 0x3f803f80\nv_mov_b32 v{KF[b]+7}, 0x00003f80")
    k(f"v_cmp_eq_u32 vcc, 20, v3\nv_mov_b32 v{T+2}, 0x3f803f80\ns_nop 1\nv_cndmask_b32 v{T+2}, 0, v{T+2}, vcc")
    for b in range(2):
        for r in range(8):
            k(f"v_mov_b32 v{VF[b]+r}, v{T+2}")
    for r in range(16):
        k(f"v_mov_b32 v{O+r}, 0")
    for r in range(4, 8):
        k(f"v_mov_b32 v{P+r}, 0")
    k(f"""
    v_cmp_eq_u32 vcc, 0, v4
    s_waitcnt lgkmcnt(0)
    v_cndmask_b32 v{QF2}, 0, v{QF2}, vcc
    v_cndmask_b32 v{QF2+1}, 0, v{QF2+1}, vcc
    v_mov_b32 v{QF2+2}, 0
    v_mov_b32 v{QF2+3}, 0
    v_mov_b32 v{T+3}, 0
    """)
    for r in range(4):
        k(f"v_dot2_f32_bf16 v{T+3}, v{QF1+r}, v{QF1+r}, v{T+3}")
    for r in range(2):
        k(f"v_dot2_f32_bf16 v{T+3}, v{QF2+r}, v{QF2+r}, v{T+3}")
    k(f"""
    s_nop 3
    v_mov_b32 v{T+4}, v{T+3}
    v_mov_b32 v{T+5}, v{T+3}
    s_nop 1
    v_permlane32_swap_b32 v{T+4}, v{T+5}
    s_nop 1
    v_add_f32 v{T+3}, v{T+4}, v{T+5}
    v_mul_f32 v{T+3}, v{T+3}, v{KX}
    v_sqrt_f32 v{T+3}, v{T+3}
    s_nop 0
    v_mul_f32 v{T+3}, {f32hex(1.01)}, v{T+3}
    v_mov_b32 v{T+6}, {f32hex(THRESH)}
    v_cmp_nle_f32 vcc, v{T+3}, v{T+6}
    s_barrier
    s_cbranch_vccnz attn_kernel_slow
    """)
    def set_m():
        k(f"""
        v_xor_b32 v{T+3}, 0x80000000, v{T+3}
        v_and_b32 v{T+4}, 0xffff0000, v{T+3}
        v_sub_f32 v{T+5}, v{T+3}, v{T+4}
        v_and_b32 v{T+6}, 0xffff0000, v{T+5}
        v_sub_f32 v{T+5}, v{T+5}, v{T+6}
        v_lshrrev_b32 v{T+4}, 16, v{T+4}
        v_or_b32 v{T+4}, v{T+4}, v{T+6}
        v_lshrrev_b32 v{T+5}, 16, v{T+5}
        v_cmp_eq_u32 vcc, 0, v4
        s_nop 1
        v_cndmask_b32 v{QF2+2}, 0, v{T+4}, vcc
        v_cndmask_b32 v{QF2+3}, 0, v{T+5}, vcc
        """)
    def kreads(b, blk):
        k(f"ds_read_b128 {v4(KF[b])}, v{AK} offset:{blk*2560}\nds_read_b64 {v2(KF[b]+4)}, v{AK2} offset:{blk*2560+1024}")
    def vreads(b, blk):
        k(f"s_mov_b64 exec, s[40:41]\nds_read_b128 {v4(VF[b])}, v{AV} offset:{blk*2560+1280}\nds_read_b128 {v4(VF[b]+4)}, v{AV} offset:{blk*2560+1920}\ns_mov_b64 exec, -1")
    def pipe_start():
        kreads(0, 0); kreads(1, 1); vreads(0, 0)
        k("s_waitcnt lgkmcnt(4)")
        k(f"v_mfma_f32_32x32x16_bf16 {v16(SA)}, {v4(KF[0])}, {v4(QF1)}, 0")
        k(f"v_mfma_f32_32x32x16_bf16 {v16(SA)}, {v4(KF[0]+4)}, {v4(QF2)}, {v16(SA)}")
        k("s_nop 7\ns_nop 3")
    def E(Sc, a, b):
        for r in range(a, b):
            k(f"v_exp_f32 v{Sc+r}, v{Sc+r}")
    def C(Sc, a, b):
        for p in range(a, b):
            k(f"v_cvt_pk_bf16_f32 v{P+p}, v{Sc+2*p}, v{Sc+2*p+1}")
    def iteration(j, ndma):
        par = j & 1
        Sc, Sn = (SA, SB) if par == 0 else (SB, SA)
        k("s_waitcnt lgkmcnt(0)")
        E(Sc, 0, 2)
        k(f"v_mfma_f32_32x32x16_bf16 {v16(O)}, {v4(VF[1-par]+4)}, {v4(P+4)}, {v16(O)}")
        kreads(par, j + 2)
        vreads(1 - par, j + 1)
        E(Sc, 2, 5)
        k(f"v_mfma_f32_32x32x16_bf16 {v16(Sn)}, {v4(KF[1-par])}, {v4(QF1)}, 0")
        E(Sc, 5, 8); C(Sc, 0, 4); E(Sc, 8, 9)
        k(f"v_mfma_f32_32x32x16_bf16 {v16(Sn)}, {v4(KF[1-par]+4)}, {v4(QF2)}, {v16(Sn)}")
        if ndma >= 1: dma()
        E(Sc, 9, 12)
        k(f"v_mfma_f32_32x32x16_bf16 {v16(O)}, {v4(VF[par])}, {v4(P)}, {v16(O)}")
        if ndma >= 2: dma()
        E(Sc, 12, 16); C(Sc, 4, 8)
    def group(with_dma):
        for j in range(8):
            iteration(j, (2 if j < 7 else 0) if with_dma else 0)
        k(f"v_add_u32 v{AK}, 20480, v{AK}\nv_add_u32 v{AK2}, 20480, v{AK2}\nv_add_u32 v{AV}, 20480, v{AV}")
    def copy_loads():
        pass
    set_m()
    k.stamp()
    pipe_start()
    group(True)
    k.stamp()
    k.stamp()
    k("s_mov_b32 s42, 7\ns_mov_b32 s53, 7\ns_branch attn_kernel_loop")
    k.label("slow")
    for i in range(14):
        dma()
    k("s_waitcnt vmcnt(0)\ns_barrier")
    copy_loads()
    k(f"v_mov_b32 v{T+3}, 0xff800000\ns_mov_b32 s42, 64")
    k.label("maxloop")
    kreads(0, 0)
    k(f"v_add_u32 v{AK}, 2560, v{AK}\nv_add_u32 v{AK2}, 2560, v{AK2}\ns_waitcnt lgkmcnt(0)")
    k(f"v_mfma_f32_32x32x16_bf16 {v16(SA)}, {v4(KF[0])}, {v4(QF1)}, 0")
    k(f"v_mfma_f32_32x32x16_bf16 {v16(SA)}, {v4(KF[0]+4)}, {v4(QF2)}, {v16(SA)}")
    k("s_nop 15\ns_nop 3")
    for r in range(0, 16, 2):
        k(f"v_max3_f32 v{T+3}, v{SA+r}, v{SA+r+1}, v{T+3}")
    k("s_sub_u32 s42, s42, 1\ns_cmp_lg_u32 s42, 0\ns_cbranch_scc1 attn_kernel_maxloop")
    k(f"""
    v_mov_b32 v{T+4}, v{T+3}
    v_mov_b32 v{T+5}, v{T+3}
    s_nop 1
    v_permlane32_swap_b32 v{T+4}, v{T+5}
    s_nop 1
    v_max_f32 v{T+3}, v{T+4}, v{T+5}
    v_lshlrev_b32 v{AK}, 4, v1
    v_lshlrev_b32 v{AK2}, 3, v3
    """)
    set_m()
    pipe_start()
    k("s_mov_b32 s42, 8\ns_mov_b32 s53, 100")
    k.label("loop")
    if os.environ.get("PRIO") is not None:
        k(f"s_lshr_b32 s43, s18, 2\ns_add_u32 s43, s43, s42\ns_and_b32 s43, s43, 1\ns_cmp_eq_u32 s43, 0\ns_cbranch_scc1 attn_kernel_p0\ns_setprio 1\ns_branch attn_kernel_p1")
        k.label("p0")
        k("s_setprio 0")
        k.label("p1")
    group(False)
    k("s_cmp_eq_u32 s42, s53\ns_cbranch_scc0 attn_kernel_nobar\ns_waitcnt vmcnt(0)\ns_barrier")
    k.label("nobar")
    k("s_sub_u32 s42, s42, 1\ns_cmp_lg_u32 s42, 0\ns_cbranch_scc1 attn_kernel_loop")
    k.stamp()
    k("s_nop 1")
    k(f"v_mfma_f32_32x32x16_bf16 {v16(O)}, {v4(VF[1]+4)}, {v4(P+4)}, {v16(O)}")
    k("s_nop 15\ns_nop 3")
    k(f"""
    v_mov_b32 v{T}, v{O+8}
    v_mov_b32 v{T+1}, v{O+8}
    s_nop 1
    v_permlane32_swap_b32 v{T}, v{T+1}
    s_nop 1
    v_rcp_f32 v{T+1}, v{T+1}
    s_nop 0
    """)
    for r in range(12):
        k(f"v_mul_f32 v{O+r}, v{O+r}, v{T+1}")
    for p in range(6):
        k(f"v_cvt_pk_bf16_f32 v{P+p}, v{O+2*p}, v{O+2*p+1}")
    k(f"""
    v_lshl_add_u32 v6, v4, 3, v{VO}
    s_nop 0
    v_permlane32_swap_b32 v{P}, v{P+2}
    v_permlane32_swap_b32 v{P+1}, v{P+3}
    s_nop 1
    buffer_store_dwordx4 {v4(P)}, v6, s[32:35], s19 offen
    s_mov_b32 exec_hi, 0
    buffer_store_dwordx2 {v2(P+4)}, v{VO}, s[32:35], s19 offen offset:32
    """)
    k.finish(1)
    return k, "grid=(256,1,1) block=(512,1,1) lds=163840"

def gen_k3():
    k = K("oproj_kernel", 128)
    XR, WR = ST, ST + 8
    EXS = 3 * SLOT
    k("""
    s_cmp_ge_u32 s2, 256
    s_cbranch_scc1 oproj_kernel_exit
    s_load_dwordx2 s[4:5], s[0:1], 0
    s_load_dwordx2 s[12:13], s[0:1], 96
    s_load_dwordx2 s[14:15], s[0:1], 48
    """)
    gemm_ids(k)
    k("s_waitcnt lgkmcnt(0)")
    k.diag_start(2)
    k.stamp()
    k.srd_off(20, 12, WS_O, MATB)
    k(f"""
    s_mul_i32 s44, s16, 102400
    s_add_u32 s44, s44, {WS_WO}
    s_add_u32 s24, s12, s44
    s_addc_u32 s25, s13, 0
    s_mov_b32 s26, 102400
    s_mov_b32 s27, 0x00020000
    """)
    k.srd(28, 4, MATB)
    k.srd(32, 14, 1280)
    k.srd_off(36, 12, WS_H, MATB)
    k.srd_off(40, 12, WS_ST, 32768)
    n0 = k.nst
    XR, WR, SS_ = 88, 112, 118
    k("""
    s_cmp_lt_u32 s18, 4
    s_cbranch_scc0 oproj_kernel_idle
    s_lshl_b32 s45, s17, 6
    s_and_b32 s46, s18, 1
    s_lshl_b32 s46, s46, 5
    s_add_u32 s45, s45, s46
    v_add_u32 v5, s45, v3
    v_mul_u32_u24 v10, 1280, v5
    v_lshl_add_u32 v10, v4, 3, v10
    v_lshlrev_b32 v11, 3, v4
    s_mul_i32 s59, s16, 160
    s_add_u32 s58, s59, 20480
    s_cmp_lt_u32 s18, 2
    s_cbranch_scc0 oproj_kernel_mm1
    """)
    for cg, tiles in enumerate(([0, 1, 2], [3, 4])):
        if cg == 1:
            k.label("mm1")
        for u, t in enumerate(tiles):
            for j in range(2):
                k(f"buffer_load_dwordx2 {v2(XR+6*j+2*u)}, v10, s[28:31], s{59-j} offen offset:{t*32}")
            k(f"buffer_load_dwordx2 {v2(WR+2*u)}, v11, s[32:35], s59 offen offset:{t*32}")
        k.nst = n0
        gemm_mm(k, tiles, False, 0)
        k("s_waitcnt vmcnt(0)\ns_nop 7\nv_mov_b32 v15, 0x3f803f80")
        for j in range(2):
            S = SS_ + 4 * j
            k(f"v_mov_b32 v{S}, 0\nv_mov_b32 v{S+1}, 0\nv_mov_b32 v{S+2}, 0\nv_mov_b32 v{S+3}, 0")
            for u, t in enumerate(tiles):
                a = ACC2 + 12 * j + 4 * u
                k(f"v_cvt_pk_bf16_f32 v{a}, v{a}, v{a+1}\nv_cvt_pk_bf16_f32 v{a+1}, v{a+2}, v{a+3}")
                for h in range(2):
                    k(f"""
                    v_lshlrev_b32 v12, 16, v{a+h}
                    v_and_b32 v13, 0xffff0000, v{a+h}
                    v_lshlrev_b32 v6, 16, v{XR+6*j+2*u+h}
                    v_and_b32 v7, 0xffff0000, v{XR+6*j+2*u+h}
                    v_add_f32 v12, v12, v6
                    v_add_f32 v13, v13, v7
                    v_cvt_pk_bf16_f32 v{a+h}, v12, v13
                    """)
                    k(f"v_dot2_f32_bf16 v{S}, v{a+h}, v15, v{S}\nv_dot2_f32_bf16 v{S+1}, v{a+h}, v{a+h}, v{S+1}\nv_dot2_f32_bf16 v{S+2}, v{a+h}, v{WR+2*u+h}, v{S+2}")
                k(f"buffer_store_dwordx2 {v2(a)}, v10, s[36:39], s{59-j} offen offset:{t*32}")
        k("s_nop 3")
        red_g(k, [SS_ + 4 * j + i for j in range(2) for i in range(3)], 16)
        k("""
        v_lshlrev_b32 v14, 4, v5
        v_lshl_add_u32 v14, v4, 2, v14
        v_cmp_eq_u32 vcc, 1, v4
        v_cmp_eq_u32 s[46:47], 2, v4
        v_cmp_eq_u32 s[48:49], 3, v4
        s_nop 1
        """)
        for j in range(2):
            S = SS_ + 4 * j
            k(f"v_cndmask_b32 v{S}, v{S}, v{S+1}, vcc\nv_cndmask_b32 v{S}, v{S}, v{S+2}, s[46:47]\nv_cndmask_b32 v{S}, v{S}, v{S+3}, s[48:49]")
            k(f"buffer_atomic_add_f32 v{S}, v14, s[40:43], 0 offen offset:{j*256}")
        k("s_branch oproj_kernel_end")
    k.label("idle")
    k("s_cmp_eq_u32 s18, 4\ns_cbranch_scc1 oproj_kernel_exit")
    for lw in range(3):
        if lw < 2:
            k(f"s_cmp_eq_u32 s18, {5+lw}\ns_cbranch_scc0 oproj_kernel_ld{lw+1}")
        k.nst = n0
        gemm_loader(k, lw, True, 0, 20480)
        if lw < 2:
            k("s_branch oproj_kernel_end")
            k.label(f"ld{lw+1}")
    k.finish(2)
    return k, "grid=(256,1,1) block=(512,1,1) lds=%d" % (3 * SLOT)

def row_stats(k, s0, s1, s2, mean, rstd, r=None, wsum=None):
    k(f"""
    v_mul_f32 v{mean}, {f32hex(1/640)}, v{s0}
    v_mul_f32 v{rstd}, {f32hex(1/640)}, v{s1}
    v_fma_f32 v{rstd}, -v{mean}, v{mean}, v{rstd}
    v_max_f32 v{rstd}, 0, v{rstd}
    v_add_f32 v{rstd}, {f32hex(1e-5)}, v{rstd}
    v_rsq_f32 v{rstd}, v{rstd}
    """)
    if r is not None:
        k(f"v_fma_f32 v{r}, -v{mean}, v{wsum}, v{s2}\nv_mul_f32 v{r}, v{r}, v{rstd}")

NFB = 40
def gen_k4():
    k = K("ffn_kernel", 128)
    NTOT = NFF + NFB + 128
    SS = 88
    k(f"""
    s_cmp_ge_u32 s2, {NTOT}
    s_cbranch_scc1 ffn_kernel_exit
    s_load_dwordx4 s[8:11], s[0:1], 80
    s_load_dwordx2 s[12:13], s[0:1], 96
    s_waitcnt lgkmcnt(0)
    """)
    k.diag_start(3)
    k.stamp()
    k.srd_off(20, 12, WS_H, MATB)
    k.srd_off(24, 12, WS_ST, 32768)
    k.srd_off(40, 12, WS_SEL, 64)
    k.srd(28, 8, MATB)
    k.srd(48, 10, 256)
    k.srd_off(44, 12, WS_A, 1728 * 4)
    k("v_lshlrev_b32 v1, 4, v0")
    for i in range(8):
        k(f"v_add_u32 v2, {4096*i}, v1\nbuffer_load_dwordx3 v[{SS+4*i}:{SS+2+4*i}], v2, s[24:27], 0 offen")
    k("v_mov_b32 v2, 0\nbuffer_load_dword v125, v2, s[40:43], 0 offen offset:32")
    def argmax(nyounger):
        k(f"s_waitcnt vmcnt({nyounger})")
        k("v_mov_b32 v7, 0")
        for i in range(8):
            b = SS + 4 * i
            row_stats(k, b, b + 1, b + 2, 8, 9, 10, 125)
            k(f"""
            v_ashrrev_i32 v11, 31, v10
            v_or_b32 v11, 0x80000000, v11
            v_xor_b32 v11, v11, v10
            v_and_b32 v11, 0xfffff800, v11
            v_sub_u32 v12, {2047 - 256*i}, v0
            v_or_b32 v11, v11, v12
            v_max_u32 v7, v7, v11
            """)
        for ror in (8, 4, 2, 1):
            k(f"s_nop 1\nv_max_u32_dpp v7, v7, v7 row_ror:{ror} row_mask:0xf bank_mask:0xf")
        k("""
        v_lshrrev_b32 v8, 4, v0
        v_lshlrev_b32 v8, 2, v8
        ds_write_b32 v8, v7
        s_waitcnt lgkmcnt(0)
        s_barrier
        v_mov_b32 v8, 0
        ds_read_b128 v[8:11], v8
        v_mov_b32 v12, 0
        ds_read_b128 v[12:15], v12 offset:16
        v_mov_b32 v2, 0
        ds_read_b128 v[2:5], v2 offset:32
        v_mov_b32 v120, 0
        ds_read_b128 v[120:123], v120 offset:48
        s_waitcnt lgkmcnt(0)
        v_max3_u32 v7, v8, v9, v10
        v_max3_u32 v7, v11, v12, v7
        v_max3_u32 v7, v13, v14, v7
        v_max3_u32 v7, v15, v2, v7
        v_max3_u32 v7, v3, v4, v7
        v_max3_u32 v7, v5, v120, v7
        v_max3_u32 v7, v121, v122, v7
        v_max_u32 v7, v123, v7
        v_and_b32 v7, 0x7ff, v7
        v_sub_u32 v7, 2047, v7
        s_nop 0
        v_readfirstlane_b32 s18, v7
        s_nop 3
        s_lshl_b32 s19, s18, 4
        s_mul_i32 s50, s18, 1280
        """.replace("s_mul_i32 s50, s18, 1280", "s_mul_i32 s53, s18, 1280"))
    def gemv_reduce(AC, nacc):
        for ror in (8, 4, 2):
            k("s_nop 1")
            for r in range(nacc):
                k(f"v_add_f32_dpp v{AC+r}, v{AC+r}, v{AC+r} row_ror:{ror} row_mask:0xf bank_mask:0xf")
        k(f"""
        v_lshrrev_b32 v12, 4, v0
        v_lshlrev_b32 v12, 7, v12
        v_and_b32 v13, 1, v0
        v_lshl_add_u32 v12, v13, 6, v12
        s_mov_b32 s52, 0x00030003
        s_mov_b32 exec_lo, s52
        s_mov_b32 exec_hi, s52
        """)
        for q in range(nacc // 4):
            k(f"ds_write_b128 v12, {v4(AC+4*q)} offset:{64+16*q}")
        k("s_mov_b64 exec, -1\ns_waitcnt lgkmcnt(0)\ns_barrier")
        k("""
        v_and_b32 v13, 7, v0
        v_bfe_u32 v12, v0, 3, 1
        v_lshlrev_b32 v12, 6, v12
        v_lshl_add_u32 v12, v13, 2, v12
        """)
    k(f"s_cmp_lt_u32 s2, {NFF}\ns_cbranch_scc1 ffn_kernel_ffa\ns_cmp_lt_u32 s2, {NFF+NFB}\ns_cbranch_scc1 ffn_kernel_ffb")
    k(f"""
    s_sub_u32 s16, s2, {NFF+NFB}
    s_add_u32 s17, s16, {(NFF+NFB) % 8}
    s_and_b32 s17, s17, 7
    s_lshl_b32 s17, s17, 4
    s_lshr_b32 s16, s16, 3
    s_add_u32 s16, s16, s17
    s_mul_i32 s17, s16, 20480
    s_lshl_b32 s51, s16, 8
    s_lshl_b32 s16, s16, 4
    """)
    for i in range(5):
        k(f"v_add_u32 v{60+i}, {4096*i}, v1\nbuffer_load_dwordx4 {v4(16+4*i)}, v{60+i}, s[20:23], s17 offen")
    for i in range(5):
        k(f"""
        v_add_u32 v{66+i}, {256*i}, v0
        v_mul_u32_u24 v{66+i}, 3277, v{66+i}
        v_lshrrev_b32 v{66+i}, 18, v{66+i}
        v_lshlrev_b32 v72, 4, v{66+i}
        buffer_load_dwordx2 {v2(40+2*i)}, v72, s[24:27], s51 offen
        """)
    argmax(10)
    k("s_sub_u32 s18, s18, s16\nv_mov_b32 v73, 0x40000000\ns_waitcnt vmcnt(0)")
    for i in range(5):
        row_stats(k, 40 + 2 * i, 41 + 2 * i, None, 52, 53)
        k(f"v_cmp_eq_u32 vcc, s18, v{66+i}\nv_mul_f32 v52, v52, v53\ns_nop 0")
        k(f"v_cndmask_b32 v{60+i}, v{60+i}, v73, vcc")
        for d in range(4):
            r = 16 + 4 * i + d
            k(f"""
            v_lshlrev_b32 v54, 16, v{r}
            v_and_b32 v55, 0xffff0000, v{r}
            v_fma_f32 v56, v54, v53, -v52
            v_fma_f32 v57, v55, v53, -v52
            v_cvt_pk_bf16_f32 v56, v56, v57
            v_lshlrev_b32 v57, 16, v56
            v_and_b32 v56, 0xffff0000, v56
            v_add_f32 v54, v54, v57
            v_add_f32 v55, v55, v56
            v_cvt_pk_bf16_f32 v{r}, v54, v55
            """)
        k(f"buffer_store_dwordx4 {v4(16+4*i)}, v{60+i}, s[28:31], s17 offen")
    k("s_branch ffn_kernel_end")
    k.label("ffa")
    G, U, HX, AC = 16, 36, 56, 64
    k.srd_off(32, 12, WS_FW, NFF * 40960)
    k("s_mul_i32 s16, s2, 40960")
    for i in range(5):
        k(f"s_add_u32 s17, s16, {i*4096}\nbuffer_load_dwordx4 {v4(G+4*i)}, v1, s[32:35], s17 offen\ns_add_u32 s17, s16, {20480+i*4096}\nbuffer_load_dwordx4 {v4(U+4*i)}, v1, s[32:35], s17 offen")
    k.stamp()
    argmax(10)
    k.stamp()
    k(f"v_mov_b32 v2, 0\nbuffer_load_dwordx3 v[{SS}:{SS+2}], v2, s[24:27], s19 offen\nv_and_b32 v8, 0xfe, v0")
    for i in range(5):
        k(f"buffer_load_ushort v{HX+i}, v8, s[20:23], s53 offen offset:{256*i}")
    k("s_waitcnt vmcnt(5)")
    row_stats(k, SS, SS + 1, SS + 2, 8, 9)
    k("s_nop 0\nv_mul_f32 v11, v8, v9\ns_waitcnt vmcnt(0)")
    for i in range(5):
        k(f"v_lshlrev_b32 v{HX+i}, 16, v{HX+i}\nv_fma_f32 v{HX+i}, v{HX+i}, v9, -v11\nv_cvt_pk_bf16_f32 v{HX+i}, v{HX+i}, v{HX+i}\nv_lshlrev_b32 v{HX+i}, 16, v{HX+i}")
    k.stamp()
    for r in range(16):
        k(f"v_mov_b32 v{AC+r}, 0")
    for i in range(5):
        for (src, acc) in ((G, AC), (U, AC + 8)):
            for d in range(4):
                s_ = src + 4 * i + d
                k(f"v_lshlrev_b32 v12, 16, v{s_}\nv_and_b32 v13, 0xffff0000, v{s_}\nv_fmac_f32 v{acc+2*d}, v12, v{HX+i}\nv_fmac_f32 v{acc+2*d+1}, v13, v{HX+i}")
    k.stamp()
    gemv_reduce(AC, 16)
    k("s_cmp_lt_u32 s2, 0x7fffffff\nv_cmp_gt_u32 vcc, 64, v0\ns_cbranch_vccz ffn_kernel_end")
    for rr in range(16):
        k(f"ds_read_b32 v{16+rr}, v12 offset:{64+128*rr}\nds_read_b32 v{32+rr}, v12 offset:{96+128*rr}")
    k("s_waitcnt lgkmcnt(0)")
    for st in (8, 4, 2, 1):
        for rr in range(st):
            k(f"v_add_f32 v{16+rr}, v{16+rr}, v{16+rr+st}\nv_add_f32 v{32+rr}, v{32+rr}, v{32+rr+st}")
    k(f"""
    v_cvt_pk_bf16_f32 v16, v16, v32
    v_and_b32 v20, 0xffff0000, v16
    v_lshlrev_b32 v16, 16, v16
    v_mul_f32 v17, {f32hex(-1.4426950408889634)}, v16
    v_exp_f32 v17, v17
    s_nop 0
    v_add_f32 v17, 1.0, v17
    v_rcp_f32 v17, v17
    s_nop 0
    v_mul_f32 v16, v16, v17
    v_cvt_pk_bf16_f32 v16, v16, v16
    v_lshlrev_b32 v16, 16, v16
    v_mul_f32 v16, v16, v20
    v_cvt_pk_bf16_f32 v16, v16, v16
    v_lshlrev_b32 v16, 16, v16
    v_lshlrev_b32 v12, 2, v0
    s_lshl_b32 s16, s2, 6
    s_mov_b64 exec, 0xffff
    buffer_store_dword v16, v12, s[44:47], s16 offen sc1
    s_mov_b64 exec, -1
    s_branch ffn_kernel_end
    """)
    k.label("ffb")
    D, AV_, AC = 16, 72, 104
    k.srd_off(32, 12, WS_WD, 40 * 55296)
    k(f"s_sub_u32 s16, s2, {NFF}\ns_mul_i32 s17, s16, 55296\nv_cmp_gt_u32 vcc, 128, v0\nv_mov_b32 v2, 0x40000000\ns_nop 1\nv_cndmask_b32 v6, v2, v1, vcc")
    for i in range(14):
        k(f"buffer_load_dwordx4 {v4(D+4*i)}, v{6 if i == 13 else 1}, s[32:35], s17 offen\ns_add_u32 s17, s17, 4096")
    argmax(14)
    k(f"v_mov_b32 v2, 0\nbuffer_load_dwordx3 v[{SS}:{SS+2}], v2, s[24:27], s19 offen")
    k("v_and_b32 v3, 15, v0\nv_lshlrev_b32 v3, 1, v3\ns_lshl_b32 s17, s16, 5\ns_add_u32 s53, s53, s17\nbuffer_load_ushort v124, v3, s[20:23], s53 offen")
    k("s_waitcnt vmcnt(1)")
    row_stats(k, SS, SS + 1, SS + 2, 8, 9, 10, 125)
    k(f"""
    s_nop 0
    v_cvt_pk_bf16_f32 v10, v10, v10
    v_lshlrev_b32 v10, 16, v10
    v_mul_f32 v11, {f32hex(-1.4426950408889634)}, v10
    v_exp_f32 v11, v11
    s_nop 0
    v_add_f32 v11, 1.0, v11
    v_rcp_f32 v11, v11
    s_nop 0
    v_cvt_pk_bf16_f32 v11, v11, v11
    v_lshlrev_b32 v11, 16, v11
    s_mov_b32 s17, 0
    """)
    k.stamp()
    k("v_lshrrev_b32 v4, 1, v0\nv_lshlrev_b32 v4, 2, v4")
    k.label("poll")
    for i in range(14):
        k(f"s_mov_b32 s16, {512*i}\nbuffer_load_dword v{AV_+i}, v4, s[44:47], s16 offen sc1")
    k("s_waitcnt vmcnt(0)")
    k(f"v_and_b32 v5, v{AV_}, v{AV_+1}")
    k(f"v_max_u32 v5, v{AV_}, v{AV_+1}")
    for i in range(2, 14, 2):
        k(f"v_max3_u32 v5, v{AV_+i}, v{AV_+i+1}, v5")
    k(f"""
    v_cmp_eq_u32 vcc, -1, v5
    s_add_u32 s17, s17, 1
    s_cbranch_vccz ffn_kernel_go
    s_cmp_lt_u32 s17, 0x100000
    s_cbranch_scc0 ffn_kernel_go
    s_sleep 2
    s_branch ffn_kernel_poll
    """)
    k.label("go")
    k.stamp()
    for r in range(8):
        k(f"v_mov_b32 v{AC+r}, 0")
    for i in range(14):
        for d in range(4):
            s_ = D + 4 * i + d
            k(f"v_lshlrev_b32 v12, 16, v{s_}\nv_and_b32 v13, 0xffff0000, v{s_}\nv_fmac_f32 v{AC+2*d}, v12, v{AV_+i}\nv_fmac_f32 v{AC+2*d+1}, v13, v{AV_+i}")
    gemv_reduce(AC, 8)
    k("v_cmp_gt_u32 vcc, 64, v0\ns_cbranch_vccz ffn_kernel_end")
    for rr in range(16):
        k(f"ds_read_b32 v{16+rr}, v12 offset:{64+128*rr}")
    k("s_waitcnt lgkmcnt(0)")
    for st in (8, 4, 2, 1):
        for rr in range(st):
            k(f"v_add_f32 v{16+rr}, v{16+rr}, v{16+rr+st}")
    k("""
    v_cvt_pk_bf16_f32 v16, v16, v16
    v_lshlrev_b32 v16, 16, v16
    v_mul_f32 v16, v16, v11
    v_cvt_pk_bf16_f32 v16, v16, v16
    v_lshlrev_b32 v16, 16, v16
    v_lshlrev_b32 v124, 16, v124
    v_sub_f32 v10, v124, v8
    v_mul_f32 v10, v10, v9
    v_cvt_pk_bf16_f32 v10, v10, v10
    v_lshlrev_b32 v10, 16, v10
    v_add_f32 v10, v10, v16
    v_cvt_pk_bf16_f32 v10, v10, v10
    v_lshlrev_b32 v10, 16, v10
    v_add_f32 v10, v10, v124
    v_cvt_pk_bf16_f32 v10, v10, v10
    s_mov_b64 exec, 0xffff
    buffer_store_short v10, v3, s[28:31], s53 offen
    s_mov_b64 exec, -1
    """)
    k.finish(3)
    return k, f"grid=({NTOT},1,1) block=(256,1,1) lds=4096"

def main():
    ks = [gen_k1(), gen_k2(), gen_k3(), gen_k4()]
    out = "; generated by dev/gen7.py (hand-written generator)\n"
    for k, l in ks:
        out += f"; @launch kernel={k.name} {l}\n"
    out += '.amdgcn_target "amdgcn-amd-amdhsa--gfx950"\n.text\n'
    for k, l in ks:
        out += k.text()
    out += '.section .rodata,"a"\n'
    for k, l in ks:
        out += ".p2align 6\n" + k.desc()
    path = sys.argv[1] if len(sys.argv) > 1 else f"cdna_kernels/{NAME}.s"
    open(path, "w").write(out)
    print("wrote", path, len(out))

main()
```
